```python
import torch

def _softmax(x, axis=-1):
    return torch.softmax(x, dim=axis)
def _gelu(x):
    return torch.nn.functional.gelu(x, approximate="tanh")
def _silu(x):
    return torch.nn.functional.silu(x)
def _sigmoid(x):
    return torch.sigmoid(x)
def _layernorm(x, axis=-1, eps=1e-5):
    m = x.mean(dim=axis, keepdim=True)
    v = x.var(dim=axis, keepdim=True, unbiased=False)
    return (x - m) / torch.sqrt(v + eps)
def _scatter_add(tgt, idx, src, axis=0):
    return tgt.clone().index_add_(axis, idx, src)
def _segment_sum(src, seg, n):
    out = torch.zeros((n,) + src.shape[1:], dtype=src.dtype)
    return out.index_add_(0, seg, src)
def _pad(x, pw):
    flat = tuple(v for pair in reversed(pw) for v in pair)
    return torch.nn.functional.pad(x, flat)

kernel_name = 'sequential_preLN__spectral_gfnet__glu_gated_swiglu__prompt'

def setup_inputs():

    _w = (lambda a: (lambda t: t.to(torch.bfloat16) if t.is_floating_point() else t)(torch.as_tensor(a)))
    def _A_setup():
        B, S, D = 1, 2048, 640
        Df = D // 2 + 1
        return {
            "x": _w((lambda *s: torch.randn(*s, dtype=torch.bfloat16) * 0.05)(B, S, D)),
            "w_r": _w((lambda *s: torch.randn(*s, dtype=torch.bfloat16) * 0.4)(S, Df) * 0.02),
            "w_i": _w((lambda *s: torch.randn(*s, dtype=torch.bfloat16) * 0.4)(S, Df) * 0.02),
        }
    _A_in = _A_setup()

    def _B_setup():
        B, S, D, F = 1, 2048, 640, 1536
        return {
            "x": _w((lambda *s: torch.randn(*s, dtype=torch.bfloat16) * 0.05)(B, S, D)),
            "w1": _w((lambda *s: torch.randn(*s, dtype=torch.bfloat16) * 0.2)(D, F) * (2.0 / D) ** 0.5),
            "w3": _w((lambda *s: torch.randn(*s, dtype=torch.bfloat16) * 0.2)(D, F) * (2.0 / D) ** 0.5),
            "w2": _w((lambda *s: torch.randn(*s, dtype=torch.bfloat16) * 0.2)(F, D) * (2.0 / F) ** 0.5),
        }
    _B_in = _B_setup()

    return {
        "A_x": _A_in["x"],
        "A_w_r": _A_in["w_r"],
        "A_w_i": _A_in["w_i"],
        "B_x": _B_in["x"],
        "B_w1": _B_in["w1"],
        "B_w3": _B_in["w3"],
        "B_w2": _B_in["w2"],
    }

def reference(A_x, A_w_r, A_w_i, B_x, B_w1, B_w3, B_w2):
    def _A_ref(x, w_r, w_i):
        B, S, D = x.shape
        X = (lambda x, axes=(-2,-1): torch.fft.rfft2(x.float(), dim=axes))(x, axes=(-2, -1))
        W = w_r + 1j * w_i
        X = X * W
        y = (lambda x, s, axes=(-2,-1): torch.fft.irfft2(x, s=s, dim=axes).to(torch.bfloat16))(X, (S, D), axes=(-2, -1))
        return y

    def _B_ref(x, w1, w3, w2):
        gate = torch.einsum("bsd,df->bsf", x, w1)
        up = torch.einsum("bsd,df->bsf", x, w3)
        h = _silu(gate) * up
        out = torch.einsum("bsf,fd->bsd", h, w2)
        return out

    x = A_x
    h = x + _A_ref(_layernorm(x, axis=-1), A_w_r, A_w_i)
    h2 = h + _B_ref(_layernorm(h, axis=-1), B_w1, B_w3, B_w2)
    return h2
```

```python
from gl import *
WS_PT = 0x000000
WS_WT = 0x280000
WS_UT = 0x500000
WS_HC = 0x780000
WS_HF = 0xA00000
WS_MS = 0x1000000
WS_WA = 0x1100000
WS_WB = 0x1500000
WS_END = 0x1700000
class Alloc:
    def __init__(self, start=0): self.n = start
    def __call__(self, cnt=1, align=1):
        self.n = (self.n + align - 1) // align * align
        r = self.n; self.n += cnt
        return r
def gen_cos_seq(k, dst0, ndw, T, c2, rev0_expr_regs, step, seed_every):
    pass
def cos_block(k, dst0, ndw, vrev, vdl, c2, t, halve_last=False):
    P = [t, t+2, t+4]; sc = t+6
    k(f"v_add_f32 v{sc}, v{vrev}, v{vdl}")
    k(f"v_cos_f32 v{P[0]}, v{vrev}")
    k(f"v_cos_f32 v{P[0]+1}, v{sc}")
    k(f"v_add_f32 v{sc+1}, v{sc}, v{vdl}")
    k(f"v_add_f32 v{sc}, v{sc+1}, v{vdl}")
    k(f"v_cos_f32 v{P[1]}, v{sc+1}")
    k(f"v_cos_f32 v{P[1]+1}, v{sc}")
    k(f"v_cvt_pk_bf16_f32 v{dst0}, v{P[0]}, v{P[0]+1}")
    k(f"s_nop 0")
    k(f"v_cvt_pk_bf16_f32 v{dst0+1}, v{P[1]}, v{P[1]+1}")
    a_, b_, c_ = 0, 1, 2
    for i in range(2, ndw):
        k(f"v_pk_fma_f32 v[{P[c_]}:{P[c_]+1}], v[{c2}:{c2+1}], v[{P[b_]}:{P[b_]+1}], v[{P[a_]}:{P[a_]+1}] op_sel_hi:[0,1,1] neg_lo:[0,0,1] neg_hi:[0,0,1]")
        if halve_last and i == ndw-1:
            k(f"v_mul_f32 v{P[c_]+1}, 0.5, v{P[c_]+1}")
        k(f"v_cvt_pk_bf16_f32 v{dst0+i}, v{P[c_]}, v{P[c_]+1}")
        a_, b_, c_ = b_, c_, a_

def wg_rowcol5(k, srow, scol):
    k(f"s_and_b32 s22, s2, 7")
    k(f"s_lshr_b32 s23, s2, 3")
    k(f"s_mul_i32 s24, s23, 52")
    k(f"s_lshr_b32 s24, s24, 8")
    k(f"s_mul_i32 s25, s24, 5")
    k(f"s_sub_u32 s{scol}, s23, s25")
    k(f"s_lshl_b32 s24, s24, 3")
    k(f"s_add_u32 s{srow}, s24, s22")

def prep_job(k, label, nbase, END):
    W2 = f"{label}_w2"
    k("s_load_dwordx2 s[32:33], s[0:1], 32")
    k("s_load_dwordx2 s[34:35], s[0:1], 40")
    k("s_load_dwordx2 s[36:37], s[0:1], 48")
    k("s_load_dwordx2 s[38:39], s[0:1], 72")
    k("v_and_b32 v1, 63, v0")
    k("v_lshrrev_b32 v2, 6, v0")
    k(f"s_sub_u32 s16, s2, {nbase}")
    k("v_readfirstlane_b32 s17, v2")
    k("s_cmp_ge_u32 s16, 90")
    k(f"s_cbranch_scc1 {END}")
    k("s_lshl_b32 s18, s16, 2")
    k("s_add_u32 s18, s18, s17")
    k("s_lshl_b32 s19, s17, 14")
    k("v_bfe_u32 v3, v1, 2, 2")
    k("v_and_b32 v4, 3, v1")
    k("v_lshrrev_b32 v5, 4, v1")
    k("v_lshlrev_b32 v10, 4, v1")
    k("s_cmp_ge_u32 s16, 60")
    k(f"s_cbranch_scc1 {W2}")
    k("s_mul_i32 s20, s18, 2731")
    k("s_lshr_b32 s20, s20, 16")
    k("s_mul_i32 s21, s20, 24")
    k("s_sub_u32 s21, s18, s21")
    k("v_lshrrev_b32 v6, 3, v1")
    k("v_mul_u32_u24 v6, 3072, v6")
    k("v_and_b32 v7, 7, v1")
    k("v_lshl_add_u32 v6, v7, 4, v6")
    k("s_mul_i32 s22, s20, %d" % (64*3072))
    k("s_lshl_b32 s23, s21, 7")
    k("s_add_u32 s22, s22, s23")
    k("s_waitcnt lgkmcnt(0)")
    k.srd(8, 32, 1966080); k.srd(12, 34, 1966080); k.srd(40, 38, WS_END)
    for i in range(4):
        for mtx in range(2):
            for hh in range(2):
                k(f"s_add_u32 m0, s19, {i*4096 + mtx*2048 + hh*1024}")
                k(f"s_add_u32 s24, s22, {(16*i + 8*hh)*3072}")
                k(f"buffer_load_dwordx4 v6, s[{8+4*mtx}:{11+4*mtx}], s24 offen lds")
    k("v_and_b32 v7, 1, v5")
    k("v_lshlrev_b32 v7, 11, v7")
    k("v_lshrrev_b32 v8, 1, v5")
    k("v_lshl_add_u32 v7, v8, 10, v7")
    k("v_lshl_add_u32 v7, v3, 7, v7")
    k("v_and_b32 v8, 1, v4")
    k("v_lshlrev_b32 v8, 1, v8")
    k("v_lshrrev_b32 v9, 1, v4")
    k("v_or_b32 v8, v8, v9")
    k("v_lshl_add_u32 v7, v8, 3, v7")
    k("v_add_u32 v7, s19, v7")
    for i in range(4):
        if i == 0: k("s_waitcnt vmcnt(0)")
        for mt in range(4):
            b = 12 + 4*mt + 16*(i & 1)
            for z in range(2):
                k(f"ds_read_b64_tr_b16 v[{b+2*z}:{b+2*z+1}], v7 offset:{i*4096 + z*512 + mt*32}")
        for mt in range(4):
            b = 12 + 4*mt + 16*(i & 1)
            k("s_lshl_b32 s24, s21, 2")
            k(f"s_add_u32 s24, s24, {mt}")
            k("s_mul_i32 s25, s24, 43")
            k("s_lshr_b32 s25, s25, 8")
            k("s_mul_i32 s26, s25, 6")
            k("s_sub_u32 s24, s24, s26")
            k("s_mul_i32 s25, s25, 40")
            k("s_lshl_b32 s26, s20, 2")
            k("s_add_u32 s25, s25, s26")
            k(f"s_add_u32 s25, s25, {i}")
            k("s_mul_i32 s25, s25, 6")
            k("s_add_u32 s25, s25, s24")
            k("s_lshl_b32 s25, s25, 10")
            k(f"s_add_u32 s25, s25, {WS_WA}")
            k(f"s_waitcnt lgkmcnt({6-2*mt})")
            k(f"buffer_store_dwordx4 v[{b}:{b+3}], v10, s[40:43], s25 offen")
    k("s_endpgm")
    k.lab(W2)
    k("s_sub_u32 s18, s18, 240")
    k("s_mul_i32 s20, s18, 205")
    k("s_lshr_b32 s20, s20, 11")
    k("s_mul_i32 s21, s20, 10")
    k("s_sub_u32 s21, s18, s21")
    k("v_lshrrev_b32 v6, 3, v1")
    k("v_mul_u32_u24 v6, 1280, v6")
    k("v_and_b32 v7, 7, v1")
    k("v_lshl_add_u32 v6, v7, 4, v6")
    k("s_mul_i32 s22, s20, %d" % (128*1280))
    k("s_lshl_b32 s23, s21, 7")
    k("s_add_u32 s22, s22, s23")
    k("s_waitcnt lgkmcnt(0)")
    k.srd(8, 36, 1966080); k.srd(40, 38, WS_END)
    for i in range(4):
        for q in range(4):
            k(f"s_add_u32 m0, s19, {i*4096 + q*1024}")
            k(f"s_add_u32 s24, s22, {(32*i + 8*q)*1280}")
            k(f"buffer_load_dwordx4 v6, s[8:11], s24 offen lds")
    k("v_lshlrev_b32 v7, 10, v5")
    k("v_lshl_add_u32 v7, v3, 7, v7")
    k("v_lshl_add_u32 v7, v4, 3, v7")
    k("v_add_u32 v7, s19, v7")
    k("s_waitcnt vmcnt(0)")
    k("s_mul_i32 s24, s20, 160")
    k("s_lshl_b32 s25, s21, 2")
    k("s_add_u32 s24, s24, s25")
    k("s_lshl_b32 s24, s24, 10")
    k(f"s_add_u32 s24, s24, {WS_WB}")
    for i in range(4):
        for mt in range(4):
            b = 12 + 4*mt + 16*(i & 1)
            for z in range(2):
                k(f"ds_read_b64_tr_b16 v[{b+2*z}:{b+2*z+1}], v7 offset:{i*4096 + z*512 + mt*32}")
        for mt in range(4):
            b = 12 + 4*mt + 16*(i & 1)
            k(f"s_add_u32 s25, s24, {(i*40 + mt)*1024}")
            k(f"s_waitcnt lgkmcnt({6-2*mt})")
            k(f"buffer_store_dwordx4 v[{b}:{b+3}], v10, s[40:43], s25 offen")
    k("s_endpgm")
```

```python
import struct, math
KN = "sequential_preLN__spectral_gfnet__glu_gated_swiglu__prompt_kernel"
def f2u(f): return struct.unpack("<I", struct.pack("<f", f))[0]
def fh(f): return "0x%08x" % f2u(f)
def v(i, n=1): return f"v{i}" if n == 1 else f"v[{i}:{i+n-1}]"
def a(i, n=1): return f"a{i}" if n == 1 else f"a[{i}:{i+n-1}]"
def s(i, n=1): return f"s{i}" if n == 1 else f"s[{i}:{i+n-1}]"
class Kern:
    def __init__(self, label, grid, block=256, lds=0, vgpr=256, agpr=0, sgpr=102, wgy=False):
        self.label, self.grid, self.block, self.lds = label, grid, block, lds
        self.vgpr, self.agpr, self.sgpr, self.wgy = vgpr, agpr, sgpr, wgy
        self.L = []
        self.nl = 0
    def __call__(self, txt):
        for ln in txt.strip("\n").split("\n"):
            self.L.append("    " + ln.strip())
    def lab(self, name): self.L.append(f"{name}:")
    def newlab(self, p="L"):
        self.nl += 1
        return f"{self.label}_{p}{self.nl}"
    def srd(self, dst, ptr_s, size, off=0):
        if off:
            self(f"s_add_u32 s{dst}, s{ptr_s}, {off}")
            self(f"s_addc_u32 s{dst+1}, s{ptr_s+1}, 0")
        else:
            self(f"s_mov_b32 s{dst}, s{ptr_s}")
            self(f"s_mov_b32 s{dst+1}, s{ptr_s+1}")
        self(f"s_mov_b32 s{dst+2}, {size}")
        self(f"s_mov_b32 s{dst+3}, 0x00020000")
    def text(self):
        acc = (self.vgpr + 3) // 4 * 4
        tot = acc + self.agpr if self.agpr else self.vgpr
        if not self.agpr: acc = max(4, acc); tot = max(tot, 1)
        head = f".globl {self.label}\n.p2align 8\n.type {self.label},@function\n{self.label}:\n"
        body = "\n".join(self.L) + "\n"
        return head + body
    def desc(self):
        acc = max(4, (self.vgpr + 3) // 4 * 4)
        tot = acc + self.agpr if self.agpr else acc
        t = f".p2align 6\n.amdhsa_kernel {self.label}\n"
        t += f"  .amdhsa_next_free_vgpr {tot}\n  .amdhsa_next_free_sgpr {self.sgpr}\n  .amdhsa_accum_offset {acc}\n"
        t += "  .amdhsa_group_segment_fixed_size 0\n  .amdhsa_kernarg_size 80\n  .amdhsa_user_sgpr_count 2\n  .amdhsa_user_sgpr_kernarg_segment_ptr 1\n  .amdhsa_system_sgpr_workgroup_id_x 1\n"
        if self.wgy: t += "  .amdhsa_system_sgpr_workgroup_id_y 1\n"
        t += ".end_amdhsa_kernel\n"
        return t
def build(kerns, path, single=False, launches=None):
    t = ""
    launches = launches or kerns
    if single:
        k = kerns[0]
        t += f"; @launch grid=({k.grid},1,1) block=({k.block},1,1) lds={k.lds}\n"
    else:
        for k in launches:
            t += f"; @launch kernel={k.label} grid=({k.grid},1,1) block=({k.block},1,1) lds={k.lds}\n"
    t += '.amdgcn_target "amdgcn-amd-amdhsa--gfx950"\n.text\n'
    for k in kerns: t += k.text()
    t += '.section .rodata,"a"\n'
    for k in kerns: t += k.desc()
    open(path, "w").write(t)
```

```python
from common import *
def make_k1(label="k1_kernel"):
    k = Kern(label, grid=240, block=256, lds=81920+2048+1024, vgpr=248)
    END = f"{label}_end"; SIDE = f"{label}_side"
    k("s_cmp_ge_u32 s2, 240")
    k(f"s_cbranch_scc1 {END}")
    k("s_load_dwordx2 s[4:5], s[0:1], 0")
    k("s_load_dwordx2 s[6:7], s[0:1], 72")
    k("s_cmp_ge_u32 s2, 160")
    k(f"s_cbranch_scc1 {SIDE}")
    A = Alloc(1)
    vlane = A(); vt0 = A(); vt1 = A()
    vdma = A(2)
    vard = A(8)
    vst = A()
    vsum = A(4, 2)
    vrev = A(); vdl = A(); vc2 = A(2, 2); vtmp = A(8, 2)
    vacc = A(32, 4)
    vfa = A(24, 4)
    vF = A(160, 4)
    assert A.n <= 248, A.n
    sw, srow, scol, sso, sm0, sones = 16, 17, 18, 19, 20, 21
    k(f"v_and_b32 v{vlane}, 63, v0")
    k(f"v_lshrrev_b32 v{vt0}, 6, v0")
    k(f"s_and_b32 s22, s2, 7")
    k(f"s_lshr_b32 s23, s2, 3")
    k(f"v_readfirstlane_b32 s{sw}, v{vt0}")
    k(f"s_mul_i32 s24, s23, 52")
    k(f"s_lshr_b32 s24, s24, 8")
    k(f"s_mul_i32 s25, s24, 5")
    k(f"s_sub_u32 s{scol}, s23, s25")
    k(f"s_lshl_b32 s24, s24, 3")
    k(f"s_add_u32 s{srow}, s24, s22")
    k(f"v_lshrrev_b32 v{vt0}, 3, v{vlane}")
    k(f"v_mul_u32_u24 v{vt0}, 1280, v{vt0}")
    k(f"v_lshrrev_b32 v{vt1}, 4, v{vlane}")
    k(f"v_xor_b32 v{vt1}, v{vt1}, v{vlane}")
    k(f"v_and_b32 v{vt1}, 7, v{vt1}")
    k(f"v_lshl_add_u32 v{vdma}, v{vt1}, 4, v{vt0}")
    k(f"v_xor_b32 v{vdma+1}, 64, v{vdma}")
    k(f"v_add_u32 v{vdma+1}, {8*1280}, v{vdma+1}")
    k(f"s_lshl_b32 s22, s{srow}, 2")
    k(f"s_add_u32 s22, s22, s{sw}")
    k(f"s_mul_i32 s{sso}, s22, {16*1280}")
    k(f"s_lshl_b32 s{sm0}, s{sw}, 11")
    k("s_waitcnt lgkmcnt(0)")
    k.srd(8, 4, 2621440)
    k.srd(12, 6, WS_END)
    order = [0,5,1,6,2,7,3,8,4,9]
    for c in order:
        for i in range(2):
            k(f"s_add_u32 m0, s{sm0}, {c*8192 + i*1024}")
            k(f"s_add_u32 s22, s{sso}, {c*128}")
            k(f"buffer_load_dwordx4 v{vdma+i}, s[8:11], s22 offen lds")
    k(f"s_lshl_b32 s22, s{scol}, 2")
    k(f"s_add_u32 s22, s22, s{sw}")
    k(f"s_lshl_b32 s22, s22, 4")
    k(f"s_add_u32 s22, s22, 1")
    k(f"v_and_b32 v{vt0}, 15, v{vlane}")
    k(f"v_add_u32 v{vt0}, s22, v{vt0}")
    k(f"v_cvt_f32_u32 v{vtmp}, v{vt0}")
    k(f"v_bfe_u32 v{vt1}, v{vlane}, 4, 1")
    k(f"v_lshl_add_u32 v{vst}, v{vt0}, 1, v{vt1}")
    k(f"v_lshlrev_b32 v{vst}, 12, v{vst}")
    k(f"v_subrev_u32 v{vst}, {2*4096}, v{vst}")
    k(f"v_cvt_f32_u32 v{vtmp+1}, v{vt1}")
    k(f"v_lshrrev_b32 v{vt1}, 5, v{vlane}")
    k(f"v_lshl_add_u32 v{vst}, v{vt1}, 4, v{vst}")
    k(f"v_cvt_f32_u32 v{vtmp+2}, v{vt1}")
    k(f"v_mul_f32 v{vdl}, {fh(1/640)}, v{vtmp}")
    k(f"v_mul_f32 v{vrev}, v{vtmp+2}, v{vtmp}")
    k(f"v_mul_f32 v{vrev}, 0.5, v{vrev}")
    k(f"v_mul_f32 v{vtmp+1}, {fh(0.25)}, v{vtmp+1}")
    k(f"v_add_f32 v{vrev}, v{vrev}, v{vtmp+1}")
    k(f"v_fract_f32 v{vrev}, v{vrev}")
    k(f"v_mul_f32 v{vt0}, {fh(1/16)}, v{vtmp}")
    k(f"v_fract_f32 v{vt0}, v{vt0}")
    k(f"v_add_f32 v{vtmp}, v{vdl}, v{vdl}")
    k(f"v_cos_f32 v{vc2}, v{vtmp}")
    k("s_nop 0")
    k(f"v_add_f32 v{vc2}, v{vc2}, v{vc2}")
    for b in range(8):
        cos_block(k, vF + 20*b, 20, vrev, vdl, vc2, vtmp)
        if b < 7:
            k(f"v_add_f32 v{vrev}, v{vrev}, v{vt0}")
            k(f"v_fract_f32 v{vrev}, v{vrev}")
    k(f"v_and_b32 v{vt0}, 19, v{vlane}")
    k(f"v_bfe_u32 v{vt1}, v{vlane}, 2, 1")
    k(f"v_lshl_or_b32 v{vt0}, v{vt1}, 3, v{vt0}")
    k(f"v_bfe_u32 v{vt1}, v{vlane}, 3, 1")
    k(f"v_lshl_or_b32 v{vt0}, v{vt1}, 2, v{vt0}")
    k(f"v_bfe_u32 v{vt1}, v{vt0}, 1, 3")
    k(f"v_lshlrev_b32 v{vt1}, 4, v{vt1}")
    k(f"v_lshl_or_b32 v{vt1}, v{vt0}, 7, v{vt1}")
    k(f"v_lshrrev_b32 v{vtmp}, 5, v{vlane}")
    k(f"v_mul_u32_u24 v{vtmp}, {5*8192}, v{vtmp}")
    k(f"v_add_u32 v{vard}, v{vt1}, v{vtmp}")
    for u in range(1, 8):
        k(f"v_xor_b32 v{vard+u}, {u<<4}, v{vard}")
    vsl = vt0
    for i in range(32): k(f"v_mov_b32 v{vacc+i}, 0")
    for i in range(4): k(f"v_mov_b32 v{vsum+i}, 0")
    k(f"s_mov_b32 s{sones}, 0x3f803f80")
    vsb = vtmp
    vsa = A(2)
    RS = 81920
    k(f"v_lshlrev_b32 v{vsa}, 4, v{vlane}")
    k(f"v_add_u32 v{vsa}, s{sm0}, v{vsa}")
    k(f"v_add_u32 v{vsa+1}, {5*8192}, v{vsa}")
    def rd(kk):
        p, u = kk // 8, kk % 8
        sl = kk % 3
        for t in range(2):
            k(f"ds_read_b128 v[{vfa+sl*8+t*4}:{vfa+sl*8+t*4+3}], v{vard+u} offset:{p*8192 + t*4096}")
    def sync_pair(p):
        k(f"s_waitcnt vmcnt({16-4*p})")
        k("s_barrier")
    def statrd(kk):
        p, j = kk // 8, (kk % 8) // 2
        i = j & 1
        b = vsb + 4*(j & 1)
        k(f"ds_read_b128 v[{b}:{b+3}], v{vsa+(j>>1)} offset:{p*8192 + i*1024}")
    def statproc(kk):
        j = (kk % 8) // 2; i = j & 1
        b = vsb + 4*(j & 1)
        out = []
        for q in range(4):
            out.append(f"v_dot2c_f32_bf16 v{vsum+2*i}, s{sones}, v{b+q}")
            out.append(f"v_dot2c_f32_bf16 v{vsum+2*i+1}, v{b+q}, v{b+q}")
        return out
    sync_pair(0)
    rd(0); rd(1)
    for kk in range(40):
        nk = kk + 2
        st = (kk % 2 == 0)
        if nk < 40 and nk % 8 == 0:
            pass
        if st: statrd(kk)
        if nk < 40:
            if nk % 8 == 0: sync_pair(nk // 8)
            rd(nk)
            k(f"s_waitcnt lgkmcnt({5 if st else 4})")
        elif nk == 40: k(f"s_waitcnt lgkmcnt(3)")
        else: k("s_waitcnt lgkmcnt(0)")
        sl = kk % 3
        ex = statproc(kk-1) if not st else []
        for t in range(2):
            fa = vfa + sl*8 + t*4
            k(f"v_mfma_f32_32x32x16_bf16 v[{vacc+16*t}:{vacc+16*t+15}], v[{fa}:{fa+3}], v[{vF+4*kk}:{vF+4*kk+3}], v[{vacc+16*t}:{vacc+16*t+15}]")
            for e in ex[4*t:4*t+4]: k(e)
    for dpp in ["quad_perm:[1,0,3,2]", "quad_perm:[2,3,0,1]", "row_half_mirror"]:
        k("s_nop 1")
        for q in range(4):
            k(f"v_add_f32_dpp v{vsum+q}, v{vsum+q}, v{vsum+q} {dpp} row_mask:0xf bank_mask:0xf")
    k(f"v_and_b32 v{vt1}, 1, v{vlane}")
    k(f"v_cmp_eq_u32 vcc, 1, v{vt1}")
    k(f"v_lshrrev_b32 v{vtmp}, 3, v{vlane}")
    k(f"v_lshl_add_u32 v{vtmp}, v{vt1}, 3, v{vtmp}")
    k(f"v_cndmask_b32 v{vsum}, v{vsum}, v{vsum+2}, vcc")
    k(f"v_cndmask_b32 v{vsum+1}, v{vsum+1}, v{vsum+3}, vcc")
    k(f"v_mul_f32 v{vsum}, {fh(1/640)}, v{vsum}")
    k(f"v_mul_f32 v{vsum+2}, v{vsum}, v{vsum}")
    k(f"v_mul_f32 v{vsum+1}, {fh(1/640)}, v{vsum+1}")
    k(f"v_sub_f32 v{vsum+1}, v{vsum+1}, v{vsum+2}")
    k(f"v_max_f32 v{vsum+1}, 0, v{vsum+1}")
    k(f"v_add_f32 v{vsum+1}, {fh(1e-5)}, v{vsum+1}")
    k(f"v_rsq_f32 v{vsum+1}, v{vsum+1}")
    k(f"s_lshl_b32 s22, s{sw}, 4")
    k(f"v_add_u32 v{vtmp}, s22, v{vtmp}")
    k(f"v_lshlrev_b32 v{vtmp}, 2, v{vtmp}")
    k(f"v_add_u32 v{vtmp+1}, {RS}, v{vtmp}")
    k(f"ds_write_b32 v{vtmp+1}, v{vsum+1}")
    skip = k.newlab()
    k(f"s_cmp_lg_u32 s{scol}, 0")
    k(f"s_cbranch_scc1 {skip}")
    k(f"s_lshl_b32 s22, s{srow}, 8")
    k(f"s_add_u32 s22, s22, {WS_MS}")
    k(f"buffer_store_dword v{vsum}, v{vtmp}, s[12:15], s22 offen")
    k.lab(skip)
    k("s_waitcnt lgkmcnt(0)")
    k("s_barrier")
    k(f"v_lshrrev_b32 v{vt1}, 5, v{vlane}")
    k(f"v_lshlrev_b32 v{vt1}, 5, v{vt1}")
    k(f"v_add_u32 v{vt1}, {RS}, v{vt1}")
    vr = vF
    for t in range(2):
        for q in range(2):
            for z in range(2):
                b = vr + 16*t + 8*q + 4*z
                k(f"ds_read_b128 v[{b}:{b+3}], v{vt1} offset:{128*t + 64*q + 16*z}")
    k(f"s_lshl_b32 s22, s{srow}, 7")
    k(f"s_add_u32 s22, s22, {WS_PT}")
    k("s_waitcnt lgkmcnt(0)")
    vo = vF + 32
    for t in range(2):
        for q in range(2):
            b = 16*t + 8*q
            for z in range(4):
                k(f"v_pk_mul_f32 v[{vacc+b+2*z}:{vacc+b+2*z+1}], v[{vacc+b+2*z}:{vacc+b+2*z+1}], v[{vr+b+2*z}:{vr+b+2*z+1}]")
            ob = vo + 4*(2*t+q)
            for z in range(4):
                k(f"v_cvt_pk_bf16_f32 v{ob+z}, v{vacc+b+2*z}, v{vacc+b+2*z+1}")
            k(f"buffer_store_dwordx4 v[{ob}:{ob+3}], v{vst}, s[12:15], s22 offen offset:{64*t+32*q}")
    k("s_endpgm")
    assert A.n <= 256, A.n
    k.vgpr = A.n
    k.lab(SIDE)
    k("s_load_dwordx2 s[32:33], s[0:1], 8")
    k("s_load_dwordx2 s[16:17], s[0:1], 16")
    k("s_sub_u32 s20, s2, 160")
    k("s_mul_i32 s21, s20, 205")
    k("s_lshr_b32 s21, s21, 11")
    k("s_mul_i32 s22, s21, 10")
    k("s_sub_u32 s22, s20, s22")
    k("v_and_b32 v1, 3, v0")
    k("v_lshrrev_b32 v2, 6, v0")
    k("v_lshl_add_u32 v1, v2, 2, v1")
    k("v_lshlrev_b32 v1, 6, v1")
    k("v_bfe_u32 v2, v0, 2, 4")
    k("v_add_u32 v1, v1, v2")
    k("s_lshr_b32 s23, s21, 1")
    k("s_lshl_b32 s23, s23, 4")
    k("s_and_b32 s24, s21, 1")
    k("s_lshl_b32 s24, s24, 10")
    k("s_add_u32 s23, s23, s24")
    k("v_add_u32 v1, s23, v1")
    k("v_mul_u32_u24 v1, 642, v1")
    k("s_lshl_b32 s25, s22, 6")
    k("s_add_u32 s25, s25, 2")
    k("v_lshlrev_b32 v2, 2, v0")
    k("s_waitcnt lgkmcnt(0)")
    k.srd(8, 32, 1314816); k.srd(28, 16, 1314816); k.srd(12, 6, WS_END)
    for q in range(4):
        k(f"buffer_load_dwordx4 v[{4+4*q}:{7+4*q}], v1, s[8:11], s25 offen offset:{16*q}")
        k(f"buffer_load_dwordx4 v[{20+4*q}:{23+4*q}], v1, s[28:31], s25 offen offset:{16*q}")
    k("s_mov_b32 s26, 0x05040100\ns_mov_b32 s27, 0x07060302")
    k("s_lshl_b32 s23, s22, 18")
    k("s_lshl_b32 s24, s21, 10")
    k("s_add_u32 s23, s23, s24")
    k(f"s_add_u32 s23, s23, {WS_WT}")
    for q in range(4):
        if q == 0: k("s_waitcnt vmcnt(0)")
        for z in range(4):
            for hh in range(2):
                d = 36 + ((2*z+hh) % 8)
                k(f"v_perm_b32 v{d}, v{20+4*q+z}, v{4+4*q+z}, s{26+hh}")
                k(f"buffer_store_dword v{d}, v2, s[12:15], s23 offen")
                k("s_add_u32 s23, s23, 8192")
    k.lab(END)
    k("s_endpgm")
    return k
if __name__ == "__main__":
    build([make_k1()], "k1.s")
```

```python
from common import *
def make_k2(label="k2_kernel"):
    k = Kern(label, grid=320, block=256, lds=16384, vgpr=200)
    END = f"{label}_end"
    k("s_cmp_ge_u32 s2, 320")
    k(f"s_cbranch_scc1 {END}")
    k("s_load_dwordx2 s[6:7], s[0:1], 72")
    A = Alloc(1)
    vl = A(); vg = A(); v16 = A(); t0 = A(); t1 = A(); t2 = A()
    vA = A(2); vWr = A(2); vB = A(2); vSt = A()
    tf = A(8, 2)
    tg = A(8, 2)
    C64 = A(8, 4); S64 = A(8, 4); N64 = A(8, 4)
    C32 = A(8, 4); S32 = A(8, 4); N32 = A(8, 4)
    T1c = A(8, 2); T1s = A(8, 2); T2c = A(8, 2); T2s = A(8, 2)
    W = A(8, 4)
    FA = A(32, 4)
    AC = A(16, 4)
    AD = A(16, 4)
    Br = A(4, 4); Bi = A(4, 4)
    k.vgpr = A.n
    sw = 16
    k(f"v_and_b32 v{vl}, 63, v0")
    k(f"v_lshrrev_b32 v{t0}, 6, v0")
    k(f"v_lshrrev_b32 v{vg}, 4, v{vl}")
    k(f"v_readfirstlane_b32 s{sw}, v{t0}")
    k(f"v_and_b32 v{v16}, 15, v{vl}")
    k(f"v_lshrrev_b32 v{t1}, 5, v{vl}")
    k(f"v_lshlrev_b32 v{t1}, 1, v{t1}")
    k(f"v_xor_b32 v{t1}, v{t1}, v{vl}")
    k(f"v_lshlrev_b32 v{t1}, 4, v{t1}")
    k(f"v_lshlrev_b32 v{t2}, 4, v{vl}")
    k(f"s_lshl_b32 s17, s{sw}, 11")
    k(f"s_lshl_b32 s18, s2, 13")
    k(f"s_add_u32 s19, s18, s17")
    k(f"s_add_u32 s20, s19, {WS_PT}")
    k(f"s_add_u32 s21, s19, {WS_WT}")
    k(f"s_mov_b32 m0, s17")
    k("s_waitcnt lgkmcnt(0)")
    k.srd(8, 6, WS_END)
    k(f"buffer_load_dwordx4 v{t1}, s[8:11], s20 offen lds")
    k(f"buffer_load_dwordx4 v{t1}, s[8:11], s20 offen offset:1024 lds")
    k(f"buffer_load_dwordx4 v[{W}:{W+3}], v{t2}, s[8:11], s21 offen")
    k(f"buffer_load_dwordx4 v[{W+4}:{W+7}], v{t2}, s[8:11], s21 offen offset:1024")
    k(f"s_lshl_b32 s22, s{sw}, 4")
    k(f"v_add_u32 v{t0}, s22, v{v16}")
    k(f"v_cvt_f32_u32 v{tg}, v{t0}")
    k(f"v_cvt_f32_u32 v{tg+1}, v{vg}")
    k(f"v_cvt_f32_u32 v{tg+2}, v{v16}")
    k(f"v_lshlrev_b32 v{t0}, 31, v{v16}")
    k(f"v_lshrrev_b32 v{t1}, 16, v{t0}")
    k(f"v_or_b32 v{t0}, v{t0}, v{t1}")
    vsm = t0
    k(f"v_mul_f32 v{tg+3}, {fh(1/64)}, v{tg}")
    k(f"v_mul_f32 v{tf}, v{tg}, v{tg+1}")
    k(f"v_mul_f32 v{tf}, {fh(1/8)}, v{tf}")
    for j in range(1, 8): k(f"v_add_f32 v{tf+j}, v{tf+j-1}, v{tg+3}")
    for j in range(8): k(f"v_cos_f32 v{FA+j}, v{tf+j}")
    for j in range(8): k(f"v_sin_f32 v{FA+8+j}, v{tf+j}")
    for z in range(4): k(f"v_cvt_pk_bf16_f32 v{C64+z}, v{FA+2*z}, v{FA+2*z+1}")
    for z in range(4): k(f"v_cvt_pk_bf16_f32 v{S64+z}, v{FA+8+2*z}, v{FA+8+2*z+1}")
    k(f"s_mov_b32 s23, 0x80008000")
    for z in range(4):
        k(f"v_xor_b32 v{C64+4+z}, v{vsm}, v{C64+z}")
        k(f"v_xor_b32 v{S64+4+z}, v{vsm}, v{S64+z}")
    for z in range(8): k(f"v_xor_b32 v{N64+z}, s23, v{S64+z}")
    k(f"v_mul_f32 v{tg+3}, {fh(1/32)}, v{tg+2}")
    k(f"v_mul_f32 v{tf}, v{tg+2}, v{tg+1}")
    k(f"v_mul_f32 v{tf}, {fh(1/8)}, v{tf}")
    for j in range(1, 4): k(f"v_add_f32 v{tf+j}, v{tf+j-1}, v{tg+3}")
    for j in range(4): k(f"v_cos_f32 v{FA+j}, v{tf+j}")
    for j in range(4): k(f"v_sin_f32 v{FA+4+j}, v{tf+j}")
    k("s_nop 0")
    for z in range(2): k(f"v_cvt_pk_bf16_f32 v{C32+z}, v{FA+2*z}, v{FA+2*z+1}")
    for z in range(2): k(f"v_cvt_pk_bf16_f32 v{S32+z}, v{FA+4+2*z}, v{FA+4+2*z+1}")
    for z in range(2):
        k(f"v_xor_b32 v{C32+2+z}, v{vsm}, v{C32+z}")
        k(f"v_xor_b32 v{S32+2+z}, v{vsm}, v{S32+z}")
    k(f"s_brev_b32 s24, 1")
    for z in range(4):
        k(f"v_xor_b32 v{C32+4+z}, s24, v{C32+z}")
        k(f"v_xor_b32 v{S32+4+z}, s24, v{S32+z}")
    for z in range(8): k(f"v_xor_b32 v{N32+z}, s23, v{S32+z}")
    k(f"v_mul_f32 v{tg+3}, {fh(1/2048)}, v{tg}")
    k(f"v_mul_f32 v{tf}, v{tg+3}, v{tg+1}")
    k(f"v_mul_f32 v{tf}, 4.0, v{tf}")
    for j in range(1, 4): k(f"v_add_f32 v{tf+j}, v{tf+j-1}, v{tg+3}")
    k(f"v_mul_f32 v{tg+4}, {fh(16.0)}, v{tg+3}")
    for j in range(4): k(f"v_add_f32 v{tf+4+j}, v{tf+j}, v{tg+4}")
    for j in range(8): k(f"v_cos_f32 v{T1c+j}, v{tf+j}")
    for j in range(8): k(f"v_sin_f32 v{T1s+j}, v{tf+j}")
    k(f"v_fma_f32 v{tg+5}, v{tg+1}, 4.0, v{tg}")
    k(f"v_sub_f32 v{tg+5}, v{tg+5}, v{tg+2}")
    k(f"v_mul_f32 v{tg+5}, {fh(1/2048)}, v{tg+5}")
    k(f"v_mul_f32 v{tg+3}, {fh(1/2048)}, v{tg+2}")
    k(f"v_mul_f32 v{tf}, v{tg+5}, v{tg+2}")
    for j in range(1, 4): k(f"v_add_f32 v{tf+j}, v{tf+j-1}, v{tg+3}")
    k(f"v_mul_f32 v{tg+4}, {fh(16.0)}, v{tg+5}")
    for j in range(4):
        k(f"v_add_f32 v{tf+4+j}, v{tf+j}, v{tg+4}")
        if j < 3: k(f"v_add_f32 v{tg+4}, {fh(16/2048)}, v{tg+4}")
    for j in range(8): k(f"v_cos_f32 v{T2c+j}, v{tf+j}")
    for j in range(8): k(f"v_sin_f32 v{T2s+j}, v{tf+j}")
    k(f"v_lshrrev_b32 v{t1}, 2, v{v16}")
    k(f"v_lshlrev_b32 v{t1}, 6, v{t1}")
    k(f"v_lshl_add_u32 v{t1}, v{vg}, 9, v{t1}")
    k(f"v_bfe_u32 v{t2}, v{v16}, 1, 1")
    k(f"v_lshlrev_b32 v{tf}, 1, v{vg}")
    k(f"v_and_b32 v{tf}, 2, v{tf}")
    k(f"v_xor_b32 v{t2}, v{t2}, v{tf}")
    k(f"v_lshl_add_u32 v{t1}, v{t2}, 4, v{t1}")
    k(f"v_and_b32 v{t2}, 1, v{v16}")
    k(f"v_lshl_add_u32 v{vA}, v{t2}, 3, v{t1}")
    k(f"v_xor_b32 v{vA+1}, 32, v{vA}")
    k(f"v_bfe_u32 v{t1}, v{v16}, 1, 1")
    k(f"v_lshrrev_b32 v{t2}, 3, v{v16}")
    k(f"v_lshl_or_b32 v{t1}, v{t2}, 1, v{t1}")
    k(f"v_lshrrev_b32 v{t2}, 1, v{vg}")
    k(f"s_lshl_b32 s22, s{sw}, 1")
    k(f"v_add_u32 v{t2}, s22, v{t2}")
    k(f"v_xor_b32 v{t1}, v{t1}, v{t2}")
    k(f"v_lshlrev_b32 v{t1}, 4, v{t1}")
    k(f"v_lshl_add_u32 v{t1}, v{v16}, 7, v{t1}")
    k(f"v_and_b32 v{t2}, 1, v{vg}")
    k(f"v_lshl_add_u32 v{t1}, v{t2}, 3, v{t1}")
    k(f"v_add_u32 v{vWr}, 8192, v{t1}")
    k(f"v_xor_b32 v{t1}, 64, v{t1}")
    k(f"v_add_u32 v{vWr+1}, {8192+2048}, v{t1}")
    k(f"v_lshrrev_b32 v{t2}, 2, v{v16}")
    k(f"v_bfe_u32 v{t1}, v{v16}, 1, 1")
    k(f"v_lshl_or_b32 v{t1}, v{t2}, 1, v{t1}")
    k(f"v_xor_b32 v{t1}, v{t1}, v{vg}")
    k(f"v_lshlrev_b32 v{t1}, 4, v{t1}")
    k(f"v_lshl_add_u32 v{t1}, v{t2}, 10, v{t1}")
    k(f"v_and_b32 v{t2}, 3, v{v16}")
    k(f"v_lshl_add_u32 v{t1}, v{t2}, 7, v{t1}")
    k(f"v_add_u32 v{vB}, 8192, v{t1}")
    k(f"v_xor_b32 v{vB+1}, 64, v{vB}")
    k(f"v_lshlrev_b32 v{t1}, 6, v{v16}")
    k(f"v_lshl_add_u32 v{vSt}, v{vg}, 4, v{t1}")
    k(f"s_lshl_b32 s22, s{sw}, 10")
    k(f"s_add_u32 s22, s22, s18")
    k(f"s_add_u32 s25, s22, {WS_UT}")
    for i in range(16): k(f"v_mov_b32 v{AC+i}, 0")
    for i in range(16): k(f"v_mov_b32 v{AD+i}, 0")
    k("s_waitcnt vmcnt(2)")
    k("s_barrier")
    def fa(p, mt, ks): return FA + 16*p + 8*mt + 4*ks
    for ks in range(2):
        for p in range(2):
            for mt in range(2):
                for z in range(2):
                    b = fa(p, mt, ks) + 2*z
                    k(f"ds_read_b64_tr_b16 v[{b}:{b+1}], v{vA+mt} offset:{p*4096 + ks*2048 + z*256}")
    def mf(d, a_, b_): k(f"v_mfma_f32_16x16x32_bf16 v[{d}:{d+3}], v[{a_}:{a_+3}], v[{b_}:{b_+3}], v[{d}:{d+3}]")
    def acc(base, t, c): return base + 8*t + 4*c
    for ks in range(2):
        k(f"s_waitcnt lgkmcnt({12 if ks == 0 else 4})")
        for mt in range(2):
            mf(acc(AC,mt,0), fa(0,mt,ks), C64+4*ks)
            mf(acc(AC,mt,1), fa(0,mt,ks), N64+4*ks)
        k(f"s_waitcnt lgkmcnt({8 if ks == 0 else 0})")
        for mt in range(2):
            mf(acc(AC,mt,0), fa(1,mt,ks), S64+4*ks)
            mf(acc(AC,mt,1), fa(1,mt,ks), C64+4*ks)
    k("s_nop 7")
    def cmul(base, c, s_, sign, outr, outi):
        for t in range(2):
            r, im = acc(base,t,0), acc(base,t,1)
            for z in range(2):
                rr, ii = r+2*z, im+2*z; cc, ss = c+4*t+2*z, s_+4*t+2*z
                a0 = tf + 4*z
                k(f"v_pk_mul_f32 v[{a0}:{a0+1}], v[{rr}:{rr+1}], v[{cc}:{cc+1}]")
                k(f"v_pk_mul_f32 v[{a0+2}:{a0+3}], v[{ii}:{ii+1}], v[{cc}:{cc+1}]")
            for z in range(2):
                rr, ii = r+2*z, im+2*z; cc, ss = c+4*t+2*z, s_+4*t+2*z
                a0 = tf + 4*z
                n1 = "" if sign > 0 else " neg_lo:[0,1,0] neg_hi:[0,1,0]"
                n2 = " neg_lo:[0,1,0] neg_hi:[0,1,0]" if sign > 0 else ""
                k(f"v_pk_fma_f32 v[{a0}:{a0+1}], v[{ii}:{ii+1}], v[{ss}:{ss+1}], v[{a0}:{a0+1}]{n1}")
                k(f"v_pk_fma_f32 v[{a0+2}:{a0+3}], v[{rr}:{rr+1}], v[{ss}:{ss+1}], v[{a0+2}:{a0+3}]{n2}")
            for z in range(2):
                a0 = tf + 4*z
                k(f"v_cvt_pk_bf16_f32 v{outr+2*t+z}, v{a0}, v{a0+1}")
                k(f"v_cvt_pk_bf16_f32 v{outi+2*t+z}, v{a0+2}, v{a0+3}")
    cmul(AC, T1c, T1s, +1, Br, Bi)
    k("s_nop 1")
    for t in range(2):
        mf(acc(AD,t,0), C32+4*t, Br); mf(acc(AD,t,1), C32+4*t, Bi)
    for t in range(2):
        mf(acc(AD,t,0), S32+4*t, Bi); mf(acc(AD,t,1), N32+4*t, Br)
    k("s_waitcnt vmcnt(0)")
    for j in range(8):
        k(f"v_lshlrev_b32 v{FA+j}, 16, v{W+j}")
        k(f"v_and_b32 v{FA+8+j}, 0xffff0000, v{W+j}")
    for i in range(16): k(f"v_mov_b32 v{AC+i}, 0")
    k("s_nop 1")
    cmul(AD, FA, FA+8, -1, Br, Bi)
    k("s_nop 1")
    for t in range(2):
        mf(acc(AC,t,0), Br, C32+4*t); mf(acc(AC,t,1), Bi, C32+4*t)
    for t in range(2):
        mf(acc(AC,t,0), Bi, N32+4*t); mf(acc(AC,t,1), Br, S32+4*t)
    for i in range(16): k(f"v_mov_b32 v{AD+i}, 0")
    k("s_nop 1")
    Or = FA; Oi = FA + 4
    cmul(AC, T2c, T2s, -1, Or, Oi)
    for t in range(2):
        k(f"ds_write_b64 v{vWr+t}, v[{Or+2*t}:{Or+2*t+1}]")
        k(f"ds_write_b64 v{vWr+t}, v[{Oi+2*t}:{Oi+2*t+1}] offset:4096")
    k("s_waitcnt lgkmcnt(0)")
    k("s_barrier")
    def fb(p, t, ks): return FA + 16*p + 8*t + 4*ks
    for ks in range(2):
        for p in range(2):
            for t in range(2):
                b = fb(p, t, ks)
                k(f"ds_read_b128 v[{b}:{b+3}], v{vB+ks} offset:{p*4096 + t*512}")
    for ks in range(2):
        k(f"s_waitcnt lgkmcnt({6 if ks == 0 else 2})")
        for t in range(2):
            mf(acc(AD,t,0), fb(0,t,ks), C64+4*ks)
            mf(acc(AD,t,1), fb(0,t,ks), S64+4*ks)
        k(f"s_waitcnt lgkmcnt({4 if ks == 0 else 0})")
        for t in range(2):
            mf(acc(AD,t,0), fb(1,t,ks), N64+4*ks)
            mf(acc(AD,t,1), fb(1,t,ks), C64+4*ks)
    k("s_nop 7")
    for c in range(2):
        o = Br if c == 0 else Bi
        for t in range(2):
            for z in range(2):
                k(f"v_cvt_pk_bf16_f32 v{o+2*t+z}, v{acc(AD,t,c)+2*z}, v{acc(AD,t,c)+2*z+1}")
        k(f"s_add_u32 s26, s25, {4096*c}")
        k(f"buffer_store_dwordx4 v[{o}:{o+3}], v{vSt}, s[8:11], s26 offen")
    k.lab(END)
    k("s_endpgm")
    return k
if __name__ == "__main__":
    from k1 import make_k1
    build([make_k1(), make_k2()], "k12.s")
```

```python
from common import *
def make_k3(label="k3_kernel"):
    XO = 81920
    k = Kern(label, grid=250, block=256, lds=81920+16384, vgpr=248)
    END = f"{label}_end"
    SIDE = f"{label}_side"
    k("s_cmp_ge_u32 s2, 160")
    k(f"s_cbranch_scc1 {SIDE}")
    k("s_load_dwordx2 s[4:5], s[0:1], 0")
    k("s_load_dwordx2 s[6:7], s[0:1], 72")
    A = Alloc(1)
    vl = A(); t0 = A(); t1 = A(); t2 = A()
    vdma = A(); vxd = A(4); vm = A(2); vB = A(4); vxr = A(); vst = A()
    vrev = A(); vdl = A(); vstep = A(); vc2 = A(2, 2); vtmp = A(8, 2)
    vacc = A(32, 4); vfb = A(24, 4); vG = A(160, 4)
    k.vgpr = A.n
    assert A.n <= 256, A.n
    sw, srow, scol = 16, 17, 18
    k(f"v_and_b32 v{vl}, 63, v0")
    k(f"v_lshrrev_b32 v{t0}, 6, v0")
    wg_rowcol5(k, srow, scol)
    k(f"v_readfirstlane_b32 s{sw}, v{t0}")
    k(f"v_lshrrev_b32 v{t0}, 4, v{vl}")
    k(f"v_lshlrev_b32 v{t1}, 2, v{t0}")
    k(f"v_xor_b32 v{t1}, v{t1}, v{vl}")
    k(f"v_and_b32 v{t1}, 15, v{t1}")
    k(f"v_lshrrev_b32 v{t2}, 3, v{t1}")
    k(f"v_and_b32 v{t1}, 7, v{t1}")
    k(f"v_lshlrev_b32 v{t1}, 4, v{t1}")
    k(f"v_lshl_add_u32 v{t1}, v{t2}, 12, v{t1}")
    k(f"v_lshl_add_u32 v{vdma}, v{t0}, 13, v{t1}")
    k(f"v_xor_b32 v{t1}, v{t0}, v{vl}")
    k(f"v_and_b32 v{t1}, 15, v{t1}")
    k(f"v_lshlrev_b32 v{t1}, 4, v{t1}")
    k(f"v_mul_u32_u24 v{t2}, 1280, v{t0}")
    for i in range(4):
        k(f"v_xor_b32 v{vxd+i}, {64*i}, v{t1}")
        k(f"v_add_u32 v{vxd+i}, v{vxd+i}, v{t2}")
    k(f"s_lshl_b32 s19, s{srow}, 7")
    k(f"s_lshl_b32 s20, s{sw}, 16")
    k(f"s_add_u32 s19, s19, s20")
    k(f"s_add_u32 s19, s19, {WS_UT}")
    k(f"s_lshl_b32 s20, s{sw}, 11")
    k("s_waitcnt lgkmcnt(0)")
    k.srd(8, 4, 2621440)
    k.srd(12, 6, WS_END)
    for c in range(10):
        for i in range(2):
            k(f"s_add_u32 m0, s20, {c*8192 + i*1024}")
            k(f"s_add_u32 s22, s19, {c*8*32768 + i*32768}")
            k(f"buffer_load_dwordx4 v{vdma}, s[12:15], s22 offen lds")
    k(f"s_lshl_b32 s22, s{srow}, 2")
    k(f"s_add_u32 s22, s22, s{sw}")
    k(f"s_mul_i32 s21, s22, {16*1280}")
    k(f"s_lshl_b32 s23, s{scol}, 8")
    k(f"s_add_u32 s21, s21, s23")
    k(f"s_lshl_b32 s23, s{sw}, 12")
    for i in range(4):
        k(f"s_add_u32 m0, s23, {XO + i*1024}")
        k(f"s_add_u32 s22, s21, {4*i*1280}")
        k(f"buffer_load_dwordx4 v{vxd+i}, s[8:11], s22 offen lds")
    k(f"v_and_b32 v{t1}, 31, v{vl}")
    k(f"v_lshlrev_b32 v{t1}, 2, v{t1}")
    k(f"s_lshl_b32 s22, s{srow}, 8")
    k(f"s_add_u32 s22, s22, {WS_MS}")
    k(f"buffer_load_dword v{vm}, v{t1}, s[12:15], s22 offen")
    k(f"buffer_load_dword v{vm+1}, v{t1}, s[12:15], s22 offen offset:128")
    k(f"v_and_b32 v{t0}, 19, v{vl}")
    k(f"v_bfe_u32 v{t1}, v{vl}, 2, 1")
    k(f"v_lshl_or_b32 v{t0}, v{t1}, 3, v{t0}")
    k(f"v_bfe_u32 v{t1}, v{vl}, 3, 1")
    k(f"v_lshl_or_b32 v{t0}, v{t1}, 2, v{t0}")
    k(f"s_lshl_b32 s22, s{scol}, 2")
    k(f"s_add_u32 s22, s22, s{sw}")
    k(f"s_lshl_b32 s24, s22, 5")
    k(f"v_add_u32 v{t0}, s24, v{t0}")
    k(f"v_cvt_f32_u32 v{vtmp}, v{t0}")
    k(f"v_lshrrev_b32 v{t1}, 5, v{vl}")
    k(f"v_cvt_f32_u32 v{vtmp+1}, v{t1}")
    k(f"v_mul_f32 v{vdl}, {fh(1/640)}, v{vtmp}")
    k(f"v_mul_f32 v{vtmp+1}, {fh(0.25)}, v{vtmp+1}")
    k(f"v_add_f32 v{vrev}, v{vtmp+1}, v{vdl}")
    k(f"v_mul_f32 v{vstep}, {fh(1/16)}, v{vtmp}")
    k(f"v_fract_f32 v{vstep}, v{vstep}")
    k(f"v_add_f32 v{vtmp}, v{vdl}, v{vdl}")
    k(f"v_cos_f32 v{vc2}, v{vtmp}")
    k("s_nop 0")
    k(f"v_add_f32 v{vc2}, v{vc2}, v{vc2}")
    for b in range(8):
        cos_block(k, vG + 20*b, 20, vrev, vdl, vc2, vtmp, halve_last=(b == 7))
        if b < 7:
            k(f"v_add_f32 v{vrev}, v{vrev}, v{vstep}")
            k(f"v_fract_f32 v{vrev}, v{vrev}")
    k(f"v_bfe_u32 v{t0}, v{vl}, 2, 2")
    k(f"v_lshrrev_b32 v{t1}, 5, v{vl}")
    k(f"v_lshlrev_b32 v{t1}, 3, v{t1}")
    k(f"v_bfe_u32 v{t2}, v{vl}, 4, 1")
    k(f"v_lshl_or_b32 v{t1}, v{t2}, 1, v{t1}")
    k(f"v_bfe_u32 v{t2}, v{vl}, 1, 1")
    k(f"v_or_b32 v{t1}, v{t1}, v{t2}")
    k(f"v_lshlrev_b32 v{t2}, 2, v{t0}")
    k(f"v_xor_b32 v{t1}, v{t1}, v{t2}")
    k(f"v_lshlrev_b32 v{t1}, 4, v{t1}")
    k(f"v_lshl_add_u32 v{t1}, v{t0}, 8, v{t1}")
    k(f"v_and_b32 v{t2}, 1, v{vl}")
    k(f"v_lshl_add_u32 v{vB}, v{t2}, 3, v{t1}")
    k(f"v_xor_b32 v{vB+1}, 64, v{vB}")
    k(f"v_add_u32 v{vB+2}, 40960, v{vB}")
    k(f"v_add_u32 v{vB+3}, 40960, v{vB+1}")
    k(f"v_lshrrev_b32 v{t1}, 5, v{vl}")
    k(f"s_lshl_b32 s24, s{sw}, 2")
    k(f"v_add_u32 v{t1}, s24, v{t1}")
    k(f"v_xor_b32 v{t1}, v{t1}, v{vl}")
    k(f"v_and_b32 v{t1}, 15, v{t1}")
    k(f"v_lshlrev_b32 v{t1}, 4, v{t1}")
    k(f"v_and_b32 v{t2}, 31, v{vl}")
    k(f"v_lshl_add_u32 v{t1}, v{t2}, 8, v{t1}")
    k(f"v_add_u32 v{vxr}, {XO}, v{t1}")
    k(f"v_lshlrev_b32 v{vst}, 4, v{vl}")
    k(f"s_mul_i32 s24, s{srow}, {80*1024}")
    k(f"s_lshl_b32 s25, s22, 11")
    k(f"s_add_u32 s24, s24, s25")
    k(f"s_add_u32 s24, s24, {WS_HC}")
    for i in range(32): k(f"v_mov_b32 v{vacc+i}, 0")
    def rd(kk):
        sl = kk % 3
        hi = 2 if kk >= 20 else 0
        off = (kk % 20) * 2048
        for nt in range(2):
            for z in range(2):
                b = vfb + sl*8 + nt*4 + 2*z
                k(f"ds_read_b64_tr_b16 v[{b}:{b+1}], v{vB+hi+nt} offset:{off + z*1024}")
    def sync(p):
        k(f"s_waitcnt vmcnt({16-4*p+6})")
        k("s_barrier")
    sync(0); rd(0); rd(1)
    for kk in range(40):
        nk = kk + 2
        if nk < 40:
            if nk % 8 == 0: sync(nk // 8)
            rd(nk)
            k("s_waitcnt lgkmcnt(8)")
        elif nk == 40: k("s_waitcnt lgkmcnt(4)")
        else: k("s_waitcnt lgkmcnt(0)")
        sl = kk % 3
        for nt in range(2):
            fb = vfb + sl*8 + nt*4
            k(f"v_mfma_f32_32x32x16_bf16 v[{vacc+16*nt}:{vacc+16*nt+15}], v[{vG+4*kk}:{vG+4*kk+3}], v[{fb}:{fb+3}], v[{vacc+16*nt}:{vacc+16*nt+15}]")
    k("s_waitcnt vmcnt(0)")
    k("s_barrier")
    vx = vG; vu = vG + 16; vo = vG + 48; vxr2 = vG + 64; vsc = vG + 66; vmm = vG + 68
    k(f"v_xor_b32 v{vxr2}, 32, v{vxr}")
    for nt in range(2):
        k(f"ds_read_b128 v[{vx+8*nt}:{vx+8*nt+3}], v{vxr} offset:{8192*nt}")
        k(f"ds_read_b128 v[{vx+8*nt+4}:{vx+8*nt+7}], v{vxr2} offset:{8192*nt}")
    k(f"v_mov_b32 v{vsc}, {fh(2/(2048*640))}")
    for nt in range(2):
        k(f"v_xor_b32 v{vmm+2*nt}, 0x80000000, v{vm+nt}")
    k("s_waitcnt lgkmcnt(0)")
    for nt in range(2):
        for q in range(2):
            xb = vx + 8*nt + 4*q; ub = vu + 8*(2*nt+q); ab = vacc + 16*nt + 8*q; ob = vo + 4*(2*nt+q)
            for z in range(4):
                k(f"v_lshlrev_b32 v{ub+2*z}, 16, v{xb+z}")
                k(f"v_and_b32 v{ub+2*z+1}, 0xffff0000, v{xb+z}")
            for z in range(4):
                k(f"v_pk_add_f32 v[{ub+2*z}:{ub+2*z+1}], v[{ub+2*z}:{ub+2*z+1}], v[{vmm+2*nt}:{vmm+2*nt+1}] op_sel_hi:[1,0]")
            for z in range(4):
                k(f"v_pk_fma_f32 v[{ub+2*z}:{ub+2*z+1}], v[{ab+2*z}:{ab+2*z+1}], v[{vsc}:{vsc+1}], v[{ub+2*z}:{ub+2*z+1}] op_sel_hi:[1,0,1]")
            for z in range(4):
                k(f"v_cvt_pk_bf16_f32 v{ob+z}, v{ub+2*z}, v{ub+2*z+1}")
            k(f"s_add_u32 s25, s24, {(nt*40 + q)*1024}")
            k(f"buffer_store_dwordx4 v[{ob}:{ob+3}], v{vst}, s[12:15], s25 offen")
    k("s_endpgm")
    k.lab(SIDE)
    prep_job(k, label, 160, END)
    k.lab(END)
    k("s_endpgm")
    return k
if __name__ == "__main__":
    from k1 import make_k1
    from k2 import make_k2
    build([make_k1(), make_k2(), make_k3()], "k123.s")
```

```python
from common import *
def make_k4(label="k4_kernel", NS=7):
    ST = 20480
    k = Kern(label, grid=256, block=256, lds=NS*ST, vgpr=200)
    END = f"{label}_end"
    k("s_cmp_ge_u32 s2, 256")
    k(f"s_cbranch_scc1 {END}")
    k("s_load_dwordx2 s[6:7], s[0:1], 72")
    A = Alloc(1)
    vl = A(); t0 = A(); t1 = A()
    vdma = A(); vA = A(3); vB = A(3); vst = A()
    vsq = A(2, 2); vr = A(8, 2); vt = A(16, 2)
    vacc = A(96, 4); fA = A(24, 4); fB = A(16, 4)
    k.vgpr = A.n
    sw, swm, swn, srow, sf = 16, 17, 18, 19, 20
    k(f"v_and_b32 v{vl}, 63, v0")
    k(f"v_lshrrev_b32 v{t0}, 6, v0")
    k("s_and_b32 s22, s2, 7")
    k("s_lshr_b32 s23, s2, 3")
    k(f"v_readfirstlane_b32 s{sw}, v{t0}")
    k("s_and_b32 s24, s22, 3")
    k("s_lshl_b32 s24, s24, 2")
    k("s_and_b32 s25, s23, 3")
    k(f"s_add_u32 s{sf}, s24, s25")
    k("s_lshr_b32 s24, s22, 2")
    k("s_lshl_b32 s24, s24, 3")
    k("s_lshr_b32 s25, s23, 2")
    k(f"s_add_u32 s{srow}, s24, s25")
    k(f"s_lshr_b32 s{swm}, s{sw}, 1")
    k(f"s_and_b32 s{swn}, s{sw}, 1")
    k(f"v_lshlrev_b32 v{vdma}, 4, v{vl}")
    sA, sB, mA, mB = 26, 27, 28, 29
    k(f"s_mul_i32 s{sA}, s{sf}, {40*6144}")
    k(f"s_mul_i32 s22, s{sw}, 3072")
    k(f"s_add_u32 s{sA}, s{sA}, s22")
    k(f"s_add_u32 s{sA}, s{sA}, {WS_WA}")
    k(f"s_lshl_b32 s23, s{srow}, 2")
    k(f"s_add_u32 s23, s23, s{sw}")
    k(f"s_mul_i32 s{sB}, s23, 40960")
    k(f"s_add_u32 s{sB}, s{sB}, {WS_HC}")
    k(f"s_mov_b32 s{mA}, s22")
    k(f"s_lshl_b32 s{mB}, s{sw}, 11")
    k(f"s_add_u32 s{mB}, s{mB}, 12288")
    k("s_waitcnt lgkmcnt(0)")
    k.srd(8, 6, WS_END)
    def dma(c):
        sl = c % NS
        k(f"s_add_u32 m0, s{mA}, {sl*ST}")
        k(f"s_add_u32 s22, s{sA}, {c*12288}")
        for i in range(3):
            k(f"buffer_load_dwordx4 v{vdma}, s[8:11], s22 offen offset:{1024*i} lds")
        k(f"s_add_u32 m0, s{mB}, {sl*ST}")
        k(f"s_add_u32 s22, s{sB}, {c*2048}")
        for i in range(2):
            k(f"buffer_load_dwordx4 v{vdma}, s[8:11], s22 offen offset:{1024*i} lds")
    for c in range(NS-1): dma(c)
    k(f"s_mul_i32 s22, s{swm}, 3072")
    k(f"v_add_u32 v{vA}, s22, v{vdma}")
    k(f"s_lshl_b32 s22, s{swn}, 12")
    k(f"s_add_u32 s22, s22, 12288")
    k(f"v_add_u32 v{vB}, s22, v{vdma}")
    for i in range(1, 3):
        k(f"v_add_u32 v{vA+i}, {i*3*ST}, v{vA}")
        k(f"v_add_u32 v{vB+i}, {i*3*ST}, v{vB}")
    k(f"v_bfe_u32 v{t0}, v{vl}, 4, 1")
    k(f"v_mul_u32_u24 v{t0}, 49152, v{t0}")
    k(f"v_lshrrev_b32 v{t1}, 5, v{vl}")
    k(f"v_lshl_add_u32 v{t0}, v{t1}, 8, v{t0}")
    k(f"v_and_b32 v{t1}, 15, v{vl}")
    k(f"v_lshl_add_u32 v{vst}, v{t1}, 4, v{t0}")
    for i in range(96): k(f"v_mov_b32 v{vacc+i}, 0")
    k(f"v_mov_b32 v{vsq}, 0\nv_mov_b32 v{vsq+1}, 0")
    def rd(kk):
        c, k2 = kk // 2, kk % 2
        sl = c % NS; st, so = sl // 3, (sl % 3) * ST
        b = kk & 1
        for i in range(3):
            k(f"ds_read_b128 v[{fA+12*b+4*i}:{fA+12*b+4*i+3}], v{vA+st} offset:{so + k2*6144 + i*1024}")
        for nt in range(2):
            k(f"ds_read_b128 v[{fB+8*b+4*nt}:{fB+8*b+4*nt+3}], v{vB+st} offset:{so + nt*2048 + k2*1024}")
    def wait_chunk(c, issued_to):
        k(f"s_waitcnt vmcnt({5*(issued_to - c)})")
        k("s_barrier")
    issued = NS - 2
    wait_chunk(0, issued)
    rd(0)
    for kk in range(40):
        c = kk // 2
        if kk + 1 < 40:
            if kk & 1:
                wait_chunk(c + 1, issued)
                if issued < 19:
                    issued += 1; dma(issued)
            rd(kk + 1)
            k("s_waitcnt lgkmcnt(5)")
        else:
            k("s_waitcnt lgkmcnt(0)")
        b = kk & 1
        dots = []
        for q in range(4):
            for nt in range(2):
                r = fB + 8*b + 4*nt + q
                dots.append(f"v_dot2c_f32_bf16 v{vsq+nt}, v{r}, v{r}")
        n = 0
        for i in range(3):
            for nt in range(2):
                d = vacc + 16*(2*i + nt)
                k(f"v_mfma_f32_32x32x16_bf16 v[{d}:{d+15}], v[{fA+12*b+4*i}:{fA+12*b+4*i+3}], v[{fB+8*b+4*nt}:{fB+8*b+4*nt+3}], v[{d}:{d+15}]")
                if n < 4:
                    k(dots[2*n]); k(dots[2*n+1])
                n += 1
    for nt in range(2):
        k(f"v_mov_b32 v{vt+nt}, v{vsq+nt}")
    k("s_nop 1")
    for nt in range(2):
        k(f"v_permlane32_swap_b32 v{vsq+nt}, v{vt+nt}")
    k("s_nop 1")
    for nt in range(2):
        k(f"v_add_f32 v{vsq+nt}, v{vsq+nt}, v{vt+nt}")
        k(f"v_mul_f32 v{vsq+nt}, {fh(1/640)}, v{vsq+nt}")
        k(f"v_add_f32 v{vsq+nt}, {fh(1e-5)}, v{vsq+nt}")
        k(f"v_rsq_f32 v{vsq+nt}, v{vsq+nt}")
    k("s_nop 0")
    for nt in range(2):
        k(f"v_mul_f32 v{vr+4*nt}, {fh(-1.4426950408889634)}, v{vsq+nt}")
        k(f"v_mul_f32 v{vr+4*nt+2}, v{vsq+nt}, v{vsq+nt}")
    k(f"s_lshl_b32 s23, s{srow}, 2")
    k(f"s_lshl_b32 s24, s{swn}, 1")
    k(f"s_add_u32 s23, s23, s24")
    k(f"s_mul_i32 s23, s23, {96*1024}")
    k(f"s_add_u32 s23, s23, {WS_HF}")
    k(f"s_mul_i32 s24, s{sf}, 6")
    k(f"s_mul_i32 s25, s{swm}, 3")
    k(f"s_add_u32 s24, s24, s25")
    k(f"s_lshl_b32 s24, s24, 9")
    k(f"s_add_u32 s23, s23, s24")
    k("s_nop 3")
    for i in range(3):
        for nt in range(2):
            d = vacc + 16*(2*i + nt); rl = vr + 4*nt; r2 = rl + 2
            e = vt if nt == 0 else vt + 8
            for z in range(4):
                k(f"v_pk_mul_f32 v[{e+2*z}:{e+2*z+1}], v[{d+2*z}:{d+2*z+1}], v[{rl}:{rl+1}] op_sel_hi:[1,0]")
            for z in range(8): k(f"v_exp_f32 v{e+z}, v{e+z}")
            for z in range(4):
                k(f"v_pk_mul_f32 v[{d+2*z}:{d+2*z+1}], v[{d+2*z}:{d+2*z+1}], v[{d+8+2*z}:{d+8+2*z+1}]")
            for z in range(4):
                k(f"v_pk_add_f32 v[{e+2*z}:{e+2*z+1}], v[{e+2*z}:{e+2*z+1}], 1.0 op_sel_hi:[1,0]")
            for z in range(8): k(f"v_rcp_f32 v{e+z}, v{e+z}")
            for z in range(4):
                k(f"v_pk_mul_f32 v[{d+2*z}:{d+2*z+1}], v[{d+2*z}:{d+2*z+1}], v[{r2}:{r2+1}] op_sel_hi:[1,0]")
            for z in range(4):
                k(f"v_pk_mul_f32 v[{d+2*z}:{d+2*z+1}], v[{d+2*z}:{d+2*z+1}], v[{e+2*z}:{e+2*z+1}]")
            for z in range(4):
                k(f"v_cvt_pk_bf16_f32 v{d+8+z}, v{d+2*z}, v{d+2*z+1}")
            k(f"s_add_u32 s25, s23, {nt*96*1024 + i*512}")
            k(f"buffer_store_dwordx4 v[{d+8}:{d+11}], v{vst}, s[8:11], s25 offen")
    k.lab(END)
    k("s_endpgm")
    return k
```

```python
from common import *
def make_k5(label="k5_kernel", NB=4):
    k = Kern(label, grid=256, block=256, lds=61440, vgpr=240)
    END = f"{label}_end"
    k("s_cmp_ge_u32 s2, 256")
    k(f"s_cbranch_scc1 {END}")
    k("s_load_dwordx2 s[6:7], s[0:1], 72")
    k("s_load_dwordx2 s[4:5], s[0:1], 56")
    A = Alloc(1)
    vl = A(); t0 = A(); t1 = A(); t2 = A()
    vld = A(); vw = A(); vrd = A(); vhc = A(); vo = A(); vm = A()
    vh = A(10, 2)
    vacc = A(80, 4); fr = A(36*NB, 4)
    k.vgpr = A.n
    assert A.n <= 256
    sw, ssb, sdb = 16, 17, 18
    k(f"v_and_b32 v{vl}, 63, v0")
    k(f"v_lshrrev_b32 v{t0}, 6, v0")
    k("s_and_b32 s22, s2, 7")
    k("s_lshr_b32 s23, s2, 3")
    k(f"v_readfirstlane_b32 s{sw}, v{t0}")
    k("s_lshl_b32 s22, s22, 2")
    k("s_lshr_b32 s24, s23, 3")
    k(f"s_add_u32 s{ssb}, s22, s24")
    k(f"s_and_b32 s{sdb}, s23, 7")
    k(f"v_lshlrev_b32 v{vld}, 4, v{vl}")
    sA, sB = 26, 27
    k(f"s_mul_i32 s{sA}, s{sw}, 40")
    k(f"s_mul_i32 s22, s{sdb}, 5")
    k(f"s_add_u32 s{sA}, s{sA}, s22")
    k(f"s_lshl_b32 s{sA}, s{sA}, 10")
    k(f"s_add_u32 s{sA}, s{sA}, {WS_WB}")
    k(f"s_mul_i32 s{sB}, s{ssb}, {4*48}")
    k(f"s_add_u32 s{sB}, s{sB}, s{sw}")
    k(f"s_lshl_b32 s{sB}, s{sB}, 10")
    k(f"s_add_u32 s{sB}, s{sB}, {WS_HF}")
    k("s_waitcnt lgkmcnt(0)")
    k.srd(8, 6, WS_END)
    k.srd(12, 4, 2621440)
    def ld(i):
        b = fr + 36*(i % NB)
        k(f"s_add_u32 s22, s{sA}, {i*4*40*1024}")
        for mt in range(4):
            k(f"buffer_load_dwordx4 v[{b+4*mt}:{b+4*mt+3}], v{vld}, s[8:11], s22 offen offset:{1024*mt}")
        k(f"s_add_u32 s22, s22, 4096")
        k(f"buffer_load_dwordx4 v[{b+16}:{b+19}], v{vld}, s[8:11], s22 offen")
        for nt in range(4):
            k(f"s_add_u32 s22, s{sB}, {i*4*1024 + nt*48*1024}")
            k(f"buffer_load_dwordx4 v[{b+20+4*nt}:{b+23+4*nt}], v{vld}, s[8:11], s22 offen")
    for i in range(NB-1): ld(i)
    k(f"v_lshrrev_b32 v{t0}, 4, v{vl}")
    k(f"v_and_b32 v{t1}, 15, v{vl}")
    k(f"v_lshrrev_b32 v{t2}, 1, v{t0}")
    k(f"v_lshlrev_b32 v{t2}, 9, v{t2}")
    k(f"v_lshl_add_u32 v{t2}, v{t1}, 4, v{t2}")
    k(f"v_and_b32 v{vhc}, 1, v{t0}")
    k(f"v_lshl_add_u32 v{vhc}, v{vhc}, 3, v{t2}")
    k(f"s_lshl_b32 s22, s{ssb}, 1")
    k(f"s_lshr_b32 s23, s{sw}, 1")
    k(f"s_add_u32 s22, s22, s23")
    k(f"s_mul_i32 s22, s22, 40")
    k(f"s_mul_i32 s23, s{sdb}, 5")
    k(f"s_add_u32 s22, s22, s23")
    k(f"s_lshl_b32 s22, s22, 10")
    k(f"s_and_b32 s23, s{sw}, 1")
    k(f"s_lshl_b32 s23, s23, 8")
    k(f"s_add_u32 s22, s22, s23")
    k(f"s_add_u32 s28, s22, {WS_HC}")
    k(f"v_lshlrev_b32 v{vm}, 2, v{t1}")
    k(f"s_lshl_b32 s22, s{ssb}, 2")
    k(f"s_add_u32 s22, s22, s{sw}")
    k(f"s_lshl_b32 s23, s22, 6")
    k(f"s_add_u32 s29, s23, {WS_MS}")
    k(f"v_mul_u32_u24 v{vo}, 1280, v{t1}")
    k(f"v_lshl_add_u32 v{vo}, v{t0}, 3, v{vo}")
    k(f"s_mul_i32 s30, s22, {16*1280}")
    k(f"s_mul_i32 s23, s{sdb}, 160")
    k(f"s_add_u32 s30, s30, s23")
    for i in range(80): k(f"v_mov_b32 v{vacc+i}, 0")
    def acc(mt, nt): return vacc + 4*(5*nt + mt)
    for i in range(12):
        if i + NB - 1 < 12:
            ld(i + NB - 1)
            k(f"s_waitcnt vmcnt({9*(NB-1)})")
        else:
            k(f"s_waitcnt vmcnt({9*(11-i)})")
        b = fr + 36*(i % NB)
        for nt in range(4):
            for mt in range(5):
                d = acc(mt, nt)
                k(f"v_mfma_f32_16x16x32_bf16 v[{d}:{d+3}], v[{b+4*mt}:{b+4*mt+3}], v[{b+20+4*nt}:{b+23+4*nt}], v[{d}:{d+3}]")
    for mt in range(5):
        k(f"s_add_u32 s22, s28, {mt*1024}")
        k(f"buffer_load_dwordx2 v[{vh+2*mt}:{vh+2*mt+1}], v{vhc}, s[8:11], s22 offen")
    k(f"buffer_load_dword v{vm}, v{vm}, s[8:11], s29 offen")
    k("s_nop 4")
    fin = k.newlab("fin")
    labs = [k.newlab("w") for _ in range(4)]
    for w in range(1, 4):
        k(f"s_cmp_eq_u32 s{sw}, {w}")
        k(f"s_cbranch_scc1 {labs[w]}")
    res = fr
    for w in range(4):
        k.lab(labs[w])
        for nt in range(4):
            if nt == w: continue
            slot = (w - nt - 1) & 3
            for mt in range(5):
                d = acc(mt, nt)
                k(f"ds_write_b128 v{vld}, v[{d}:{d+3}] offset:{(nt*3 + slot)*5120 + mt*1024}")
        for mt in range(5):
            d = acc(mt, w)
            for q in range(4): k(f"v_mov_b32 v{res+4*mt+q}, v{d+q}")
        k(f"v_add_u32 v{vw}, {w*3*5120}, v{vld}")
        if w < 3: k(f"s_branch {fin}")
    k.lab(fin)
    k("s_waitcnt lgkmcnt(0)")
    k("s_barrier")
    tb = fr + 20
    for sl in range(3):
        for mt in range(5):
            k(f"ds_read_b128 v[{tb+20*sl+4*mt}:{tb+20*sl+4*mt+3}], v{vw} offset:{sl*5120 + mt*1024}")
    for sl in range(3):
        k(f"s_waitcnt lgkmcnt({10-5*sl})")
        for z in range(10):
            k(f"v_pk_add_f32 v[{res+2*z}:{res+2*z+1}], v[{res+2*z}:{res+2*z+1}], v[{tb+20*sl+2*z}:{tb+20*sl+2*z+1}]")
    k("s_waitcnt vmcnt(0)")
    u = tb
    for mt in range(5):
        for z in range(2):
            k(f"v_lshlrev_b32 v{u+4*mt+2*z}, 16, v{vh+2*mt+z}")
            k(f"v_and_b32 v{u+4*mt+2*z+1}, 0xffff0000, v{vh+2*mt+z}")
    k(f"v_mov_b32 v{t0}, v{vm}")
    mm = A(2, 2); k.vgpr = max(k.vgpr, A.n)
    k(f"v_mov_b32 v{mm}, v{vm}")
    for z in range(10):
        k(f"v_pk_add_f32 v[{u+2*z}:{u+2*z+1}], v[{u+2*z}:{u+2*z+1}], v[{mm}:{mm+1}] op_sel_hi:[1,0]")
    for z in range(10):
        k(f"v_pk_add_f32 v[{res+2*z}:{res+2*z+1}], v[{res+2*z}:{res+2*z+1}], v[{u+2*z}:{u+2*z+1}]")
    for mt in range(5):
        for z in range(2):
            k(f"v_cvt_pk_bf16_f32 v{u+2*mt+z}, v{res+4*mt+2*z}, v{res+4*mt+2*z+1}")
    for mt in range(5):
        k(f"buffer_store_dwordx2 v[{u+2*mt}:{u+2*mt+1}], v{vo}, s[12:15], s30 offen offset:{32*mt}")
    k.lab(END)
    k("s_endpgm")
    return k
```

```python
import sys
from k1 import make_k1
from k2 import make_k2
from k3 import make_k3
from k4 import make_k4
from k5 import make_k5
from gl import *
out = sys.argv[1] if len(sys.argv) > 1 else "all.s"
build([make_k1(), make_k2(), make_k3(), make_k4(), make_k5()], out)
```

```python
from gl import *
WS_PT = 0x000000
WS_WT = 0x280000
WS_UT = 0x500000
WS_HC = 0x780000
WS_HF = 0xA00000
WS_MS = 0x1000000
WS_WA = 0x1100000
WS_WB = 0x1500000
WS_SQ = 0x1080000
WS_END = 0x1700000
class Cap:
    def __init__(self): self.L = []
    def __call__(self, t):
        for ln in t.strip('\n').split('\n'): self.L.append(ln.strip())
class Alloc:
    def __init__(self, start=0): self.n = start
    def __call__(self, cnt=1, align=1):
        self.n = (self.n + align - 1) // align * align
        r = self.n; self.n += cnt
        return r
def gen_cos_seq(k, dst0, ndw, T, c2, rev0_expr_regs, step, seed_every):
    pass
def cos_block(k, dst0, ndw, vrev, vdl, c2, t, halve_last=False, nopk=False):
    P = [t, t+2, t+4]; sc = t+6
    k(f"v_add_f32 v{sc}, v{vrev}, v{vdl}")
    k(f"v_cos_f32 v{P[0]}, v{vrev}")
    k(f"v_cos_f32 v{P[0]+1}, v{sc}")
    k(f"v_add_f32 v{sc+1}, v{sc}, v{vdl}")
    k(f"v_add_f32 v{sc}, v{sc+1}, v{vdl}")
    k(f"v_cos_f32 v{P[1]}, v{sc+1}")
    k(f"v_cos_f32 v{P[1]+1}, v{sc}")
    k(f"v_cvt_pk_bf16_f32 v{dst0}, v{P[0]}, v{P[0]+1}")
    k(f"s_nop 0")
    k(f"v_cvt_pk_bf16_f32 v{dst0+1}, v{P[1]}, v{P[1]+1}")
    a_, b_, c_ = 0, 1, 2
    for i in range(2, ndw):
        if nopk:
            for z in range(2): k(f"v_fma_f32 v{P[c_]+z}, v{c2}, v{P[b_]+z}, -v{P[a_]+z}")
        else:
            k(f"v_pk_fma_f32 v[{P[c_]}:{P[c_]+1}], v[{c2}:{c2+1}], v[{P[b_]}:{P[b_]+1}], v[{P[a_]}:{P[a_]+1}] op_sel_hi:[0,1,1] neg_lo:[0,0,1] neg_hi:[0,0,1]")
        if halve_last and i == ndw-1:
            k(f"v_mul_f32 v{P[c_]+1}, 0.5, v{P[c_]+1}")
        k(f"v_cvt_pk_bf16_f32 v{dst0+i}, v{P[c_]}, v{P[c_]+1}")
        a_, b_, c_ = b_, c_, a_

def wg_rowcol5(k, srow, scol, sid=2):
    k(f"s_and_b32 s22, s{sid}, 7")
    k(f"s_lshr_b32 s23, s{sid}, 3")
    k(f"s_mul_i32 s24, s23, 52")
    k(f"s_lshr_b32 s24, s24, 8")
    k(f"s_mul_i32 s25, s24, 5")
    k(f"s_sub_u32 s{scol}, s23, s25")
    k(f"s_lshl_b32 s24, s24, 3")
    k(f"s_add_u32 s{srow}, s24, s22")

def prep_job(k, label, nbase, END, NW=4):
    W2 = f"{label}_w2"
    k("s_load_dwordx2 s[32:33], s[0:1], 32")
    k("s_load_dwordx2 s[34:35], s[0:1], 40")
    k("s_load_dwordx2 s[36:37], s[0:1], 48")
    k("s_load_dwordx2 s[38:39], s[0:1], 72")
    k("v_and_b32 v1, 63, v0")
    k("v_lshrrev_b32 v2, 6, v0")
    k(f"s_sub_u32 s16, s2, {nbase}")
    k("v_readfirstlane_b32 s17, v2")
    k("s_cmp_ge_u32 s16, 90")
    k(f"s_cbranch_scc1 {END}")
    NI = 16 // NW
    LG = {4: 2, 8: 3}[NW]; LI = {4: 2, 2: 1}[NI]
    k(f"s_lshl_b32 s18, s16, {LG}")
    k("s_add_u32 s18, s18, s17")
    k(f"s_lshl_b32 s19, s17, {12+LI}")
    k("v_bfe_u32 v3, v1, 2, 2")
    k("v_and_b32 v4, 3, v1")
    k("v_lshrrev_b32 v5, 4, v1")
    k("v_lshlrev_b32 v10, 4, v1")
    k("s_cmp_ge_u32 s16, 60")
    k(f"s_cbranch_scc1 {W2}")
    k("s_mul_i32 s20, s18, 2731")
    k("s_lshr_b32 s20, s20, 16")
    k("s_mul_i32 s21, s20, 24")
    k("s_sub_u32 s21, s18, s21")
    k("v_lshrrev_b32 v6, 3, v1")
    k("v_mul_u32_u24 v6, 3072, v6")
    k("v_and_b32 v7, 7, v1")
    k("v_lshl_add_u32 v6, v7, 4, v6")
    k("s_mul_i32 s22, s20, %d" % (16*NI*3072))
    k("s_lshl_b32 s23, s21, 7")
    k("s_add_u32 s22, s22, s23")
    k("s_waitcnt lgkmcnt(0)")
    k.srd(8, 32, 1966080); k.srd(12, 34, 1966080); k.srd(40, 38, WS_END)
    for i in range(NI):
        for mtx in range(2):
            for hh in range(2):
                k(f"s_add_u32 m0, s19, {i*4096 + mtx*2048 + hh*1024}")
                k(f"s_add_u32 s24, s22, {(16*i + 8*hh)*3072}")
                k(f"buffer_load_dwordx4 v6, s[{8+4*mtx}:{11+4*mtx}], s24 offen lds")
    k.stamp(0)
    k("v_and_b32 v7, 1, v5")
    k("v_lshlrev_b32 v7, 11, v7")
    k("v_lshrrev_b32 v8, 1, v5")
    k("v_lshl_add_u32 v7, v8, 10, v7")
    k("v_lshl_add_u32 v7, v3, 7, v7")
    k("v_and_b32 v8, 1, v4")
    k("v_lshlrev_b32 v8, 1, v8")
    k("v_lshrrev_b32 v9, 1, v4")
    k("v_or_b32 v8, v8, v9")
    k("v_lshl_add_u32 v7, v8, 3, v7")
    k("v_add_u32 v7, s19, v7")
    for i in range(NI):
        if i == 0:
            k("s_waitcnt vmcnt(0)"); k.stamp(1)
        for mt in range(4):
            b = 12 + 4*mt + 16*(i & 1)
            for z in range(2):
                k(f"ds_read_b64_tr_b16 v[{b+2*z}:{b+2*z+1}], v7 offset:{i*4096 + z*512 + mt*32}")
        for mt in range(4):
            b = 12 + 4*mt + 16*(i & 1)
            k("s_lshl_b32 s24, s21, 2")
            k(f"s_add_u32 s24, s24, {mt}")
            k("s_mul_i32 s25, s24, 43")
            k("s_lshr_b32 s25, s25, 8")
            k("s_mul_i32 s26, s25, 6")
            k("s_sub_u32 s24, s24, s26")
            k("s_mul_i32 s25, s25, 40")
            k(f"s_lshl_b32 s26, s20, {LI}")
            k("s_add_u32 s25, s25, s26")
            k(f"s_add_u32 s25, s25, {i}")
            k("s_mul_i32 s25, s25, 6")
            k("s_add_u32 s25, s25, s24")
            k("s_lshl_b32 s25, s25, 10")
            k(f"s_add_u32 s25, s25, {WS_WA}")
            k(f"s_waitcnt lgkmcnt({6-2*mt})")
            k(f"buffer_store_dwordx4 v[{b}:{b+3}], v10, s[40:43], s25 offen")
    k.stamp(3)
    k("s_endpgm")
    k.lab(W2)
    k(f"s_sub_u32 s18, s18, {60*NW}")
    k("s_mul_i32 s20, s18, 205")
    k("s_lshr_b32 s20, s20, 11")
    k("s_mul_i32 s21, s20, 10")
    k("s_sub_u32 s21, s18, s21")
    k("v_lshrrev_b32 v6, 3, v1")
    k("v_mul_u32_u24 v6, 1280, v6")
    k("v_and_b32 v7, 7, v1")
    k("v_lshl_add_u32 v6, v7, 4, v6")
    k("s_mul_i32 s22, s20, %d" % (32*NI*1280))
    k("s_lshl_b32 s23, s21, 7")
    k("s_add_u32 s22, s22, s23")
    k("s_waitcnt lgkmcnt(0)")
    k.srd(8, 36, 1966080); k.srd(40, 38, WS_END)
    for i in range(NI):
        for q in range(4):
            k(f"s_add_u32 m0, s19, {i*4096 + q*1024}")
            k(f"s_add_u32 s24, s22, {(32*i + 8*q)*1280}")
            k(f"buffer_load_dwordx4 v6, s[8:11], s24 offen lds")
    k("v_lshlrev_b32 v7, 10, v5")
    k("v_lshl_add_u32 v7, v3, 7, v7")
    k("v_lshl_add_u32 v7, v4, 3, v7")
    k("v_add_u32 v7, s19, v7")
    k("s_waitcnt vmcnt(0)")
    k(f"s_mul_i32 s24, s20, {40*NI}")
    k("s_lshl_b32 s25, s21, 2")
    k("s_add_u32 s24, s24, s25")
    k("s_lshl_b32 s24, s24, 10")
    k(f"s_add_u32 s24, s24, {WS_WB}")
    for i in range(NI):
        for mt in range(4):
            b = 12 + 4*mt + 16*(i & 1)
            for z in range(2):
                k(f"ds_read_b64_tr_b16 v[{b+2*z}:{b+2*z+1}], v7 offset:{i*4096 + z*512 + mt*32}")
        for mt in range(4):
            b = 12 + 4*mt + 16*(i & 1)
            k(f"s_add_u32 s25, s24, {(i*40 + mt)*1024}")
            k(f"s_waitcnt lgkmcnt({6-2*mt})")
            k(f"buffer_store_dwordx4 v[{b}:{b+3}], v10, s[40:43], s25 offen")
    k("s_endpgm")


class VM:
    def __init__(self, k): self.k = k; self.ops = []
    def issue(self, txt, tag):
        self.k(txt); self.ops.append(tag)
    def cnt(self, tag):
        idx = [i for i, t in enumerate(self.ops) if t == tag]
        assert idx, tag
        return len(self.ops) - 1 - idx[-1]
    def wait(self, tag):
        n = self.cnt(tag); assert n <= 63, (tag, n)
        self.k(f"s_waitcnt vmcnt({n})")

def interleave(k, main, fill, per=None, start=0):
    n = len(main); m = len(fill)
    if per is None:
        per = [0]*n
        for j in range(m): per[start + (j*(n-start))//m] += 1
    j = 0
    for i, t in enumerate(main):
        k(t)
        for _ in range(per[i]):
            if j < m:
                f = fill[j]; j += 1
                if callable(f): f()
                else: k(f)
    while j < m:
        f = fill[j]; j += 1
        if callable(f): f()
        else: k(f)
```

```python
import struct, math
KN = "sequential_preLN__spectral_gfnet__glu_gated_swiglu__prompt_kernel"
def f2u(f): return struct.unpack("<I", struct.pack("<f", f))[0]
def fh(f): return "0x%08x" % f2u(f)
def v(i, n=1): return f"v{i}" if n == 1 else f"v[{i}:{i+n-1}]"
def a(i, n=1): return f"a{i}" if n == 1 else f"a[{i}:{i+n-1}]"
def s(i, n=1): return f"s{i}" if n == 1 else f"s[{i}:{i+n-1}]"
class Kern:
    def __init__(self, label, grid, block=256, lds=0, vgpr=256, agpr=0, sgpr=102, wgy=False):
        self.label, self.grid, self.block, self.lds = label, grid, block, lds
        self.vgpr, self.agpr, self.sgpr, self.wgy = vgpr, agpr, sgpr, wgy
        self.L = []
        self.nl = 0
    def __call__(self, txt):
        for ln in txt.strip("\n").split("\n"):
            self.L.append("    " + ln.strip())
    def lab(self, name): self.L.append(f"{name}:")
    def stamp(self, i):
        self.L.append(f"    ;STAMP {i}")
    def with_stamps(self, kidx, base=0x3000000):
        out = []
        out.append("    s_memrealtime s[96:97]")
        out.append("    s_load_dwordx2 s[92:93], s[0:1], 72")
        out.append("    v_lshrrev_b32 v1, 6, v0")
        out.append("    s_nop 0")
        out.append("    v_readfirstlane_b32 s91, v1")
        for i in range(4): out.append(f"    s_mov_b32 s{80+2*i}, 0")
        out.append("    s_waitcnt lgkmcnt(0)")
        fin = f"{self.label}_stampfin"
        for ln in self.L:
            t = ln.strip()
            if t.startswith(";STAMP"):
                i = int(t.split()[1])
                if i >= 10: out.append(f"    s_memtime s[{80+2*(i-10)}:{81+2*(i-10)}]")
                else: out.append(f"    s_memrealtime s[{80+2*i}:{81+2*i}]")
            elif t == "s_endpgm": out.append(f"    s_branch {fin}")
            else: out.append(ln)
        out.append(f"{fin}:")
        for t in ["s_waitcnt vmcnt(0) lgkmcnt(0)", "s_memrealtime s[98:99]", "s_waitcnt lgkmcnt(0)",
                  f"s_lshl_b32 s90, s2, 3", "s_add_u32 s90, s90, s91", f"s_add_u32 s90, s90, {kidx*4096}", "s_lshl_b32 s90, s90, 5", f"s_add_u32 s90, s90, {base}",
                  "s_add_u32 s92, s92, s90", "s_addc_u32 s93, s93, 0", "s_mov_b64 exec, 1",
                  "v_mov_b32 v0, 0", "v_mov_b32 v4, s96", "v_mov_b32 v5, s98", "v_mov_b32 v6, s80", "v_mov_b32 v7, s82",
                  "v_mov_b32 v8, s84", "v_mov_b32 v9, s86", "v_mov_b32 v10, s2", "v_mov_b32 v11, 0x1234",
                  "global_store_dwordx4 v0, v[4:7], s[92:93]", "global_store_dwordx4 v0, v[8:11], s[92:93] offset:16", "s_endpgm"]:
            out.append("    " + t)
        self.L = out
        self.vgpr = max(self.vgpr, 12)
        return self
    def finalize(self):
        if getattr(self, "usepf", False):
            va, vd = self.vgpr, self.vgpr + 1
            self.vgpr += 2
            assert self.vgpr <= 256, self.vgpr
            self.L = [ln.replace("v@PFA@", f"v{va}").replace("v@PFD@", f"v{vd}") for ln in self.L]
            self.usepf = False
    def prefetch(self, nxt=None, own=True, sp=60, regs=None, shift=None):
        shift = shift or (6 if self.block <= 256 else 5)
        va, vd = ("@PFA@", "@PFD@") if regs is None else regs; self.usepf = regs is None
        p = self.newlab("pf")
        self(f"s_getpc_b64 s[{sp}:{sp+1}]")
        self.lab(p)
        if own:
            self(f"v_lshlrev_b32 v{va}, {shift}, v0")
            self(f"v_min_u32 v{va}, {self.label}_codeend-{p}-4, v{va}")
            self(f"global_load_dword v{vd}, v{va}, s[{sp}:{sp+1}]")
        for nx in (nxt or []):
            self(f"s_add_u32 s{sp+2}, s{sp}, {nx}-{p}")
            self(f"s_addc_u32 s{sp+3}, s{sp+1}, 0")
            self(f"v_lshlrev_b32 v{va}, {shift}, v0")
            self(f"v_min_u32 v{va}, {nx}_codeend-{nx}-4, v{va}")
            self(f"global_load_dword v{vd}, v{va}, s[{sp+2}:{sp+3}]")
    def newlab(self, p="L"):
        self.nl += 1
        return f"{self.label}_{p}{self.nl}"
    def srd(self, dst, ptr_s, size, off=0):
        if off:
            self(f"s_add_u32 s{dst}, s{ptr_s}, {off}")
            self(f"s_addc_u32 s{dst+1}, s{ptr_s+1}, 0")
        else:
            self(f"s_mov_b32 s{dst}, s{ptr_s}")
            self(f"s_mov_b32 s{dst+1}, s{ptr_s+1}")
        self(f"s_mov_b32 s{dst+2}, {size}")
        self(f"s_mov_b32 s{dst+3}, 0x00020000")
    def text(self):
        acc = (self.vgpr + 3) // 4 * 4
        tot = acc + self.agpr if self.agpr else self.vgpr
        if not self.agpr: acc = max(4, acc); tot = max(tot, 1)
        head = f".globl {self.label}\n.p2align 8\n.type {self.label},@function\n{self.label}:\n"
        body = "\n".join(self.L) + f"\n{self.label}_codeend:\n"
        return head + body
    def desc(self):
        acc = max(4, (self.vgpr + 3) // 4 * 4)
        tot = acc + self.agpr if self.agpr else acc
        t = f".p2align 6\n.amdhsa_kernel {self.label}\n"
        t += f"  .amdhsa_next_free_vgpr {tot}\n  .amdhsa_next_free_sgpr {self.sgpr}\n  .amdhsa_accum_offset {acc}\n"
        t += "  .amdhsa_group_segment_fixed_size 0\n  .amdhsa_kernarg_size 80\n  .amdhsa_user_sgpr_count 2\n  .amdhsa_user_sgpr_kernarg_segment_ptr 1\n  .amdhsa_system_sgpr_workgroup_id_x 1\n"
        if self.wgy: t += "  .amdhsa_system_sgpr_workgroup_id_y 1\n"
        t += ".end_amdhsa_kernel\n"
        return t
def build(kerns, path, single=False, launches=None):
    t = ""
    launches = launches or kerns
    for k in kerns: k.finalize()
    if single:
        k = kerns[0]
        t += f"; @launch grid=({k.grid},1,1) block=({k.block},1,1) lds={k.lds}\n"
    else:
        for k in launches:
            t += f"; @launch kernel={k.label} grid=({k.grid},1,1) block=({k.block},1,1) lds={k.lds}\n"
    t += '.amdgcn_target "amdgcn-amd-amdhsa--gfx950"\n.text\n'
    for k in kerns: t += k.text()
    t += '.section .rodata,"a"\n'
    for k in kerns: t += k.desc()
    open(path, "w").write(t)
```

```python
from common import *
def make_k1(label="k1_kernel", var="", pf=1, nxt=None, SPL=(3,4,4,4,5)):
    k = Kern(label, grid=240, block=512, lds=81920+2048+1024, vgpr=248)
    END = f"{label}_end"; SIDE = f"{label}_side"; PROD = f"{label}_prod"
    k("s_cmp_ge_u32 s2, 240")
    k(f"s_cbranch_scc1 {END}")
    k("s_load_dwordx2 s[4:5], s[0:1], 0")
    k("s_load_dwordx2 s[6:7], s[0:1], 72")
    if pf: k.prefetch(nxt=nxt)
    k("s_cmp_lt_u32 s2, 80")
    k(f"s_cbranch_scc1 {SIDE}")
    RS = 81920
    A = Alloc(1)
    vlane = A(); vt0 = A(); vt1 = A()
    vard = A(8)
    vst = A()
    vrev = A(); vdl = A(); vstep = A(); vc2 = A(2, 2); vtmp = A(8, 2)
    vfa = A(24, 4)
    vacc = A(32, 4)
    vF = A(160, 4)
    assert A.n <= 254, A.n
    sw, srow, scol, sso, sm0 = 16, 17, 18, 19, 20
    k(f"v_and_b32 v{vlane}, 63, v0")
    k(f"v_lshrrev_b32 v{vt0}, 6, v0")
    k(f"s_and_b32 s22, s2, 7")
    k(f"s_lshr_b32 s23, s2, 3")
    k(f"s_sub_u32 s23, s23, 10")
    k(f"v_readfirstlane_b32 s21, v{vt0}")
    k(f"s_mul_i32 s24, s23, 52")
    k(f"s_lshr_b32 s24, s24, 8")
    k(f"s_mul_i32 s25, s24, 5")
    k(f"s_sub_u32 s{scol}, s23, s25")
    k(f"s_lshl_b32 s24, s24, 3")
    k(f"s_add_u32 s{srow}, s24, s22")
    k(f"s_and_b32 s{sw}, s21, 3")
    k("s_cmp_ge_u32 s21, 4")
    k(f"s_cbranch_scc1 {PROD}")
    k(f"s_lshl_b32 s22, s{scol}, 2")
    k(f"s_add_u32 s22, s22, s{sw}")
    k(f"s_lshl_b32 s22, s22, 4")
    k(f"s_add_u32 s22, s22, 1")
    k(f"v_and_b32 v{vt0}, 15, v{vlane}")
    k(f"v_add_u32 v{vt0}, s22, v{vt0}")
    k(f"v_cvt_f32_u32 v{vtmp}, v{vt0}")
    k(f"v_bfe_u32 v{vt1}, v{vlane}, 4, 1")
    k(f"v_lshl_add_u32 v{vst}, v{vt0}, 1, v{vt1}")
    k(f"v_lshlrev_b32 v{vst}, 12, v{vst}")
    k(f"v_subrev_u32 v{vst}, {2*4096}, v{vst}")
    k(f"v_cvt_f32_u32 v{vtmp+1}, v{vt1}")
    k(f"v_lshrrev_b32 v{vt1}, 5, v{vlane}")
    k(f"v_lshl_add_u32 v{vst}, v{vt1}, 4, v{vst}")
    k(f"v_cvt_f32_u32 v{vtmp+2}, v{vt1}")
    k(f"v_mul_f32 v{vdl}, {fh(1/640)}, v{vtmp}")
    k(f"v_mul_f32 v{vrev}, v{vtmp+2}, v{vtmp}")
    k(f"v_mul_f32 v{vrev}, 0.5, v{vrev}")
    k(f"v_mul_f32 v{vtmp+1}, {fh(0.25)}, v{vtmp+1}")
    k(f"v_add_f32 v{vrev}, v{vrev}, v{vtmp+1}")
    k(f"v_fract_f32 v{vrev}, v{vrev}")
    k(f"v_mul_f32 v{vstep}, {fh(1/16)}, v{vtmp}")
    k(f"v_fract_f32 v{vstep}, v{vstep}")
    k(f"v_add_f32 v{vtmp}, v{vdl}, v{vdl}")
    k(f"v_cos_f32 v{vc2}, v{vtmp}")
    k("s_nop 0")
    k(f"v_add_f32 v{vc2}, v{vc2}, v{vc2}")
    for b in range(8):
        cos_block(k, vF + 20*b, 20, vrev, vdl, vc2, vtmp)
        if b < 7:
            k(f"v_add_f32 v{vrev}, v{vrev}, v{vstep}")
            k(f"v_fract_f32 v{vrev}, v{vrev}")
    k(f"v_and_b32 v{vt0}, 19, v{vlane}")
    k(f"v_bfe_u32 v{vt1}, v{vlane}, 2, 1")
    k(f"v_lshl_or_b32 v{vt0}, v{vt1}, 3, v{vt0}")
    k(f"v_bfe_u32 v{vt1}, v{vlane}, 3, 1")
    k(f"v_lshl_or_b32 v{vt0}, v{vt1}, 2, v{vt0}")
    k(f"v_bfe_u32 v{vt1}, v{vt0}, 1, 3")
    k(f"v_lshlrev_b32 v{vt1}, 4, v{vt1}")
    k(f"v_lshl_or_b32 v{vt1}, v{vt0}, 7, v{vt1}")
    k(f"v_lshrrev_b32 v{vtmp}, 5, v{vlane}")
    k(f"v_mul_u32_u24 v{vtmp}, {5*8192}, v{vtmp}")
    k(f"v_add_u32 v{vard}, v{vt1}, v{vtmp}")
    for u in range(1, 8):
        k(f"v_xor_b32 v{vard+u}, {u<<4}, v{vard}")
    k("s_waitcnt lgkmcnt(0)")
    k.srd(12, 6, WS_END)
    if 'clk' not in var: k.stamp(0)
    def rd(kk):
        p, u = kk // 8, kk % 8
        sl = kk % 3
        for t in range(2):
            k(f"ds_read_b128 v[{vfa+sl*8+t*4}:{vfa+sl*8+t*4+3}], v{vard+u} offset:{p*8192 + t*4096}")
    k("s_barrier")
    if 'clk' in var: k.stamp(10)
    k.stamp(2)
    rd(0); rd(1)
    for kk in range(40):
        nk = kk + 2
        if nk < 40:
            if nk % 8 == 0: k("s_barrier")
            rd(nk)
            k(f"s_waitcnt lgkmcnt(4)")
        elif nk == 40: k(f"s_waitcnt lgkmcnt(2)")
        else: k("s_waitcnt lgkmcnt(0)")
        sl = kk % 3
        for t in range(2):
            fa = vfa + sl*8 + t*4
            cs = f"v[{vacc+16*t}:{vacc+16*t+15}]" if kk else "0"
            k(f"v_mfma_f32_32x32x16_bf16 v[{vacc+16*t}:{vacc+16*t+15}], v[{fa}:{fa+3}], v[{vF+4*kk}:{vF+4*kk+3}], {cs}")
    k.stamp(3)
    if 'clk' in var: k.stamp(11)
    k(f"v_lshrrev_b32 v{vt1}, 5, v{vlane}")
    k(f"v_lshlrev_b32 v{vt1}, 5, v{vt1}")
    k(f"v_add_u32 v{vt1}, {RS}, v{vt1}")
    k(f"s_lshl_b32 s22, s{srow}, 7")
    k(f"s_add_u32 s22, s22, {WS_PT}")
    k("s_barrier")
    vr = vF
    for t in range(2):
        for q in range(2):
            for z in range(2):
                b = vr + 16*t + 8*q + 4*z
                k(f"ds_read_b128 v[{b}:{b+3}], v{vt1} offset:{128*t + 64*q + 16*z}")
    vo = vF + 32
    for t in range(2):
        for q in range(2):
            b = 16*t + 8*q
            k(f"s_waitcnt lgkmcnt({6 - 2*(2*t+q)})")
            for z in range(4):
                k(f"v_pk_mul_f32 v[{vacc+b+2*z}:{vacc+b+2*z+1}], v[{vacc+b+2*z}:{vacc+b+2*z+1}], v[{vr+b+2*z}:{vr+b+2*z+1}]")
            ob = vo + 4*(2*t+q)
            for z in range(4):
                k(f"v_cvt_pk_bf16_f32 v{ob+z}, v{vacc+b+2*z}, v{vacc+b+2*z+1}")
            k(f"buffer_store_dwordx4 v[{ob}:{ob+3}], v{vst}, s[12:15], s22 offen offset:{64*t+32*q}")
    k("s_endpgm")
    k.vgpr = A.n
    k.lab(PROD)
    B = Alloc(vt1 + 1)
    vdma = B(2); vsa = B(2); vs2 = B(8, 2); vsb = B(16, 4); vun = B(4, 2); vsum = B(4, 2); vq = B(2)
    k(f"v_lshrrev_b32 v{vt0}, 3, v{vlane}")
    k(f"v_mul_u32_u24 v{vt0}, 1280, v{vt0}")
    k(f"v_lshrrev_b32 v{vt1}, 4, v{vlane}")
    k(f"v_xor_b32 v{vt1}, v{vt1}, v{vlane}")
    k(f"v_and_b32 v{vt1}, 7, v{vt1}")
    k(f"v_lshl_add_u32 v{vdma}, v{vt1}, 4, v{vt0}")
    k(f"v_xor_b32 v{vdma+1}, 64, v{vdma}")
    k(f"v_add_u32 v{vdma+1}, {8*1280}, v{vdma+1}")
    k(f"s_lshl_b32 s22, s{srow}, 2")
    k(f"s_add_u32 s22, s22, s{sw}")
    k(f"s_mul_i32 s{sso}, s22, {16*1280}")
    k(f"s_lshl_b32 s{sm0}, s{sw}, 11")
    k("s_waitcnt lgkmcnt(0)")
    k.srd(8, 4, 2621440)
    k.srd(12, 6, WS_END)
    order = [0,5,1,6,2,7,3,8,4,9]
    for c in order:
        for i in range(2):
            k(f"s_add_u32 m0, s{sm0}, {c*8192 + i*1024}")
            k(f"s_add_u32 s22, s{sso}, {c*128}")
            k(f"buffer_load_dwordx4 v{vdma+i}, s[8:11], s22 offen lds")
    if 'clk' not in var: k.stamp(0)
    for i in range(8): k(f"v_mov_b32 v{vs2+i}, 0")
    k(f"v_lshlrev_b32 v{vsa}, 4, v{vlane}")
    k(f"v_add_u32 v{vsa}, s{sm0}, v{vsa}")
    k(f"v_add_u32 v{vsa+1}, {5*8192}, v{vsa}")
    k("s_mov_b32 s21, 0xffff0000")
    def statrd(r):
        p, j = r // 4, r % 4
        b = vsb + 4*(r % 4)
        k(f"ds_read_b128 v[{b}:{b+3}], v{vsa+(j>>1)} offset:{p*8192 + (j&1)*1024}")
    def statproc(r):
        i = r & 1; b = vsb + 4*(r % 4)
        for q in range(4):
            u = vun + 2*(q & 1)
            k(f"v_lshlrev_b32 v{u}, 16, v{b+q}")
            k(f"v_and_b32 v{u+1}, s21, v{b+q}")
            k(f"v_add_f32 v{vs2+4*i}, v{vs2+4*i}, v{u}")
            k(f"v_fmac_f32 v{vs2+4*i+2}, v{u}, v{u}")
            k(f"v_add_f32 v{vs2+4*i+1}, v{vs2+4*i+1}, v{u+1}")
            k(f"v_fmac_f32 v{vs2+4*i+3}, v{u+1}, v{u+1}")
    r0 = 0
    for p in range(5):
        k(f"s_waitcnt vmcnt({16-4*p})")
        k("s_barrier")
        if p == 0 and 'clk' not in var: k.stamp(1)
        rs = list(range(r0, r0 + SPL[p])); r0 += SPL[p]
        assert rs[-1] < 4*(p+1)
        todo = rs[:]
        first = todo[:4]
        for r in first: statrd(r)
        rest = todo[4:]
        for n, r in enumerate(first):
            k(f"s_waitcnt lgkmcnt({len(first)-1-n if not rest or n == 0 else min(len(first)-1-n + 1, 15)})" if False else f"s_waitcnt lgkmcnt({len(first)-1-n + (1 if rest and n >= 1 else 0)})")
            statproc(r)
            if n == 0 and rest: statrd(rest[0])
        for r in rest:
            k("s_waitcnt lgkmcnt(0)")
            statproc(r)
    assert r0 == 20
    for i in range(2):
        k(f"v_add_f32 v{vsum+2*i}, v{vs2+4*i}, v{vs2+4*i+1}")
        k(f"v_add_f32 v{vsum+2*i+1}, v{vs2+4*i+2}, v{vs2+4*i+3}")
    for dpp in ["quad_perm:[1,0,3,2]", "quad_perm:[2,3,0,1]", "row_half_mirror"]:
        k("s_nop 0")
        for q in range(4):
            k(f"v_add_f32_dpp v{vsum+q}, v{vsum+q}, v{vsum+q} {dpp} row_mask:0xf bank_mask:0xf")
    k(f"v_and_b32 v{vt1}, 1, v{vlane}")
    k(f"v_cmp_eq_u32 vcc, 1, v{vt1}")
    k(f"v_lshrrev_b32 v{vq}, 3, v{vlane}")
    k(f"v_lshl_add_u32 v{vq}, v{vt1}, 3, v{vq}")
    k(f"v_cndmask_b32 v{vsum}, v{vsum}, v{vsum+2}, vcc")
    k(f"v_cndmask_b32 v{vsum+1}, v{vsum+1}, v{vsum+3}, vcc")
    k(f"v_mul_f32 v{vsum}, {fh(1/640)}, v{vsum}")
    k(f"v_mul_f32 v{vsum+2}, v{vsum}, v{vsum}")
    k(f"v_mul_f32 v{vsum+1}, {fh(1/640)}, v{vsum+1}")
    k(f"v_sub_f32 v{vsum+1}, v{vsum+1}, v{vsum+2}")
    k(f"v_max_f32 v{vsum+1}, 0, v{vsum+1}")
    k(f"v_add_f32 v{vsum+1}, {fh(1e-5)}, v{vsum+1}")
    k(f"v_rsq_f32 v{vsum+1}, v{vsum+1}")
    k(f"s_lshl_b32 s22, s{sw}, 4")
    k(f"v_add_u32 v{vq}, s22, v{vq}")
    k(f"v_lshlrev_b32 v{vq}, 2, v{vq}")
    k(f"v_add_u32 v{vq+1}, {RS}, v{vq}")
    k(f"ds_write_b32 v{vq+1}, v{vsum+1}")
    skip = k.newlab()
    k(f"s_cmp_lg_u32 s{scol}, 0")
    k(f"s_cbranch_scc1 {skip}")
    k(f"s_lshl_b32 s22, s{srow}, 8")
    k(f"s_add_u32 s22, s22, {WS_MS}")
    k(f"buffer_store_dword v{vsum}, v{vq}, s[12:15], s22 offen")
    k.lab(skip)
    k("s_waitcnt lgkmcnt(0)")
    k("s_barrier")
    k.stamp(3)
    k("s_endpgm")
    k.lab(SIDE)
    k("v_lshrrev_b32 v1, 6, v0")
    k("s_load_dwordx2 s[32:33], s[0:1], 8")
    k("v_readfirstlane_b32 s24, v1")
    k("s_load_dwordx2 s[16:17], s[0:1], 16")
    k("s_cmp_ge_u32 s24, 4")
    k(f"s_cbranch_scc1 {END}")
    k("s_mul_i32 s21, s2, 205")
    k("s_lshr_b32 s21, s21, 11")
    k("s_mul_i32 s22, s21, 10")
    k("s_sub_u32 s22, s2, s22")
    k("s_lshr_b32 s23, s21, 1")
    k("s_lshl_b32 s23, s23, 4")
    k("s_and_b32 s25, s21, 1")
    k("s_lshl_b32 s25, s25, 10")
    k("s_add_u32 s23, s23, s25")
    k("s_lshl_b32 s25, s24, 8")
    k("s_add_u32 s23, s23, s25")
    k("v_bfe_u32 v2, v0, 2, 4")
    k("v_add_u32 v1, s23, v2")
    k("v_mul_u32_u24 v1, 642, v1")
    k("v_and_b32 v3, 3, v0")
    k("v_lshl_add_u32 v1, v3, 4, v1")
    k("s_lshl_b32 s25, s22, 6")
    k("s_add_u32 s25, s25, 2")
    k("v_lshlrev_b32 v3, 16, v3")
    k("v_lshl_add_u32 v2, v2, 4, v3")
    k("s_waitcnt lgkmcnt(0)")
    k.srd(8, 32, 1314816); k.srd(28, 16, 1314816); k.srd(12, 6, WS_END)
    for i in range(4):
        k(f"buffer_load_dwordx4 v[{4+4*i}:{7+4*i}], v1, s[8:11], s25 offen")
        k(f"buffer_load_dwordx4 v[{20+4*i}:{23+4*i}], v1, s[28:31], s25 offen")
        if i < 3: k(f"s_add_u32 s25, s25, {64*642}")
    k.stamp(0)
    k("s_mov_b32 s26, 0x05040100\ns_mov_b32 s27, 0x07060302")
    k("s_lshl_b32 s23, s22, 18")
    k("s_lshl_b32 s25, s21, 10")
    k("s_add_u32 s23, s23, s25")
    k("s_lshl_b32 s25, s24, 8")
    k("s_add_u32 s23, s23, s25")
    k(f"s_add_u32 s23, s23, {WS_WT}")
    k("s_waitcnt vmcnt(0)"); k.stamp(1)
    for z in range(8):
        d, hh = z // 2, z % 2
        o = 36 + 4*z
        for i in range(4):
            k(f"v_perm_b32 v{o+i}, v{20+4*i+d}, v{4+4*i+d}, s{26+hh}")
        k(f"buffer_store_dwordx4 v[{o}:{o+3}], v2, s[12:15], s23 offen")
        if z < 7: k("s_add_u32 s23, s23, 8192")
    k.stamp(3)
    k.lab(END)
    k("s_endpgm")
    return k
if __name__ == "__main__":
    build([make_k1()], "k1.s")
```

```python
from common import *
def make_k2(label="k2_kernel", pf=1, nxt=None):
    k = Kern(label, grid=320, block=256, lds=16384, vgpr=200)
    END = f"{label}_end"
    k("s_cmp_ge_u32 s2, 320")
    k(f"s_cbranch_scc1 {END}")
    k("s_load_dwordx2 s[6:7], s[0:1], 72")
    if pf: k.prefetch(nxt=nxt)
    A = Alloc(1)
    vl = A(); vg = A(); v16 = A(); t0 = A(); t1 = A(); t2 = A()
    vA = A(2); vWr = A(2); vB = A(2); vSt = A()
    tf = A(8, 2)
    tg = A(8, 2)
    C64 = A(8, 4); S64 = A(8, 4); N64 = A(8, 4)
    C32 = A(8, 4); S32 = A(8, 4); N32 = A(8, 4)
    T1c = A(8, 2); T1s = A(8, 2); T2c = A(8, 2); T2s = A(8, 2)
    W = A(8, 4)
    FA = A(32, 4)
    AC = A(16, 4)
    AD = A(16, 4)
    Br = A(4, 4); Bi = A(4, 4)
    k.vgpr = A.n
    sw = 16
    k(f"v_and_b32 v{vl}, 63, v0")
    k(f"v_lshrrev_b32 v{t0}, 6, v0")
    k(f"v_lshrrev_b32 v{vg}, 4, v{vl}")
    k(f"v_readfirstlane_b32 s{sw}, v{t0}")
    k(f"v_and_b32 v{v16}, 15, v{vl}")
    k(f"v_lshrrev_b32 v{t1}, 5, v{vl}")
    k(f"v_lshlrev_b32 v{t1}, 1, v{t1}")
    k(f"v_xor_b32 v{t1}, v{t1}, v{vl}")
    k(f"v_lshlrev_b32 v{t1}, 4, v{t1}")
    k(f"v_lshlrev_b32 v{t2}, 4, v{vl}")
    k(f"s_lshl_b32 s17, s{sw}, 11")
    k(f"s_lshl_b32 s18, s2, 13")
    k(f"s_add_u32 s19, s18, s17")
    k(f"s_add_u32 s20, s19, {WS_PT}")
    k(f"s_add_u32 s21, s19, {WS_WT}")
    k(f"s_mov_b32 m0, s17")
    k("s_waitcnt lgkmcnt(0)")
    k.srd(8, 6, WS_END)
    k(f"buffer_load_dwordx4 v{t1}, s[8:11], s20 offen lds")
    k(f"buffer_load_dwordx4 v{t1}, s[8:11], s20 offen offset:1024 lds")
    k(f"buffer_load_dwordx4 v[{W}:{W+3}], v{t2}, s[8:11], s21 offen")
    k(f"buffer_load_dwordx4 v[{W+4}:{W+7}], v{t2}, s[8:11], s21 offen offset:1024")
    k.stamp(0)
    k(f"s_lshl_b32 s22, s{sw}, 4")
    k(f"v_add_u32 v{t0}, s22, v{v16}")
    k(f"v_cvt_f32_u32 v{tg}, v{t0}")
    k(f"v_cvt_f32_u32 v{tg+1}, v{vg}")
    k(f"v_cvt_f32_u32 v{tg+2}, v{v16}")
    k(f"v_lshlrev_b32 v{t0}, 31, v{v16}")
    k(f"v_lshrrev_b32 v{t1}, 16, v{t0}")
    k(f"v_or_b32 v{t0}, v{t0}, v{t1}")
    vsm = t0
    k(f"v_mul_f32 v{tg+3}, {fh(1/64)}, v{tg}")
    k(f"v_mul_f32 v{tf}, v{tg}, v{tg+1}")
    k(f"v_mul_f32 v{tf}, {fh(1/8)}, v{tf}")
    for j in range(1, 8): k(f"v_add_f32 v{tf+j}, v{tf+j-1}, v{tg+3}")
    for j in range(8): k(f"v_cos_f32 v{FA+j}, v{tf+j}")
    for j in range(8): k(f"v_sin_f32 v{FA+8+j}, v{tf+j}")
    for z in range(4): k(f"v_cvt_pk_bf16_f32 v{C64+z}, v{FA+2*z}, v{FA+2*z+1}")
    for z in range(4): k(f"v_cvt_pk_bf16_f32 v{S64+z}, v{FA+8+2*z}, v{FA+8+2*z+1}")
    k(f"s_mov_b32 s23, 0x80008000")
    for z in range(4):
        k(f"v_xor_b32 v{C64+4+z}, v{vsm}, v{C64+z}")
        k(f"v_xor_b32 v{S64+4+z}, v{vsm}, v{S64+z}")
    for z in range(8): k(f"v_xor_b32 v{N64+z}, s23, v{S64+z}")
    k(f"v_mul_f32 v{tg+3}, {fh(1/32)}, v{tg+2}")
    k(f"v_mul_f32 v{tf}, v{tg+2}, v{tg+1}")
    k(f"v_mul_f32 v{tf}, {fh(1/8)}, v{tf}")
    for j in range(1, 4): k(f"v_add_f32 v{tf+j}, v{tf+j-1}, v{tg+3}")
    for j in range(4): k(f"v_cos_f32 v{FA+j}, v{tf+j}")
    for j in range(4): k(f"v_sin_f32 v{FA+4+j}, v{tf+j}")
    k("s_nop 0")
    for z in range(2): k(f"v_cvt_pk_bf16_f32 v{C32+z}, v{FA+2*z}, v{FA+2*z+1}")
    for z in range(2): k(f"v_cvt_pk_bf16_f32 v{S32+z}, v{FA+4+2*z}, v{FA+4+2*z+1}")
    for z in range(2):
        k(f"v_xor_b32 v{C32+2+z}, v{vsm}, v{C32+z}")
        k(f"v_xor_b32 v{S32+2+z}, v{vsm}, v{S32+z}")
    k(f"s_brev_b32 s24, 1")
    for z in range(4):
        k(f"v_xor_b32 v{C32+4+z}, s24, v{C32+z}")
        k(f"v_xor_b32 v{S32+4+z}, s24, v{S32+z}")
    for z in range(8): k(f"v_xor_b32 v{N32+z}, s23, v{S32+z}")
    k(f"v_mul_f32 v{tg+3}, {fh(1/2048)}, v{tg}")
    k(f"v_mul_f32 v{tf}, v{tg+3}, v{tg+1}")
    k(f"v_mul_f32 v{tf}, 4.0, v{tf}")
    for j in range(1, 4): k(f"v_add_f32 v{tf+j}, v{tf+j-1}, v{tg+3}")
    k(f"v_mul_f32 v{tg+4}, {fh(16.0)}, v{tg+3}")
    for j in range(4): k(f"v_add_f32 v{tf+4+j}, v{tf+j}, v{tg+4}")
    for j in range(8): k(f"v_cos_f32 v{T1c+j}, v{tf+j}")
    for j in range(8): k(f"v_sin_f32 v{T1s+j}, v{tf+j}")
    k(f"v_fma_f32 v{tg+5}, v{tg+1}, 4.0, v{tg}")
    k(f"v_sub_f32 v{tg+5}, v{tg+5}, v{tg+2}")
    k(f"v_mul_f32 v{tg+5}, {fh(1/2048)}, v{tg+5}")
    k(f"v_mul_f32 v{tg+3}, {fh(1/2048)}, v{tg+2}")
    k(f"v_mul_f32 v{tf}, v{tg+5}, v{tg+2}")
    for j in range(1, 4): k(f"v_add_f32 v{tf+j}, v{tf+j-1}, v{tg+3}")
    k(f"v_mul_f32 v{tg+4}, {fh(16.0)}, v{tg+5}")
    for j in range(4):
        k(f"v_add_f32 v{tf+4+j}, v{tf+j}, v{tg+4}")
        if j < 3: k(f"v_add_f32 v{tg+4}, {fh(16/2048)}, v{tg+4}")
    for j in range(8): k(f"v_cos_f32 v{T2c+j}, v{tf+j}")
    for j in range(8): k(f"v_sin_f32 v{T2s+j}, v{tf+j}")
    k(f"v_lshrrev_b32 v{t1}, 2, v{v16}")
    k(f"v_lshlrev_b32 v{t1}, 6, v{t1}")
    k(f"v_lshl_add_u32 v{t1}, v{vg}, 9, v{t1}")
    k(f"v_bfe_u32 v{t2}, v{v16}, 1, 1")
    k(f"v_lshlrev_b32 v{tf}, 1, v{vg}")
    k(f"v_and_b32 v{tf}, 2, v{tf}")
    k(f"v_xor_b32 v{t2}, v{t2}, v{tf}")
    k(f"v_lshl_add_u32 v{t1}, v{t2}, 4, v{t1}")
    k(f"v_and_b32 v{t2}, 1, v{v16}")
    k(f"v_lshl_add_u32 v{vA}, v{t2}, 3, v{t1}")
    k(f"v_xor_b32 v{vA+1}, 32, v{vA}")
    k(f"v_bfe_u32 v{t1}, v{v16}, 1, 1")
    k(f"v_lshrrev_b32 v{t2}, 3, v{v16}")
    k(f"v_lshl_or_b32 v{t1}, v{t2}, 1, v{t1}")
    k(f"v_lshrrev_b32 v{t2}, 1, v{vg}")
    k(f"s_lshl_b32 s22, s{sw}, 1")
    k(f"v_add_u32 v{t2}, s22, v{t2}")
    k(f"v_xor_b32 v{t1}, v{t1}, v{t2}")
    k(f"v_lshlrev_b32 v{t1}, 4, v{t1}")
    k(f"v_lshl_add_u32 v{t1}, v{v16}, 7, v{t1}")
    k(f"v_and_b32 v{t2}, 1, v{vg}")
    k(f"v_lshl_add_u32 v{t1}, v{t2}, 3, v{t1}")
    k(f"v_add_u32 v{vWr}, 8192, v{t1}")
    k(f"v_xor_b32 v{t1}, 64, v{t1}")
    k(f"v_add_u32 v{vWr+1}, {8192+2048}, v{t1}")
    k(f"v_lshrrev_b32 v{t2}, 2, v{v16}")
    k(f"v_bfe_u32 v{t1}, v{v16}, 1, 1")
    k(f"v_lshl_or_b32 v{t1}, v{t2}, 1, v{t1}")
    k(f"v_xor_b32 v{t1}, v{t1}, v{vg}")
    k(f"v_lshlrev_b32 v{t1}, 4, v{t1}")
    k(f"v_lshl_add_u32 v{t1}, v{t2}, 10, v{t1}")
    k(f"v_and_b32 v{t2}, 3, v{v16}")
    k(f"v_lshl_add_u32 v{t1}, v{t2}, 7, v{t1}")
    k(f"v_add_u32 v{vB}, 8192, v{t1}")
    k(f"v_xor_b32 v{vB+1}, 64, v{vB}")
    k(f"v_lshlrev_b32 v{t1}, 6, v{v16}")
    k(f"v_lshl_add_u32 v{vSt}, v{vg}, 4, v{t1}")
    k(f"s_lshl_b32 s22, s{sw}, 10")
    k(f"s_add_u32 s22, s22, s18")
    k(f"s_add_u32 s25, s22, {WS_UT}")
    for i in range(16): k(f"v_mov_b32 v{AC+i}, 0")
    for i in range(16): k(f"v_mov_b32 v{AD+i}, 0")
    k.stamp(1)
    k("s_waitcnt vmcnt(2)")
    k("s_barrier")
    k.stamp(2)
    def fa(p, mt, ks): return FA + 16*p + 8*mt + 4*ks
    for ks in range(2):
        for p in range(2):
            for mt in range(2):
                for z in range(2):
                    b = fa(p, mt, ks) + 2*z
                    k(f"ds_read_b64_tr_b16 v[{b}:{b+1}], v{vA+mt} offset:{p*4096 + ks*2048 + z*256}")
    def mf(d, a_, b_): k(f"v_mfma_f32_16x16x32_bf16 v[{d}:{d+3}], v[{a_}:{a_+3}], v[{b_}:{b_+3}], v[{d}:{d+3}]")
    def acc(base, t, c): return base + 8*t + 4*c
    for ks in range(2):
        k(f"s_waitcnt lgkmcnt({12 if ks == 0 else 4})")
        for mt in range(2):
            mf(acc(AC,mt,0), fa(0,mt,ks), C64+4*ks)
            mf(acc(AC,mt,1), fa(0,mt,ks), N64+4*ks)
        k(f"s_waitcnt lgkmcnt({8 if ks == 0 else 0})")
        for mt in range(2):
            mf(acc(AC,mt,0), fa(1,mt,ks), S64+4*ks)
            mf(acc(AC,mt,1), fa(1,mt,ks), C64+4*ks)
    k("s_nop 7")
    def cmul(base, c, s_, sign, outr, outi):
        for t in range(2):
            r, im = acc(base,t,0), acc(base,t,1)
            for z in range(2):
                rr, ii = r+2*z, im+2*z; cc, ss = c+4*t+2*z, s_+4*t+2*z
                a0 = tf + 4*z
                k(f"v_pk_mul_f32 v[{a0}:{a0+1}], v[{rr}:{rr+1}], v[{cc}:{cc+1}]")
                k(f"v_pk_mul_f32 v[{a0+2}:{a0+3}], v[{ii}:{ii+1}], v[{cc}:{cc+1}]")
            for z in range(2):
                rr, ii = r+2*z, im+2*z; cc, ss = c+4*t+2*z, s_+4*t+2*z
                a0 = tf + 4*z
                n1 = "" if sign > 0 else " neg_lo:[0,1,0] neg_hi:[0,1,0]"
                n2 = " neg_lo:[0,1,0] neg_hi:[0,1,0]" if sign > 0 else ""
                k(f"v_pk_fma_f32 v[{a0}:{a0+1}], v[{ii}:{ii+1}], v[{ss}:{ss+1}], v[{a0}:{a0+1}]{n1}")
                k(f"v_pk_fma_f32 v[{a0+2}:{a0+3}], v[{rr}:{rr+1}], v[{ss}:{ss+1}], v[{a0+2}:{a0+3}]{n2}")
            for z in range(2):
                a0 = tf + 4*z
                k(f"v_cvt_pk_bf16_f32 v{outr+2*t+z}, v{a0}, v{a0+1}")
                k(f"v_cvt_pk_bf16_f32 v{outi+2*t+z}, v{a0+2}, v{a0+3}")
    cmul(AC, T1c, T1s, +1, Br, Bi)
    k("s_nop 1")
    for t in range(2):
        mf(acc(AD,t,0), C32+4*t, Br); mf(acc(AD,t,1), C32+4*t, Bi)
    for t in range(2):
        mf(acc(AD,t,0), S32+4*t, Bi); mf(acc(AD,t,1), N32+4*t, Br)
    k("s_waitcnt vmcnt(0)")
    for j in range(8):
        k(f"v_lshlrev_b32 v{FA+j}, 16, v{W+j}")
        k(f"v_and_b32 v{FA+8+j}, 0xffff0000, v{W+j}")
    for i in range(16): k(f"v_mov_b32 v{AC+i}, 0")
    k("s_nop 1")
    cmul(AD, FA, FA+8, -1, Br, Bi)
    k("s_nop 1")
    for t in range(2):
        mf(acc(AC,t,0), Br, C32+4*t); mf(acc(AC,t,1), Bi, C32+4*t)
    for t in range(2):
        mf(acc(AC,t,0), Bi, N32+4*t); mf(acc(AC,t,1), Br, S32+4*t)
    for i in range(16): k(f"v_mov_b32 v{AD+i}, 0")
    k("s_nop 1")
    Or = FA; Oi = FA + 4
    cmul(AC, T2c, T2s, -1, Or, Oi)
    for t in range(2):
        k(f"ds_write_b64 v{vWr+t}, v[{Or+2*t}:{Or+2*t+1}]")
        k(f"ds_write_b64 v{vWr+t}, v[{Oi+2*t}:{Oi+2*t+1}] offset:4096")
    k.stamp(3)
    k("s_waitcnt lgkmcnt(0)")
    k("s_barrier")
    def fb(p, t, ks): return FA + 16*p + 8*t + 4*ks
    for ks in range(2):
        for p in range(2):
            for t in range(2):
                b = fb(p, t, ks)
                k(f"ds_read_b128 v[{b}:{b+3}], v{vB+ks} offset:{p*4096 + t*512}")
    for ks in range(2):
        k(f"s_waitcnt lgkmcnt({6 if ks == 0 else 2})")
        for t in range(2):
            mf(acc(AD,t,0), fb(0,t,ks), C64+4*ks)
            mf(acc(AD,t,1), fb(0,t,ks), S64+4*ks)
        k(f"s_waitcnt lgkmcnt({4 if ks == 0 else 0})")
        for t in range(2):
            mf(acc(AD,t,0), fb(1,t,ks), N64+4*ks)
            mf(acc(AD,t,1), fb(1,t,ks), C64+4*ks)
    k("s_nop 7")
    for c in range(2):
        o = Br if c == 0 else Bi
        for t in range(2):
            for z in range(2):
                k(f"v_cvt_pk_bf16_f32 v{o+2*t+z}, v{acc(AD,t,c)+2*z}, v{acc(AD,t,c)+2*z+1}")
        k(f"s_add_u32 s26, s25, {4096*c}")
        k(f"buffer_store_dwordx4 v[{o}:{o+3}], v{vSt}, s[8:11], s26 offen")
    k.lab(END)
    k("s_endpgm")
    return k
if __name__ == "__main__":
    from k1 import make_k1
    build([make_k1(), make_k2()], "k12.s")
```

```python
from common import *
def make_k3(label="k3_kernel", var="", pf=1, nxt=None, NSH=0, SHP=3):
    XO = 81920
    k = Kern(label, grid=250, block=512, lds=81920+16384, vgpr=248)
    END = f"{label}_end"
    SIDE = f"{label}_side"; PROD = f"{label}_prod"
    k("s_cmp_ge_u32 s2, 250")
    k(f"s_cbranch_scc1 {END}")
    k("s_load_dwordx2 s[4:5], s[0:1], 0")
    k("s_load_dwordx2 s[6:7], s[0:1], 72")
    if pf: k.prefetch(nxt=nxt)
    k("s_cmp_lt_u32 s2, 90")
    k(f"s_cbranch_scc1 {SIDE}")
    A = Alloc(1)
    vl = A(); t0 = A(); t1 = A(); t2 = A()
    vm = A(2); vB = A(4); vxr = A(); vst = A()
    vrev = A(); vdl = A(); vstep = A(); vc2 = A(2, 2); vtmp = A(8, 2)
    vfb = A(24, 4); vacc = A(32, 4); vG = A(160, 4)
    k.vgpr = A.n
    assert A.n <= 254, A.n
    sw, srow, scol = 16, 17, 18
    k(f"v_and_b32 v{vl}, 63, v0")
    k(f"v_lshrrev_b32 v{t0}, 6, v0")
    k("s_sub_u32 s27, s2, 90")
    wg_rowcol5(k, srow, scol, 27)
    k(f"v_readfirstlane_b32 s21, v{t0}")
    k(f"s_and_b32 s{sw}, s21, 3")
    k("s_cmp_ge_u32 s21, 4")
    k(f"s_cbranch_scc1 {PROD}")
    k(f"v_and_b32 v{t0}, 19, v{vl}")
    k(f"v_bfe_u32 v{t1}, v{vl}, 2, 1")
    k(f"v_lshl_or_b32 v{t0}, v{t1}, 3, v{t0}")
    k(f"v_bfe_u32 v{t1}, v{vl}, 3, 1")
    k(f"v_lshl_or_b32 v{t0}, v{t1}, 2, v{t0}")
    k(f"s_lshl_b32 s26, s{scol}, 2")
    k(f"s_add_u32 s26, s26, s{sw}")
    k(f"s_lshl_b32 s24, s26, 5")
    k(f"v_add_u32 v{t0}, s24, v{t0}")
    k(f"v_cvt_f32_u32 v{vtmp}, v{t0}")
    k(f"v_lshrrev_b32 v{t1}, 5, v{vl}")
    k(f"v_cvt_f32_u32 v{vtmp+1}, v{t1}")
    k(f"v_mul_f32 v{vdl}, {fh(1/640)}, v{vtmp}")
    k(f"v_mul_f32 v{vtmp+1}, {fh(0.25)}, v{vtmp+1}")
    k(f"v_add_f32 v{vrev}, v{vtmp+1}, v{vdl}")
    k(f"v_mul_f32 v{vstep}, {fh(1/16)}, v{vtmp}")
    k(f"v_fract_f32 v{vstep}, v{vstep}")
    k(f"v_add_f32 v{vtmp}, v{vdl}, v{vdl}")
    k(f"v_cos_f32 v{vc2}, v{vtmp}")
    k("s_nop 0")
    k(f"v_add_f32 v{vc2}, v{vc2}, v{vc2}")
    def gblock(b, nopk=False):
        c = Cap()
        cos_block(c, vG + 20*b, 20, vrev, vdl, vc2, vtmp, halve_last=(b == 7), nopk=nopk)
        if b < 7:
            c(f"v_add_f32 v{vrev}, v{vrev}, v{vstep}")
            c(f"v_fract_f32 v{vrev}, v{vrev}")
        return c.L
    for b in range(8 - NSH):
        for t in gblock(b): k(t)
        if b == 2:
            k("s_waitcnt lgkmcnt(0)")
            k.srd(12, 6, WS_END)
            k(f"v_and_b32 v{vm+1}, 31, v{vl}")
            k(f"v_lshlrev_b32 v{vm+1}, 2, v{vm+1}")
            k(f"s_lshl_b32 s22, s{srow}, 8")
            k(f"s_add_u32 s22, s22, {WS_MS}")
            k(f"buffer_load_dword v{vm}, v{vm+1}, s[12:15], s22 offen")
            k(f"buffer_load_dword v{vm+1}, v{vm+1}, s[12:15], s22 offen offset:128")
    c = k
    c(f"v_bfe_u32 v{t0}, v{vl}, 2, 2")
    c(f"v_lshrrev_b32 v{t1}, 5, v{vl}")
    c(f"v_lshlrev_b32 v{t1}, 3, v{t1}")
    c(f"v_bfe_u32 v{t2}, v{vl}, 4, 1")
    c(f"v_lshl_or_b32 v{t1}, v{t2}, 1, v{t1}")
    c(f"v_bfe_u32 v{t2}, v{vl}, 1, 1")
    c(f"v_or_b32 v{t1}, v{t1}, v{t2}")
    c(f"v_lshlrev_b32 v{t2}, 2, v{t0}")
    c(f"v_xor_b32 v{t1}, v{t1}, v{t2}")
    c(f"v_lshlrev_b32 v{t1}, 4, v{t1}")
    c(f"v_lshl_add_u32 v{t1}, v{t0}, 8, v{t1}")
    c(f"v_and_b32 v{t2}, 1, v{vl}")
    c(f"v_lshl_add_u32 v{vB}, v{t2}, 3, v{t1}")
    c(f"v_xor_b32 v{vB+1}, 64, v{vB}")
    c(f"v_add_u32 v{vB+2}, 40960, v{vB}")
    c(f"v_add_u32 v{vB+3}, 40960, v{vB+1}")
    c(f"v_lshrrev_b32 v{t1}, 5, v{vl}")
    c(f"s_lshl_b32 s24, s{sw}, 2")
    c(f"v_add_u32 v{t1}, s24, v{t1}")
    c(f"v_xor_b32 v{t1}, v{t1}, v{vl}")
    c(f"v_and_b32 v{t1}, 15, v{t1}")
    c(f"v_lshlrev_b32 v{t1}, 4, v{t1}")
    c(f"v_and_b32 v{t2}, 31, v{vl}")
    c(f"v_lshl_add_u32 v{t1}, v{t2}, 8, v{t1}")
    c(f"v_add_u32 v{vxr}, {XO}, v{t1}")
    c(f"v_lshlrev_b32 v{vst}, 4, v{vl}")
    c(f"s_mul_i32 s24, s{srow}, {80*1024}")
    c(f"s_lshl_b32 s25, s26, 11")
    c(f"s_add_u32 s24, s24, s25")
    c(f"s_add_u32 s24, s24, {WS_HC}")
    k.stamp(0)
    shadow = []
    for b in range(8 - NSH, 8): shadow += gblock(b, True)
    def rd(kk):
        sl = kk % 3
        hi = 2 if kk >= 20 else 0
        off = (kk % 20) * 2048
        for nt in range(2):
            for z in range(2):
                b = vfb + sl*8 + nt*4 + 2*z
                k(f"ds_read_b64_tr_b16 v[{b}:{b+1}], v{vB+hi+nt} offset:{off + z*1024}")
    k("s_barrier"); k.stamp(2); rd(0); rd(1)
    tot = len(shadow)
    for kk in range(40):
        nk = kk + 2
        if nk < 40:
            if nk % 8 == 0: k("s_barrier")
            rd(nk)
            k("s_waitcnt lgkmcnt(8)")
        elif nk == 40: k("s_waitcnt lgkmcnt(4)")
        else: k("s_waitcnt lgkmcnt(0)")
        sl = kk % 3
        if kk % 5 == 0 and kk // 5 >= 8 - NSH:
            done = tot - len(shadow)
            need = sum(len(gblock(b, True)) for b in range(8 - NSH, kk // 5 + 1))
            assert done >= need, (kk, done, need)
        for nt in range(2):
            fb = vfb + sl*8 + nt*4
            cs = f"v[{vacc+16*nt}:{vacc+16*nt+15}]" if kk else "0"
            k(f"v_mfma_f32_32x32x16_bf16 v[{vacc+16*nt}:{vacc+16*nt+15}], v[{vG+4*kk}:{vG+4*kk+3}], v[{fb}:{fb+3}], {cs}")
            for _ in range(SHP):
                if shadow: k(shadow.pop(0))
    assert not shadow
    k.stamp(3)
    k("s_waitcnt vmcnt(0)")
    k("s_barrier")
    vx = vG; vu = vG + 16; vo = vG + 48; vxr2 = vG + 64; vsc = vG + 66; vmm = vG + 68; vsq = vG + 72
    k(f"v_xor_b32 v{vxr2}, 32, v{vxr}")
    for nt in range(2):
        k(f"ds_read_b128 v[{vx+8*nt}:{vx+8*nt+3}], v{vxr} offset:{8192*nt}")
        k(f"ds_read_b128 v[{vx+8*nt+4}:{vx+8*nt+7}], v{vxr2} offset:{8192*nt}")
    k(f"v_mov_b32 v{vsc}, {fh(2/(2048*640))}")
    for nt in range(2):
        k(f"v_xor_b32 v{vmm+2*nt}, 0x80000000, v{vm+nt}")
    k("s_waitcnt lgkmcnt(0)")
    for nt in range(2):
        for q in range(2):
            xb = vx + 8*nt + 4*q; ub = vu + 8*(2*nt+q); ab = vacc + 16*nt + 8*q; ob = vo + 4*(2*nt+q)
            for z in range(4):
                k(f"v_lshlrev_b32 v{ub+2*z}, 16, v{xb+z}")
                k(f"v_and_b32 v{ub+2*z+1}, 0xffff0000, v{xb+z}")
            for z in range(4):
                k(f"v_pk_add_f32 v[{ub+2*z}:{ub+2*z+1}], v[{ub+2*z}:{ub+2*z+1}], v[{vmm+2*nt}:{vmm+2*nt+1}] op_sel_hi:[1,0]")
            for z in range(4):
                k(f"v_pk_fma_f32 v[{ub+2*z}:{ub+2*z+1}], v[{ab+2*z}:{ab+2*z+1}], v[{vsc}:{vsc+1}], v[{ub+2*z}:{ub+2*z+1}] op_sel_hi:[1,0,1]")
            for z in range(4):
                k(f"v_cvt_pk_bf16_f32 v{ob+z}, v{ub+2*z}, v{ub+2*z+1}")
            k(f"s_add_u32 s25, s24, {(nt*40 + q)*1024}")
            k(f"buffer_store_dwordx4 v[{ob}:{ob+3}], v{vst}, s[12:15], s25 offen")
            for z in range(4):
                if q == 0 and z == 0: k(f"v_pk_mul_f32 v[{vsq+2*nt}:{vsq+2*nt+1}], v[{ub}:{ub+1}], v[{ub}:{ub+1}]")
                else: k(f"v_pk_fma_f32 v[{vsq+2*nt}:{vsq+2*nt+1}], v[{ub+2*z}:{ub+2*z+1}], v[{ub+2*z}:{ub+2*z+1}], v[{vsq+2*nt}:{vsq+2*nt+1}]")
    k(f"v_add_f32 v{vsq}, v{vsq}, v{vsq+1}")
    k(f"v_add_f32 v{vsq+2}, v{vsq+2}, v{vsq+3}")
    k(f"s_mul_i32 s24, s{srow}, {20*256}")
    k(f"s_lshl_b32 s25, s26, 8")
    k(f"s_add_u32 s24, s24, s25")
    k(f"s_add_u32 s24, s24, {WS_SQ}")
    k(f"v_permlane32_swap_b32 v{vsq}, v{vsq+2}")
    k(f"v_lshlrev_b32 v{t1}, 2, v{vl}")
    k("s_nop 0")
    k(f"v_add_f32 v{vsq}, v{vsq}, v{vsq+2}")
    k(f"buffer_store_dword v{vsq}, v{t1}, s[12:15], s24 offen")
    k("s_endpgm")
    k.lab(PROD)
    B = Alloc(t2 + 1)
    vdma = B(); vxd = B(4)
    k(f"v_lshrrev_b32 v{t0}, 4, v{vl}")
    k(f"v_lshlrev_b32 v{t1}, 2, v{t0}")
    k(f"v_xor_b32 v{t1}, v{t1}, v{vl}")
    k(f"v_and_b32 v{t1}, 15, v{t1}")
    k(f"v_lshrrev_b32 v{t2}, 3, v{t1}")
    k(f"v_and_b32 v{t1}, 7, v{t1}")
    k(f"v_lshlrev_b32 v{t1}, 4, v{t1}")
    k(f"v_lshl_add_u32 v{t1}, v{t2}, 12, v{t1}")
    k(f"v_lshl_add_u32 v{vdma}, v{t0}, 13, v{t1}")
    k(f"s_lshl_b32 s19, s{srow}, 7")
    k(f"s_lshl_b32 s20, s{sw}, 16")
    k(f"s_add_u32 s19, s19, s20")
    k(f"s_add_u32 s19, s19, {WS_UT}")
    k(f"s_lshl_b32 s20, s{sw}, 11")
    k("s_waitcnt lgkmcnt(0)")
    k.srd(12, 6, WS_END)
    k.srd(8, 4, 2621440)
    for c in range(10):
        for i in range(2):
            k(f"s_add_u32 m0, s20, {c*8192 + i*1024}")
            k(f"s_add_u32 s22, s19, {c*8*32768 + i*32768}")
            k(f"buffer_load_dwordx4 v{vdma}, s[12:15], s22 offen lds")
    k(f"v_xor_b32 v{t1}, v{t0}, v{vl}")
    k(f"v_and_b32 v{t1}, 15, v{t1}")
    k(f"v_lshlrev_b32 v{t1}, 4, v{t1}")
    k(f"v_mul_u32_u24 v{t2}, 1280, v{t0}")
    for i in range(4):
        k(f"v_xor_b32 v{vxd+i}, {64*i}, v{t1}")
        k(f"v_add_u32 v{vxd+i}, v{vxd+i}, v{t2}")
    k(f"s_lshl_b32 s22, s{srow}, 2")
    k(f"s_add_u32 s22, s22, s{sw}")
    k(f"s_mul_i32 s21, s22, {16*1280}")
    k(f"s_lshl_b32 s23, s{scol}, 8")
    k(f"s_add_u32 s21, s21, s23")
    k(f"s_lshl_b32 s23, s{sw}, 12")
    for i in range(4):
        k(f"s_add_u32 m0, s23, {XO + i*1024}")
        k(f"s_add_u32 s22, s21, {4*i*1280}")
        k(f"buffer_load_dwordx4 v{vxd+i}, s[8:11], s22 offen lds")
    k.stamp(0)
    for p in range(5):
        k(f"s_waitcnt vmcnt({20-4*p})")
        k("s_barrier")
        if p == 0: k.stamp(1)
    k("s_waitcnt vmcnt(0)")
    k("s_barrier")
    k.stamp(3)
    k("s_endpgm")
    k.lab(SIDE)
    prep_job(k, label, 0, END, NW=8)
    k.lab(END)
    k("s_endpgm")
    return k
if __name__ == "__main__":
    from k1 import make_k1
    from k2 import make_k2
    build([make_k1(), make_k2(), make_k3()], "k123.s")
```

```python
from common import *
def make_k4(label="k4_kernel", NS=7, var="", P=4, rot=0, pf=1, nxt=None):
    ST = 20480
    k = Kern(label, grid=256, block=512, lds=NS*ST, vgpr=200)
    END = f"{label}_end"
    k("s_cmp_ge_u32 s2, 256")
    k(f"s_cbranch_scc1 {END}")
    k("s_load_dwordx2 s[6:7], s[0:1], 72")
    if pf: k.prefetch(nxt=nxt)
    A = Alloc(1)
    vl = A(); t0 = A(); t1 = A()
    vdma = A(); vA = A(3); vB = A(3); vst = A()
    vr = A(8, 2); vt = A(20, 2)
    vacc = A(96, 4); fA = A(24, 4); fB = A(16, 4)
    k.vgpr = A.n
    vm = VM(k); vmh = [vm]
    sw, swm, swn, srow, sf = 16, 17, 18, 19, 20
    k(f"v_and_b32 v{vl}, 63, v0")
    k(f"v_lshrrev_b32 v{t0}, 6, v0")
    k("s_and_b32 s22, s2, 7")
    k("s_lshr_b32 s23, s2, 3")
    k(f"v_readfirstlane_b32 s21, v{t0}")
    k(f"s_and_b32 s{sw}, s21, 3")
    k("s_and_b32 s24, s22, 3")
    k("s_lshl_b32 s24, s24, 2")
    k("s_and_b32 s25, s23, 3")
    k(f"s_add_u32 s{sf}, s24, s25")
    k("s_lshr_b32 s24, s22, 2")
    k("s_lshl_b32 s24, s24, 3")
    k("s_lshr_b32 s25, s23, 2")
    k(f"s_add_u32 s{srow}, s24, s25")
    k(f"s_lshr_b32 s{swm}, s{sw}, 1")
    k(f"s_and_b32 s{swn}, s{sw}, 1")
    k(f"v_lshlrev_b32 v{vdma}, 4, v{vl}")
    sA, sB, mA, mB, sQ = 26, 27, 28, 29, 30
    k(f"s_mul_i32 s{sA}, s{sf}, {40*6144}")
    k(f"s_mul_i32 s22, s{sw}, 3072")
    k(f"s_add_u32 s{sA}, s{sA}, s22")
    k(f"s_add_u32 s{sA}, s{sA}, {WS_WA}")
    k(f"s_lshl_b32 s23, s{srow}, 2")
    k(f"s_add_u32 s23, s23, s{sw}")
    k(f"s_mul_i32 s{sB}, s23, 40960")
    k(f"s_add_u32 s{sB}, s{sB}, {WS_HC}")
    k(f"s_mov_b32 s{mA}, s22")
    k(f"s_lshl_b32 s{mB}, s{sw}, 11")
    k(f"s_add_u32 s{mB}, s{mB}, 12288")
    k(f"s_lshl_b32 s23, s{srow}, 1")
    k(f"s_add_u32 s23, s23, s{swn}")
    k(f"s_mul_i32 s{sQ}, s23, {20*256}")
    k(f"s_add_u32 s{sQ}, s{sQ}, {WS_SQ}")
    k(f"v_lshlrev_b32 v{t1}, 2, v{vl}")
    k("s_waitcnt lgkmcnt(0)")
    k.srd(8, 6, WS_END)
    scur = 34
    def dma_items(c):
        sl = c % NS
        def mk(i):
            def f():
                if "nodma" in var: return
                if i == 0:
                    k(f"s_add_u32 m0, s{mA}, {sl*ST}")
                    k(f"s_mul_i32 s22, s{scur}, 12288")
                    k(f"s_add_u32 s22, s22, s{sA}")
                if i == 3:
                    k(f"s_add_u32 m0, s{mB}, {sl*ST}")
                    k(f"s_lshl_b32 s22, s{scur}, 11")
                    k(f"s_add_u32 s22, s22, s{sB}")
                o = i if i < 3 else i - 3
                vmh[0].issue(f"buffer_load_dwordx4 v{vdma}, s[8:11], s22 offen offset:{1024*o} lds", ("c", c))
                if i == 4:
                    k(f"s_add_u32 s{scur}, s{scur}, 1")
                    k(f"s_cmp_eq_u32 s{scur}, 20")
                    k(f"s_cselect_b32 s{scur}, 0, s{scur}")
            return f
        return [mk(i) for i in range(5)]
    if rot:
        k("s_lshr_b32 s23, s2, 3")
        k("s_and_b32 s24, s23, 3")
        k("s_mul_i32 s24, s24, 5")
        k("s_lshr_b32 s23, s23, 2")
        k("s_mul_i32 s23, s23, 5")
        k("s_lshr_b32 s23, s23, 1")
        k(f"s_add_u32 s{scur}, s23, s24")
        k(f"s_cmp_ge_u32 s{scur}, 20")
        k(f"s_cselect_b32 s24, 20, 0")
        k(f"s_sub_u32 s{scur}, s{scur}, s24")
    else:
        k(f"s_mov_b32 s{scur}, 0")
    PROD = f"{label}_prod"
    k("s_cmp_ge_u32 s21, 4")
    k(f"s_cbranch_scc1 {PROD}")
    for j in range(20):
        vm.issue(f"buffer_load_dword v{vt+j}, v{t1}, s[8:11], s{sQ} offen offset:{256*j}" if j < 16 else
                 f"buffer_load_dword v{vt+j}, v{t1}, s[8:11], s31 offen offset:{256*(j-16)}", "sq")
        if j == 0: k(f"s_add_u32 s31, s{sQ}, 4096")
    setup = []
    setup += [f"s_mul_i32 s23, s{swm}, 3072", f"v_add_u32 v{vA}, s23, v{vdma}", f"s_lshl_b32 s23, s{swn}, 12", f"s_add_u32 s23, s23, 12288", f"v_add_u32 v{vB}, s23, v{vdma}"]
    for i in range(1, 3):
        setup += [f"v_add_u32 v{vA+i}, {i*3*ST}, v{vA}", f"v_add_u32 v{vB+i}, {i*3*ST}, v{vB}"]
    setup += [f"v_bfe_u32 v{t0}, v{vl}, 4, 1", f"v_mul_u32_u24 v{t0}, 49152, v{t0}", f"v_lshrrev_b32 v{vst}, 5, v{vl}",
              f"v_lshl_add_u32 v{t0}, v{vst}, 8, v{t0}", f"v_and_b32 v{vst}, 15, v{vl}", f"v_lshl_add_u32 v{vst}, v{vst}, 4, v{t0}"]
    for t in setup: k(t)
    if "clk" not in var: k.stamp(0)
    def rd_items(kk):
        if "nord" in var: return []
        c, k2 = kk // 2, kk % 2
        sl = c % NS; st, so = sl // 3, (sl % 3) * ST
        b = kk & 1
        L = []
        L.append(f"ds_read_b128 v[{fA+12*b}:{fA+12*b+3}], v{vA+st} offset:{so + k2*6144}")
        for nt in range(2):
            L.append(f"ds_read_b128 v[{fB+8*b+4*nt}:{fB+8*b+4*nt+3}], v{vB+st} offset:{so + nt*2048 + k2*1024}")
        for i in range(1, 3):
            L.append(f"ds_read_b128 v[{fA+12*b+4*i}:{fA+12*b+4*i+3}], v{vA+st} offset:{so + k2*6144 + i*1024}")
        return L
    def wait_chunk(c):
        k("s_barrier")
    wait_chunk(0)
    if "clk" in var: k.stamp(10)
    k.stamp(2)
    for t in rd_items(0): k(t)
    pend = []
    nextc = NS
    rl0 = vr; rl1 = vr + 4
    extra = []
    for kk in range(40):
        c = kk // 2
        b = kk & 1
        k("s_waitcnt lgkmcnt(0)")
        if kk & 1 and kk + 1 < 40:
            wait_chunk(c + 1)
        mf = []
        for i in range(3):
            for nt in range(2):
                d = vacc + 16*(2*i + nt)
                cs = f"v[{d}:{d+15}]" if kk else "0"
                mf.append(f"v_mfma_f32_32x32x16_bf16 v[{d}:{d+15}], v[{fA+12*b+4*i}:{fA+12*b+4*i+3}], v[{fB+8*b+4*nt}:{fB+8*b+4*nt+3}], {cs}")
        if "nomfma" in var: mf = ["" for _ in mf]
        rds = rd_items(kk + 1) if kk + 1 < 40 else []
        ndma = 2 if (kk & 1) else 3
        dm = pend[:ndma]; pend = pend[ndma:]
        if kk == 6:
            def w(): vm.wait("sq")
            extra = [w] + [f"v_add_f32 v{vt+2*z}, v{vt+2*z}, v{vt+2*z+1}" for z in range(10)]
            extra += [f"v_add_f32 v{vt+4*z}, v{vt+4*z}, v{vt+4*z+2}" for z in range(5)]
            extra += [f"v_add_f32 v{vt}, v{vt}, v{vt+4}", f"v_add_f32 v{vt+8}, v{vt+8}, v{vt+12}", f"v_add_f32 v{vt}, v{vt}, v{vt+16}", f"v_add_f32 v{vt}, v{vt}, v{vt+8}",
                      f"v_mul_f32 v{vt}, {fh(1/640)}, v{vt}", f"v_add_f32 v{vt}, {fh(1e-5)}, v{vt}",
                      f"v_mov_b32 v{vt+1}, v{vt}", "s_nop 1", f"v_permlane32_swap_b32 v{vt}, v{vt+1}", "s_nop 1",
                      f"v_rsq_f32 v{vt+2}, v{vt}", f"v_rsq_f32 v{vt+3}, v{vt+1}", "s_nop 0",
                      f"v_mul_f32 v{rl0}, {fh(-1.4426950408889634)}, v{vt+2}", f"v_mul_f32 v{rl1}, {fh(-1.4426950408889634)}, v{vt+3}",
                      f"v_mov_b32 v{rl0+2}, v{vt}", f"v_mov_b32 v{rl1+2}, v{vt+1}"]
        slots = [[] for _ in range(6)]
        for j, t in enumerate(rds): slots[[0,0,1,1,2][j]].append(t)
        for j, t in enumerate(dm): slots[3 + j].append(t)
        ne = 0
        for i in range(6):
            if mf[i]: k(mf[i])
            for t in slots[i]:
                if callable(t): t()
                else: k(t)
            for _ in range(3):
                if extra:
                    t = extra.pop(0)
                    if callable(t): t()
                    else: k(t)
    assert not pend and not extra
    k.stamp(3)
    if "clk" in var: k.stamp(11)
    k(f"s_lshl_b32 s23, s{srow}, 2")
    k(f"s_lshl_b32 s24, s{swn}, 1")
    k(f"s_add_u32 s23, s23, s24")
    k(f"s_mul_i32 s23, s23, {96*1024}")
    k(f"s_add_u32 s23, s23, {WS_HF}")
    k(f"s_mul_i32 s24, s{sf}, 6")
    k(f"s_mul_i32 s25, s{swm}, 3")
    k(f"s_add_u32 s24, s24, s25")
    k(f"s_lshl_b32 s24, s24, 9")
    k(f"s_add_u32 s23, s23, s24")
    k("s_nop 3")
    tiles = [(i, nt) for i in range(3) for nt in range(2)]
    def stA(t):
        i, nt = tiles[t]; d = vacc + 16*(2*i + nt); rl = vr + 4*nt; e = vt + 8*(t & 1)
        L = [f"v_pk_mul_f32 v[{e+2*z}:{e+2*z+1}], v[{d+2*z}:{d+2*z+1}], v[{rl}:{rl+1}] op_sel_hi:[1,0]" for z in range(4)]
        L += [f"v_exp_f32 v{e+z}, v{e+z}" for z in range(8)]
        return L
    def stB(t):
        i, nt = tiles[t]; d = vacc + 16*(2*i + nt); r2 = vr + 4*nt + 2; e = vt + 8*(t & 1)
        L = [f"v_pk_fma_f32 v[{e+2*z}:{e+2*z+1}], v[{e+2*z}:{e+2*z+1}], v[{r2}:{r2+1}], v[{r2}:{r2+1}] op_sel_hi:[1,0,0]" for z in range(4)]
        L += [f"v_pk_mul_f32 v[{d+2*z}:{d+2*z+1}], v[{d+2*z}:{d+2*z+1}], v[{d+8+2*z}:{d+8+2*z+1}]" for z in range(4)]
        L += [f"v_rcp_f32 v{e+z}, v{e+z}" for z in range(8)]
        L += ["s_nop 0"]
        L += [f"v_pk_mul_f32 v[{d+2*z}:{d+2*z+1}], v[{d+2*z}:{d+2*z+1}], v[{e+2*z}:{e+2*z+1}]" for z in range(4)]
        L += [f"v_cvt_pk_bf16_f32 v{d+8+z}, v{d+2*z}, v{d+2*z+1}" for z in range(4)]
        L += [f"s_add_u32 s25, s23, {nt*96*1024 + i*512}", f"buffer_store_dwordx4 v[{d+8}:{d+11}], v{vst}, s[8:11], s25 offen"]
        return L
    for t in stA(0): k(t)
    for t in range(6):
        if t + 1 < 6:
            for x in stA(t+1): k(x)
        else: k("s_nop 0")
        for x in stB(t): k(x)
    k("s_endpgm")
    k.lab(PROD)
    vm = VM(k); vmh[0] = vm
    nxt = 0
    for c in range(P):
        for f in dma_items(c): f()
        nxt += 1
    k.stamp(0)
    for c in range(20):
        if "nodma" not in var: vm.wait(("c", c))
        k("s_barrier")
        if c == 0: k.stamp(1)
        n = 0
        while nxt < 20 and nxt <= c - 1 + NS and n < 2 and nxt <= c + NS - 1:
            for f in dma_items(nxt): f()
            nxt += 1; n += 1
            if nxt - c > NS - 1: break
    assert nxt == 20
    k.stamp(3)
    k.lab(END)
    k("s_endpgm")
    return k
```

```python
from common import *
def make_k5(label="k5_kernel", NB=4, pf=1, nxt=None):
    k = Kern(label, grid=256, block=256, lds=61440, vgpr=240)
    END = f"{label}_end"
    k("s_cmp_ge_u32 s2, 256")
    k(f"s_cbranch_scc1 {END}")
    k("s_load_dwordx2 s[6:7], s[0:1], 72")
    k("s_load_dwordx2 s[4:5], s[0:1], 56")
    if pf: k.prefetch(nxt=nxt)
    A = Alloc(1)
    vl = A(); t0 = A(); t1 = A(); t2 = A()
    vld = A(); vw = A(); vrd = A(); vhc = A(); vo = A(); vm = A()
    vh = A(10, 2)
    vacc = A(80, 4); fr = A(36*NB, 4)
    k.vgpr = A.n
    assert A.n <= 256
    sw, ssb, sdb = 16, 17, 18
    k(f"v_and_b32 v{vl}, 63, v0")
    k(f"v_lshrrev_b32 v{t0}, 6, v0")
    k("s_and_b32 s22, s2, 7")
    k("s_lshr_b32 s23, s2, 3")
    k(f"v_readfirstlane_b32 s{sw}, v{t0}")
    k("s_lshl_b32 s22, s22, 2")
    k("s_lshr_b32 s24, s23, 3")
    k(f"s_add_u32 s{ssb}, s22, s24")
    k(f"s_and_b32 s{sdb}, s23, 7")
    k(f"v_lshlrev_b32 v{vld}, 4, v{vl}")
    sA, sB = 26, 27
    k(f"s_mul_i32 s{sA}, s{sw}, 40")
    k(f"s_mul_i32 s22, s{sdb}, 5")
    k(f"s_add_u32 s{sA}, s{sA}, s22")
    k(f"s_lshl_b32 s{sA}, s{sA}, 10")
    k(f"s_add_u32 s{sA}, s{sA}, {WS_WB}")
    k(f"s_mul_i32 s{sB}, s{ssb}, {4*48}")
    k(f"s_add_u32 s{sB}, s{sB}, s{sw}")
    k(f"s_lshl_b32 s{sB}, s{sB}, 10")
    k(f"s_add_u32 s{sB}, s{sB}, {WS_HF}")
    k("s_waitcnt lgkmcnt(0)")
    k.srd(8, 6, WS_END)
    k.srd(12, 4, 2621440)
    def ld(i):
        b = fr + 36*(i % NB)
        k(f"s_add_u32 s22, s{sA}, {i*4*40*1024}")
        for mt in range(4):
            k(f"buffer_load_dwordx4 v[{b+4*mt}:{b+4*mt+3}], v{vld}, s[8:11], s22 offen offset:{1024*mt}")
        k(f"s_add_u32 s22, s22, 4096")
        k(f"buffer_load_dwordx4 v[{b+16}:{b+19}], v{vld}, s[8:11], s22 offen")
        for nt in range(4):
            k(f"s_add_u32 s22, s{sB}, {i*4*1024 + nt*48*1024}")
            k(f"buffer_load_dwordx4 v[{b+20+4*nt}:{b+23+4*nt}], v{vld}, s[8:11], s22 offen")
    for i in range(NB-1): ld(i)
    k.stamp(0)
    k(f"v_lshrrev_b32 v{t0}, 4, v{vl}")
    k(f"v_and_b32 v{t1}, 15, v{vl}")
    k(f"v_lshrrev_b32 v{t2}, 1, v{t0}")
    k(f"v_lshlrev_b32 v{t2}, 9, v{t2}")
    k(f"v_lshl_add_u32 v{t2}, v{t1}, 4, v{t2}")
    k(f"v_and_b32 v{vhc}, 1, v{t0}")
    k(f"v_lshl_add_u32 v{vhc}, v{vhc}, 3, v{t2}")
    k(f"s_lshl_b32 s22, s{ssb}, 1")
    k(f"s_lshr_b32 s23, s{sw}, 1")
    k(f"s_add_u32 s22, s22, s23")
    k(f"s_mul_i32 s22, s22, 40")
    k(f"s_mul_i32 s23, s{sdb}, 5")
    k(f"s_add_u32 s22, s22, s23")
    k(f"s_lshl_b32 s22, s22, 10")
    k(f"s_and_b32 s23, s{sw}, 1")
    k(f"s_lshl_b32 s23, s23, 8")
    k(f"s_add_u32 s22, s22, s23")
    k(f"s_add_u32 s28, s22, {WS_HC}")
    k(f"v_lshlrev_b32 v{vm}, 2, v{t1}")
    k(f"s_lshl_b32 s22, s{ssb}, 2")
    k(f"s_add_u32 s22, s22, s{sw}")
    k(f"s_lshl_b32 s23, s22, 6")
    k(f"s_add_u32 s29, s23, {WS_MS}")
    k(f"v_mul_u32_u24 v{vo}, 1280, v{t1}")
    k(f"v_lshl_add_u32 v{vo}, v{t0}, 3, v{vo}")
    k(f"s_mul_i32 s30, s22, {16*1280}")
    k(f"s_mul_i32 s23, s{sdb}, 160")
    k(f"s_add_u32 s30, s30, s23")
    for i in range(80): k(f"v_mov_b32 v{vacc+i}, 0")
    def acc(mt, nt): return vacc + 4*(5*nt + mt)
    for i in range(12):
        if i + NB - 1 < 12:
            ld(i + NB - 1)
            k(f"s_waitcnt vmcnt({9*(NB-1)})")
        else:
            k(f"s_waitcnt vmcnt({9*(11-i)})")
        if i == 0: k.stamp(1)
        b = fr + 36*(i % NB)
        for nt in range(4):
            for mt in range(5):
                d = acc(mt, nt)
                k(f"v_mfma_f32_16x16x32_bf16 v[{d}:{d+3}], v[{b+4*mt}:{b+4*mt+3}], v[{b+20+4*nt}:{b+23+4*nt}], v[{d}:{d+3}]")
    k.stamp(2)
    for mt in range(5):
        k(f"s_add_u32 s22, s28, {mt*1024}")
        k(f"buffer_load_dwordx2 v[{vh+2*mt}:{vh+2*mt+1}], v{vhc}, s[8:11], s22 offen")
    k(f"buffer_load_dword v{vm}, v{vm}, s[8:11], s29 offen")
    k("s_nop 4")
    fin = k.newlab("fin")
    labs = [k.newlab("w") for _ in range(4)]
    for w in range(1, 4):
        k(f"s_cmp_eq_u32 s{sw}, {w}")
        k(f"s_cbranch_scc1 {labs[w]}")
    res = fr
    for w in range(4):
        k.lab(labs[w])
        for nt in range(4):
            if nt == w: continue
            slot = (w - nt - 1) & 3
            for mt in range(5):
                d = acc(mt, nt)
                k(f"ds_write_b128 v{vld}, v[{d}:{d+3}] offset:{(nt*3 + slot)*5120 + mt*1024}")
        for mt in range(5):
            d = acc(mt, w)
            for q in range(4): k(f"v_mov_b32 v{res+4*mt+q}, v{d+q}")
        k(f"v_add_u32 v{vw}, {w*3*5120}, v{vld}")
        if w < 3: k(f"s_branch {fin}")
    k.lab(fin)
    k("s_waitcnt lgkmcnt(0)")
    k("s_barrier")
    k.stamp(3)
    tb = fr + 20
    for sl in range(3):
        for mt in range(5):
            k(f"ds_read_b128 v[{tb+20*sl+4*mt}:{tb+20*sl+4*mt+3}], v{vw} offset:{sl*5120 + mt*1024}")
    for sl in range(3):
        k(f"s_waitcnt lgkmcnt({10-5*sl})")
        for z in range(10):
            k(f"v_pk_add_f32 v[{res+2*z}:{res+2*z+1}], v[{res+2*z}:{res+2*z+1}], v[{tb+20*sl+2*z}:{tb+20*sl+2*z+1}]")
    k("s_waitcnt vmcnt(0)")
    u = tb
    for mt in range(5):
        for z in range(2):
            k(f"v_lshlrev_b32 v{u+4*mt+2*z}, 16, v{vh+2*mt+z}")
            k(f"v_and_b32 v{u+4*mt+2*z+1}, 0xffff0000, v{vh+2*mt+z}")
    k(f"v_mov_b32 v{t0}, v{vm}")
    mm = A(2, 2); k.vgpr = max(k.vgpr, A.n)
    k(f"v_mov_b32 v{mm}, v{vm}")
    for z in range(10):
        k(f"v_pk_add_f32 v[{u+2*z}:{u+2*z+1}], v[{u+2*z}:{u+2*z+1}], v[{mm}:{mm+1}] op_sel_hi:[1,0]")
    for z in range(10):
        k(f"v_pk_add_f32 v[{res+2*z}:{res+2*z+1}], v[{res+2*z}:{res+2*z+1}], v[{u+2*z}:{u+2*z+1}]")
    for mt in range(5):
        for z in range(2):
            k(f"v_cvt_pk_bf16_f32 v{u+2*mt+z}, v{res+4*mt+2*z}, v{res+4*mt+2*z+1}")
    for mt in range(5):
        k(f"buffer_store_dwordx2 v[{u+2*mt}:{u+2*mt+1}], v{vo}, s[12:15], s30 offen offset:{32*mt}")
    k.lab(END)
    k("s_endpgm")
    return k
```

```python
import sys
from k1 import make_k1
from k2 import make_k2
from k3 import make_k3
from k4 import make_k4
from k5 import make_k5
from gl import *
def kset(pf=2):
    n = (lambda x: [x]) if pf >= 2 else (lambda x: None)
    p = 1 if pf else 0
    return [make_k1(pf=p, nxt=n("k2_kernel")), make_k2(pf=p, nxt=n("k3_kernel")), make_k3(pf=p, nxt=n("k4_kernel")), make_k4(pf=p, nxt=n("k5_kernel")), make_k5(pf=p)]
if __name__ == "__main__":
    out = sys.argv[1] if len(sys.argv) > 1 else "all.s"
    pf = int(sys.argv[2]) if len(sys.argv) > 2 else 2
    build(kset(pf), out)
```

```python
from gl import *
WS_PT = 0x000000
WS_WT = 0x280000
WS_UT = 0x500000
WS_HC = 0x780000
WS_HF = 0xA00000
WS_MS = 0x1000000
WS_WA = 0x1100000
WS_WB = 0x1500000
WS_SQ = 0x1080000
WS_FL = 0x1700000
WS_FL2 = 0x1720000
WS_END = 0x1740000
class Cap:
    def __init__(self): self.L = []
    def __call__(self, t):
        for ln in t.strip('\n').split('\n'): self.L.append(ln.strip())
class Alloc:
    def __init__(self, start=0): self.n = start
    def __call__(self, cnt=1, align=1):
        self.n = (self.n + align - 1) // align * align
        r = self.n; self.n += cnt
        return r
def gen_cos_seq(k, dst0, ndw, T, c2, rev0_expr_regs, step, seed_every):
    pass
def cos_block(k, dst0, ndw, vrev, vdl, c2, t, halve_last=False, nopk=False):
    P = [t, t+2, t+4]; sc = t+6
    k(f"v_add_f32 v{sc}, v{vrev}, v{vdl}")
    k(f"v_cos_f32 v{P[0]}, v{vrev}")
    k(f"v_cos_f32 v{P[0]+1}, v{sc}")
    k(f"v_add_f32 v{sc+1}, v{sc}, v{vdl}")
    k(f"v_add_f32 v{sc}, v{sc+1}, v{vdl}")
    k(f"v_cos_f32 v{P[1]}, v{sc+1}")
    k(f"v_cos_f32 v{P[1]+1}, v{sc}")
    k(f"v_cvt_pk_bf16_f32 v{dst0}, v{P[0]}, v{P[0]+1}")
    k(f"s_nop 0")
    k(f"v_cvt_pk_bf16_f32 v{dst0+1}, v{P[1]}, v{P[1]+1}")
    a_, b_, c_ = 0, 1, 2
    for i in range(2, ndw):
        if nopk:
            for z in range(2): k(f"v_fma_f32 v{P[c_]+z}, v{c2}, v{P[b_]+z}, -v{P[a_]+z}")
        else:
            k(f"v_pk_fma_f32 v[{P[c_]}:{P[c_]+1}], v[{c2}:{c2+1}], v[{P[b_]}:{P[b_]+1}], v[{P[a_]}:{P[a_]+1}] op_sel_hi:[0,1,1] neg_lo:[0,0,1] neg_hi:[0,0,1]")
        if halve_last and i == ndw-1:
            k(f"v_mul_f32 v{P[c_]+1}, 0.5, v{P[c_]+1}")
        k(f"v_cvt_pk_bf16_f32 v{dst0+i}, v{P[c_]}, v{P[c_]+1}")
        a_, b_, c_ = b_, c_, a_

def wg_rowcol5(k, srow, scol, sid=2):
    k(f"s_and_b32 s22, s{sid}, 7")
    k(f"s_lshr_b32 s23, s{sid}, 3")
    k(f"s_mul_i32 s24, s23, 52")
    k(f"s_lshr_b32 s24, s24, 8")
    k(f"s_mul_i32 s25, s24, 5")
    k(f"s_sub_u32 s{scol}, s23, s25")
    k(f"s_lshl_b32 s24, s24, 3")
    k(f"s_add_u32 s{srow}, s24, s22")

def prep_job(k, label, nbase, END, NW=4, wsub=0, NI=None):
    W2 = f"{label}_w2"
    k("s_load_dwordx2 s[32:33], s[0:1], 32")
    k("s_load_dwordx2 s[34:35], s[0:1], 40")
    k("s_load_dwordx2 s[36:37], s[0:1], 48")
    k("s_load_dwordx2 s[38:39], s[0:1], 72")
    k("v_and_b32 v1, 63, v0")
    k("v_lshrrev_b32 v2, 6, v0")
    k(f"s_sub_u32 s16, s2, {nbase}")
    k("v_readfirstlane_b32 s17, v2")
    if wsub: k(f"s_sub_u32 s17, s17, {wsub}")
    NI = NI or 16 // NW
    nWG = 1440 // (NW*NI); nWA = nWG*2//3
    k(f"s_cmp_ge_u32 s16, {nWG}")
    k(f"s_cbranch_scc1 {END}")
    LG = {4: 2, 8: 3}[NW]; LI = {4: 2, 2: 1, 1: 0}[NI]
    k(f"s_lshl_b32 s18, s16, {LG}")
    k("s_add_u32 s18, s18, s17")
    k(f"s_lshl_b32 s19, s17, {12+LI}")
    k("v_bfe_u32 v3, v1, 2, 2")
    k("v_and_b32 v4, 3, v1")
    k("v_lshrrev_b32 v5, 4, v1")
    k("v_lshlrev_b32 v10, 4, v1")
    k(f"s_cmp_ge_u32 s16, {nWA}")
    k(f"s_cbranch_scc1 {W2}")
    k("s_mul_i32 s20, s18, 2731")
    k("s_lshr_b32 s20, s20, 16")
    k("s_mul_i32 s21, s20, 24")
    k("s_sub_u32 s21, s18, s21")
    k("v_lshrrev_b32 v6, 3, v1")
    k("v_mul_u32_u24 v6, 3072, v6")
    k("v_and_b32 v7, 7, v1")
    k("v_lshl_add_u32 v6, v7, 4, v6")
    k("s_mul_i32 s22, s20, %d" % (16*NI*3072))
    k("s_lshl_b32 s23, s21, 7")
    k("s_add_u32 s22, s22, s23")
    k("s_waitcnt lgkmcnt(0)")
    k.srd(8, 32, 1966080); k.srd(12, 34, 1966080); k.srd(40, 38, WS_END)
    for i in range(NI):
        for mtx in range(2):
            for hh in range(2):
                k(f"s_add_u32 m0, s19, {i*4096 + mtx*2048 + hh*1024}")
                k(f"s_add_u32 s24, s22, {(16*i + 8*hh)*3072}")
                k(f"buffer_load_dwordx4 v6, s[{8+4*mtx}:{11+4*mtx}], s24 offen lds")
    k.stamp(0)
    k("v_and_b32 v7, 1, v5")
    k("v_lshlrev_b32 v7, 11, v7")
    k("v_lshrrev_b32 v8, 1, v5")
    k("v_lshl_add_u32 v7, v8, 10, v7")
    k("v_lshl_add_u32 v7, v3, 7, v7")
    k("v_and_b32 v8, 1, v4")
    k("v_lshlrev_b32 v8, 1, v8")
    k("v_lshrrev_b32 v9, 1, v4")
    k("v_or_b32 v8, v8, v9")
    k("v_lshl_add_u32 v7, v8, 3, v7")
    k("v_add_u32 v7, s19, v7")
    for i in range(NI):
        if i == 0:
            k("s_waitcnt vmcnt(0)"); k.stamp(1)
        for mt in range(4):
            b = 12 + 4*mt + 16*(i & 1)
            for z in range(2):
                k(f"ds_read_b64_tr_b16 v[{b+2*z}:{b+2*z+1}], v7 offset:{i*4096 + z*512 + mt*32}")
        for mt in range(4):
            b = 12 + 4*mt + 16*(i & 1)
            k("s_lshl_b32 s24, s21, 2")
            k(f"s_add_u32 s24, s24, {mt}")
            k("s_mul_i32 s25, s24, 43")
            k("s_lshr_b32 s25, s25, 8")
            k("s_mul_i32 s26, s25, 6")
            k("s_sub_u32 s24, s24, s26")
            k("s_mul_i32 s25, s25, 40")
            k(f"s_lshl_b32 s26, s20, {LI}")
            k("s_add_u32 s25, s25, s26")
            k(f"s_add_u32 s25, s25, {i}")
            k("s_mul_i32 s25, s25, 6")
            k("s_add_u32 s25, s25, s24")
            k("s_lshl_b32 s25, s25, 10")
            k(f"s_add_u32 s25, s25, {WS_WA}")
            k(f"s_waitcnt lgkmcnt({6-2*mt})")
            k(f"buffer_store_dwordx4 v[{b}:{b+3}], v10, s[40:43], s25 offen")
    k.stamp(3)
    k("s_endpgm")
    k.lab(W2)
    k(f"s_sub_u32 s18, s18, {nWA*NW}")
    k("s_mul_i32 s20, s18, 205")
    k("s_lshr_b32 s20, s20, 11")
    k("s_mul_i32 s21, s20, 10")
    k("s_sub_u32 s21, s18, s21")
    k("v_lshrrev_b32 v6, 3, v1")
    k("v_mul_u32_u24 v6, 1280, v6")
    k("v_and_b32 v7, 7, v1")
    k("v_lshl_add_u32 v6, v7, 4, v6")
    k("s_mul_i32 s22, s20, %d" % (32*NI*1280))
    k("s_lshl_b32 s23, s21, 7")
    k("s_add_u32 s22, s22, s23")
    k("s_waitcnt lgkmcnt(0)")
    k.srd(8, 36, 1966080); k.srd(40, 38, WS_END)
    for i in range(NI):
        for q in range(4):
            k(f"s_add_u32 m0, s19, {i*4096 + q*1024}")
            k(f"s_add_u32 s24, s22, {(32*i + 8*q)*1280}")
            k(f"buffer_load_dwordx4 v6, s[8:11], s24 offen lds")
    k("v_lshlrev_b32 v7, 10, v5")
    k("v_lshl_add_u32 v7, v3, 7, v7")
    k("v_lshl_add_u32 v7, v4, 3, v7")
    k("v_add_u32 v7, s19, v7")
    k("s_waitcnt vmcnt(0)")
    k(f"s_mul_i32 s24, s20, {40*NI}")
    k("s_lshl_b32 s25, s21, 2")
    k("s_add_u32 s24, s24, s25")
    k("s_lshl_b32 s24, s24, 10")
    k(f"s_add_u32 s24, s24, {WS_WB}")
    for i in range(NI):
        for mt in range(4):
            b = 12 + 4*mt + 16*(i & 1)
            for z in range(2):
                k(f"ds_read_b64_tr_b16 v[{b+2*z}:{b+2*z+1}], v7 offset:{i*4096 + z*512 + mt*32}")
        for mt in range(4):
            b = 12 + 4*mt + 16*(i & 1)
            k(f"s_add_u32 s25, s24, {(i*40 + mt)*1024}")
            k(f"s_waitcnt lgkmcnt({6-2*mt})")
            k(f"buffer_store_dwordx4 v[{b}:{b+3}], v10, s[40:43], s25 offen")
    k("s_endpgm")


class VM:
    def __init__(self, k): self.k = k; self.ops = []
    def issue(self, txt, tag):
        self.k(txt); self.ops.append(tag)
    def cnt(self, tag):
        idx = [i for i, t in enumerate(self.ops) if t == tag]
        assert idx, tag
        return len(self.ops) - 1 - idx[-1]
    def wait(self, tag):
        n = self.cnt(tag); assert n <= 63, (tag, n)
        self.k(f"s_waitcnt vmcnt({n})")

def interleave(k, main, fill, per=None, start=0):
    n = len(main); m = len(fill)
    if per is None:
        per = [0]*n
        for j in range(m): per[start + (j*(n-start))//m] += 1
    j = 0
    for i, t in enumerate(main):
        k(t)
        for _ in range(per[i]):
            if j < m:
                f = fill[j]; j += 1
                if callable(f): f()
                else: k(f)
    while j < m:
        f = fill[j]; j += 1
        if callable(f): f()
        else: k(f)
```

```python
from common import *
def make_k1(label="k1_kernel", var="", pf=1, nxt=None, SPL=(3,4,4,4,5), prep=0, wpf=0):
    NSD = 96 if prep else 80
    k = Kern(label, grid=160+NSD, block=512, lds=81920+2048+1024, vgpr=248)
    END = f"{label}_end"; SIDE = f"{label}_side"; PROD = f"{label}_prod"
    k(f"s_cmp_ge_u32 s2, {160+NSD}")
    k(f"s_cbranch_scc1 {END}")
    k("s_load_dwordx2 s[4:5], s[0:1], 0")
    k("s_load_dwordx2 s[6:7], s[0:1], 72")
    if pf: k.prefetch(nxt=nxt)
    k(f"s_cmp_lt_u32 s2, {NSD}")
    k(f"s_cbranch_scc1 {SIDE}")
    RS = 81920
    A = Alloc(1)
    vlane = A(); vt0 = A(); vt1 = A()
    vard = A(8)
    vst = A()
    vrev = A(); vdl = A(); vstep = A(); vc2 = A(2, 2); vtmp = A(8, 2)
    vfa = A(24, 4)
    vacc = A(32, 4)
    vF = A(160, 4)
    assert A.n <= 254, A.n
    sw, srow, scol, sso, sm0 = 16, 17, 18, 19, 20
    k(f"v_and_b32 v{vlane}, 63, v0")
    k(f"v_lshrrev_b32 v{vt0}, 6, v0")
    k(f"s_and_b32 s22, s2, 7")
    k(f"s_lshr_b32 s23, s2, 3")
    k(f"s_sub_u32 s23, s23, {NSD//8}")
    k(f"v_readfirstlane_b32 s21, v{vt0}")
    k(f"s_mul_i32 s24, s23, 52")
    k(f"s_lshr_b32 s24, s24, 8")
    k(f"s_mul_i32 s25, s24, 5")
    k(f"s_sub_u32 s{scol}, s23, s25")
    k(f"s_lshl_b32 s24, s24, 3")
    k(f"s_add_u32 s{srow}, s24, s22")
    k(f"s_and_b32 s{sw}, s21, 3")
    k("s_cmp_ge_u32 s21, 4")
    k(f"s_cbranch_scc1 {PROD}")
    k(f"s_lshl_b32 s22, s{scol}, 2")
    k(f"s_add_u32 s22, s22, s{sw}")
    k(f"s_lshl_b32 s22, s22, 4")
    k(f"s_add_u32 s22, s22, 1")
    k(f"v_and_b32 v{vt0}, 15, v{vlane}")
    k(f"v_add_u32 v{vt0}, s22, v{vt0}")
    k(f"v_cvt_f32_u32 v{vtmp}, v{vt0}")
    k(f"v_bfe_u32 v{vt1}, v{vlane}, 4, 1")
    k(f"v_lshl_add_u32 v{vst}, v{vt0}, 1, v{vt1}")
    k(f"v_lshlrev_b32 v{vst}, 12, v{vst}")
    k(f"v_subrev_u32 v{vst}, {2*4096}, v{vst}")
    k(f"v_cvt_f32_u32 v{vtmp+1}, v{vt1}")
    k(f"v_lshrrev_b32 v{vt1}, 5, v{vlane}")
    k(f"v_lshl_add_u32 v{vst}, v{vt1}, 4, v{vst}")
    k(f"v_cvt_f32_u32 v{vtmp+2}, v{vt1}")
    k(f"v_mul_f32 v{vdl}, {fh(1/640)}, v{vtmp}")
    k(f"v_mul_f32 v{vrev}, v{vtmp+2}, v{vtmp}")
    k(f"v_mul_f32 v{vrev}, 0.5, v{vrev}")
    k(f"v_mul_f32 v{vtmp+1}, {fh(0.25)}, v{vtmp+1}")
    k(f"v_add_f32 v{vrev}, v{vrev}, v{vtmp+1}")
    k(f"v_fract_f32 v{vrev}, v{vrev}")
    k(f"v_mul_f32 v{vstep}, {fh(1/16)}, v{vtmp}")
    k(f"v_fract_f32 v{vstep}, v{vstep}")
    k(f"v_add_f32 v{vtmp}, v{vdl}, v{vdl}")
    k(f"v_cos_f32 v{vc2}, v{vtmp}")
    k("s_nop 0")
    k(f"v_add_f32 v{vc2}, v{vc2}, v{vc2}")
    for b in range(8):
        cos_block(k, vF + 20*b, 20, vrev, vdl, vc2, vtmp)
        if b < 7:
            k(f"v_add_f32 v{vrev}, v{vrev}, v{vstep}")
            k(f"v_fract_f32 v{vrev}, v{vrev}")
    k(f"v_and_b32 v{vt0}, 19, v{vlane}")
    k(f"v_bfe_u32 v{vt1}, v{vlane}, 2, 1")
    k(f"v_lshl_or_b32 v{vt0}, v{vt1}, 3, v{vt0}")
    k(f"v_bfe_u32 v{vt1}, v{vlane}, 3, 1")
    k(f"v_lshl_or_b32 v{vt0}, v{vt1}, 2, v{vt0}")
    k(f"v_bfe_u32 v{vt1}, v{vt0}, 1, 3")
    k(f"v_lshlrev_b32 v{vt1}, 4, v{vt1}")
    k(f"v_lshl_or_b32 v{vt1}, v{vt0}, 7, v{vt1}")
    k(f"v_lshrrev_b32 v{vtmp}, 5, v{vlane}")
    k(f"v_mul_u32_u24 v{vtmp}, {5*8192}, v{vtmp}")
    k(f"v_add_u32 v{vard}, v{vt1}, v{vtmp}")
    for u in range(1, 8):
        k(f"v_xor_b32 v{vard+u}, {u<<4}, v{vard}")
    k("s_waitcnt lgkmcnt(0)")
    k.srd(12, 6, WS_END)
    if 'clk' not in var: k.stamp(0)
    def rd(kk):
        p, u = kk // 8, kk % 8
        sl = kk % 3
        for t in range(2):
            k(f"ds_read_b128 v[{vfa+sl*8+t*4}:{vfa+sl*8+t*4+3}], v{vard+u} offset:{p*8192 + t*4096}")
    k("s_barrier")
    if 'clk' in var: k.stamp(10)
    k.stamp(2)
    rd(0); rd(1)
    for kk in range(40):
        nk = kk + 2
        if nk < 40:
            if nk % 8 == 0: k("s_barrier")
            rd(nk)
            k(f"s_waitcnt lgkmcnt(4)")
        elif nk == 40: k(f"s_waitcnt lgkmcnt(2)")
        else: k("s_waitcnt lgkmcnt(0)")
        sl = kk % 3
        for t in range(2):
            fa = vfa + sl*8 + t*4
            cs = f"v[{vacc+16*t}:{vacc+16*t+15}]" if kk else "0"
            k(f"v_mfma_f32_32x32x16_bf16 v[{vacc+16*t}:{vacc+16*t+15}], v[{fa}:{fa+3}], v[{vF+4*kk}:{vF+4*kk+3}], {cs}")
    k.stamp(3)
    if 'clk' in var: k.stamp(11)
    k(f"v_lshrrev_b32 v{vt1}, 5, v{vlane}")
    k(f"v_lshlrev_b32 v{vt1}, 5, v{vt1}")
    k(f"v_add_u32 v{vt1}, {RS}, v{vt1}")
    k(f"s_lshl_b32 s22, s{srow}, 7")
    k(f"s_add_u32 s22, s22, {WS_PT}")
    k("s_barrier")
    vr = vF
    for t in range(2):
        for q in range(2):
            for z in range(2):
                b = vr + 16*t + 8*q + 4*z
                k(f"ds_read_b128 v[{b}:{b+3}], v{vt1} offset:{128*t + 64*q + 16*z}")
    vo = vF + 32
    for t in range(2):
        for q in range(2):
            b = 16*t + 8*q
            k(f"s_waitcnt lgkmcnt({6 - 2*(2*t+q)})")
            for z in range(4):
                k(f"v_pk_mul_f32 v[{vacc+b+2*z}:{vacc+b+2*z+1}], v[{vacc+b+2*z}:{vacc+b+2*z+1}], v[{vr+b+2*z}:{vr+b+2*z+1}]")
            ob = vo + 4*(2*t+q)
            for z in range(4):
                k(f"v_cvt_pk_bf16_f32 v{ob+z}, v{vacc+b+2*z}, v{vacc+b+2*z+1}")
            k(f"buffer_store_dwordx4 v[{ob}:{ob+3}], v{vst}, s[12:15], s22 offen offset:{64*t+32*q}")
    k("s_endpgm")
    k.vgpr = A.n
    k.lab(PROD)
    B = Alloc(vt1 + 1)
    vdma = B(2); vsa = B(2); vs2 = B(8, 2); vsb = B(16, 4); vun = B(4, 2); vsum = B(4, 2); vq = B(2); vpfa = B(); vpfd = B()
    if wpf:
        k("s_load_dwordx4 s[44:47], s[0:1], 32")
        k("s_load_dwordx2 s[48:49], s[0:1], 48")
    k(f"v_lshrrev_b32 v{vt0}, 3, v{vlane}")
    k(f"v_mul_u32_u24 v{vt0}, 1280, v{vt0}")
    k(f"v_lshrrev_b32 v{vt1}, 4, v{vlane}")
    k(f"v_xor_b32 v{vt1}, v{vt1}, v{vlane}")
    k(f"v_and_b32 v{vt1}, 7, v{vt1}")
    k(f"v_lshl_add_u32 v{vdma}, v{vt1}, 4, v{vt0}")
    k(f"v_xor_b32 v{vdma+1}, 64, v{vdma}")
    k(f"v_add_u32 v{vdma+1}, {8*1280}, v{vdma+1}")
    k(f"s_lshl_b32 s22, s{srow}, 2")
    k(f"s_add_u32 s22, s22, s{sw}")
    k(f"s_mul_i32 s{sso}, s22, {16*1280}")
    k(f"s_lshl_b32 s{sm0}, s{sw}, 11")
    k("s_waitcnt lgkmcnt(0)")
    k.srd(8, 4, 2621440)
    k.srd(12, 6, WS_END)
    order = [0,5,1,6,2,7,3,8,4,9]
    for c in order:
        for i in range(2):
            k(f"s_add_u32 m0, s{sm0}, {c*8192 + i*1024}")
            k(f"s_add_u32 s22, s{sso}, {c*128}")
            k(f"buffer_load_dwordx4 v{vdma+i}, s[8:11], s22 offen lds")
    def wtouch():
        for m in range(3): k.srd(64 + 4*m, 44 + 2*m, 1966080)
        k(f"s_sub_u32 s23, s2, {NSD}")
        k("s_lshl_b32 s23, s23, 2")
        k(f"s_add_u32 s23, s23, s{sw}")
        for m, sub in ((0, 0), (1, 240), (2, 480), (2, -160)):
            k(f"s_sub_u32 s22, s23, {sub}" if sub >= 0 else f"s_add_u32 s22, s23, {-sub}")
            k("s_lshl_b32 s22, s22, 13")
            k(f"v_lshlrev_b32 v{vpfa}, 7, v{vlane}")
            k(f"v_add_u32 v{vpfa}, s22, v{vpfa}")
            k(f"buffer_load_dword v{vpfd}, v{vpfa}, s[{64+4*m}:{67+4*m}], 0 offen")
    if wpf == 1: wtouch()
    if 'clk' not in var: k.stamp(0)
    for i in range(8): k(f"v_mov_b32 v{vs2+i}, 0")
    k(f"v_lshlrev_b32 v{vsa}, 4, v{vlane}")
    k(f"v_add_u32 v{vsa}, s{sm0}, v{vsa}")
    k(f"v_add_u32 v{vsa+1}, {5*8192}, v{vsa}")
    k("s_mov_b32 s21, 0xffff0000")
    def statrd(r):
        p, j = r // 4, r % 4
        b = vsb + 4*(r % 4)
        k(f"ds_read_b128 v[{b}:{b+3}], v{vsa+(j>>1)} offset:{p*8192 + (j&1)*1024}")
    def statproc(r):
        i = r & 1; b = vsb + 4*(r % 4)
        for q in range(4):
            u = vun + 2*(q & 1)
            k(f"v_lshlrev_b32 v{u}, 16, v{b+q}")
            k(f"v_and_b32 v{u+1}, s21, v{b+q}")
            k(f"v_add_f32 v{vs2+4*i}, v{vs2+4*i}, v{u}")
            k(f"v_fmac_f32 v{vs2+4*i+2}, v{u}, v{u}")
            k(f"v_add_f32 v{vs2+4*i+1}, v{vs2+4*i+1}, v{u+1}")
            k(f"v_fmac_f32 v{vs2+4*i+3}, v{u+1}, v{u+1}")
    r0 = 0
    for p in range(5):
        k(f"s_waitcnt vmcnt({16-4*p + (4 if wpf and p >= wpf - 1 else 0)})")
        k("s_barrier")
        if wpf >= 2 and p == wpf - 2: wtouch()
        if p == 0 and 'clk' not in var: k.stamp(1)
        rs = list(range(r0, r0 + SPL[p])); r0 += SPL[p]
        assert rs[-1] < 4*(p+1)
        todo = rs[:]
        first = todo[:4]
        for r in first: statrd(r)
        rest = todo[4:]
        for n, r in enumerate(first):
            k(f"s_waitcnt lgkmcnt({len(first)-1-n if not rest or n == 0 else min(len(first)-1-n + 1, 15)})" if False else f"s_waitcnt lgkmcnt({len(first)-1-n + (1 if rest and n >= 1 else 0)})")
            statproc(r)
            if n == 0 and rest: statrd(rest[0])
        for r in rest:
            k("s_waitcnt lgkmcnt(0)")
            statproc(r)
    assert r0 == 20
    for i in range(2):
        k(f"v_add_f32 v{vsum+2*i}, v{vs2+4*i}, v{vs2+4*i+1}")
        k(f"v_add_f32 v{vsum+2*i+1}, v{vs2+4*i+2}, v{vs2+4*i+3}")
    for dpp in ["quad_perm:[1,0,3,2]", "quad_perm:[2,3,0,1]", "row_half_mirror"]:
        k("s_nop 0")
        for q in range(4):
            k(f"v_add_f32_dpp v{vsum+q}, v{vsum+q}, v{vsum+q} {dpp} row_mask:0xf bank_mask:0xf")
    k(f"v_and_b32 v{vt1}, 1, v{vlane}")
    k(f"v_cmp_eq_u32 vcc, 1, v{vt1}")
    k(f"v_lshrrev_b32 v{vq}, 3, v{vlane}")
    k(f"v_lshl_add_u32 v{vq}, v{vt1}, 3, v{vq}")
    k(f"v_cndmask_b32 v{vsum}, v{vsum}, v{vsum+2}, vcc")
    k(f"v_cndmask_b32 v{vsum+1}, v{vsum+1}, v{vsum+3}, vcc")
    k(f"v_mul_f32 v{vsum}, {fh(1/640)}, v{vsum}")
    k(f"v_mul_f32 v{vsum+2}, v{vsum}, v{vsum}")
    k(f"v_mul_f32 v{vsum+1}, {fh(1/640)}, v{vsum+1}")
    k(f"v_sub_f32 v{vsum+1}, v{vsum+1}, v{vsum+2}")
    k(f"v_max_f32 v{vsum+1}, 0, v{vsum+1}")
    k(f"v_add_f32 v{vsum+1}, {fh(1e-5)}, v{vsum+1}")
    k(f"v_rsq_f32 v{vsum+1}, v{vsum+1}")
    k(f"s_lshl_b32 s22, s{sw}, 4")
    k(f"v_add_u32 v{vq}, s22, v{vq}")
    k(f"v_lshlrev_b32 v{vq}, 2, v{vq}")
    k(f"v_add_u32 v{vq+1}, {RS}, v{vq}")
    k(f"ds_write_b32 v{vq+1}, v{vsum+1}")
    skip = k.newlab()
    k(f"s_cmp_lg_u32 s{scol}, 0")
    k(f"s_cbranch_scc1 {skip}")
    k(f"s_lshl_b32 s22, s{srow}, 8")
    k(f"s_add_u32 s22, s22, {WS_MS}")
    k(f"buffer_store_dword v{vsum}, v{vq}, s[12:15], s22 offen")
    k.lab(skip)
    k("s_waitcnt lgkmcnt(0)")
    k("s_barrier")
    k.stamp(3)
    k("s_endpgm")
    k.lab(SIDE)
    k("v_lshrrev_b32 v1, 6, v0")
    k("s_nop 0")
    k("v_readfirstlane_b32 s24, v1")
    k("s_cmp_ge_u32 s24, 4")
    k(f"s_cbranch_scc1 {label + ('_prep' if prep else '_clr')}")
    if prep:
        k("s_cmp_ge_u32 s2, 80")
        k(f"s_cbranch_scc1 {label}_clr")
    k("s_load_dwordx2 s[32:33], s[0:1], 8")
    k("s_load_dwordx2 s[16:17], s[0:1], 16")
    k("s_mul_i32 s21, s2, 205")
    k("s_lshr_b32 s21, s21, 11")
    k("s_mul_i32 s22, s21, 10")
    k("s_sub_u32 s22, s2, s22")
    k("s_lshr_b32 s23, s21, 1")
    k("s_lshl_b32 s23, s23, 4")
    k("s_and_b32 s25, s21, 1")
    k("s_lshl_b32 s25, s25, 10")
    k("s_add_u32 s23, s23, s25")
    k("s_lshl_b32 s25, s24, 8")
    k("s_add_u32 s23, s23, s25")
    k("v_bfe_u32 v2, v0, 2, 4")
    k("v_add_u32 v1, s23, v2")
    k("v_mul_u32_u24 v1, 642, v1")
    k("v_and_b32 v3, 3, v0")
    k("v_lshl_add_u32 v1, v3, 4, v1")
    k("s_lshl_b32 s25, s22, 6")
    k("s_add_u32 s25, s25, 2")
    k("v_lshlrev_b32 v3, 16, v3")
    k("v_lshl_add_u32 v2, v2, 4, v3")
    k("s_waitcnt lgkmcnt(0)")
    k.srd(8, 32, 1314816); k.srd(28, 16, 1314816); k.srd(12, 6, WS_END)
    for i in range(4):
        k(f"buffer_load_dwordx4 v[{4+4*i}:{7+4*i}], v1, s[8:11], s25 offen")
        k(f"buffer_load_dwordx4 v[{20+4*i}:{23+4*i}], v1, s[28:31], s25 offen")
        if i < 3: k(f"s_add_u32 s25, s25, {64*642}")
    k.stamp(0)
    k("s_mov_b32 s26, 0x05040100\ns_mov_b32 s27, 0x07060302")
    k("s_lshl_b32 s23, s22, 18")
    k("s_lshl_b32 s25, s21, 10")
    k("s_add_u32 s23, s23, s25")
    k("s_lshl_b32 s25, s24, 8")
    k("s_add_u32 s23, s23, s25")
    k(f"s_add_u32 s23, s23, {WS_WT}")
    k("s_waitcnt vmcnt(0)"); k.stamp(1)
    for z in range(8):
        d, hh = z // 2, z % 2
        o = 36 + 4*z
        for i in range(4):
            k(f"v_perm_b32 v{o+i}, v{20+4*i+d}, v{4+4*i+d}, s{26+hh}")
        k(f"buffer_store_dwordx4 v[{o}:{o+3}], v2, s[12:15], s23 offen")
        if z < 7: k("s_add_u32 s23, s23, 8192")
    k.stamp(3)
    k("s_endpgm")
    k.lab(f"{label}_clr")
    k("s_load_dwordx2 s[6:7], s[0:1], 72")
    if prep:
        k("s_sub_u32 s21, s2, 80")
        k("s_lshl_b32 s21, s21, 2")
        k("s_add_u32 s21, s21, s24")
        k("s_lshl_b32 s21, s21, 12")
    else:
        k("s_cmp_ge_u32 s2, 64")
        k(f"s_cbranch_scc1 {END}")
        k("s_lshl_b32 s21, s2, 2")
        k("s_add_u32 s21, s21, s24")
        k("s_sub_u32 s21, s21, 4")
        k("s_lshl_b32 s21, s21, 10")
    k(f"s_add_u32 s21, s21, {WS_FL}")
    k("v_and_b32 v1, 63, v0")
    k("v_lshlrev_b32 v1, 4, v1")
    for z in range(4): k(f"v_mov_b32 v{4+z}, 0")
    k("s_waitcnt lgkmcnt(0)")
    k.srd(12, 6, WS_END)
    for z in range(4 if prep else 1):
        k(f"buffer_store_dwordx4 v[4:7], v1, s[12:15], s21 offen offset:{1024*z}")
    if prep:
        k("s_endpgm")
        k.lab(f"{label}_prep")
        prep_job(k, label, 0, END, NW=4, wsub=4)
    k.lab(END)
    k("s_endpgm")
    return k
if __name__ == "__main__":
    build([make_k1()], "k1.s")
```

```python
from common import *
def make_k2(label="k2_kernel", pf=1, nxt=None, side=0):
    NI = 4 // side if side else 0; NSD = 90*side
    k = Kern(label, grid=320+NSD, block=256, lds=max(16384, 16384*NI), vgpr=200)
    END = f"{label}_end"
    k(f"s_cmp_ge_u32 s2, {320+NSD}")
    k(f"s_cbranch_scc1 {END}")
    k("s_load_dwordx2 s[6:7], s[0:1], 72")
    if pf: k.prefetch(nxt=nxt)
    if side:
        k(f"s_cmp_lt_u32 s2, {NSD}")
        k(f"s_cbranch_scc1 {label}_side")
    k(f"s_sub_u32 s27, s2, {NSD}")
    A = Alloc(1)
    vl = A(); vg = A(); v16 = A(); t0 = A(); t1 = A(); t2 = A()
    vA = A(2); vWr = A(2); vB = A(2); vSt = A()
    tf = A(8, 2)
    tg = A(8, 2)
    C64 = A(8, 4); S64 = A(8, 4); N64 = A(8, 4)
    C32 = A(8, 4); S32 = A(8, 4); N32 = A(8, 4)
    T1c = A(8, 2); T1s = A(8, 2); T2c = A(8, 2); T2s = A(8, 2)
    W = A(8, 4)
    FA = A(32, 4)
    AC = A(16, 4)
    AD = A(16, 4)
    Br = A(4, 4); Bi = A(4, 4)
    k.vgpr = A.n
    sw = 16
    k(f"v_and_b32 v{vl}, 63, v0")
    k(f"v_lshrrev_b32 v{t0}, 6, v0")
    k(f"v_lshrrev_b32 v{vg}, 4, v{vl}")
    k(f"v_readfirstlane_b32 s{sw}, v{t0}")
    k(f"v_and_b32 v{v16}, 15, v{vl}")
    k(f"v_lshrrev_b32 v{t1}, 5, v{vl}")
    k(f"v_lshlrev_b32 v{t1}, 1, v{t1}")
    k(f"v_xor_b32 v{t1}, v{t1}, v{vl}")
    k(f"v_lshlrev_b32 v{t1}, 4, v{t1}")
    k(f"v_lshlrev_b32 v{t2}, 4, v{vl}")
    k(f"s_lshl_b32 s17, s{sw}, 11")
    k(f"s_lshl_b32 s18, s27, 13")
    k(f"s_add_u32 s19, s18, s17")
    k(f"s_add_u32 s20, s19, {WS_PT}")
    k(f"s_add_u32 s21, s19, {WS_WT}")
    k(f"s_mov_b32 m0, s17")
    k("s_waitcnt lgkmcnt(0)")
    k.srd(8, 6, WS_END)
    k(f"buffer_load_dwordx4 v{t1}, s[8:11], s20 offen lds")
    k(f"buffer_load_dwordx4 v{t1}, s[8:11], s20 offen offset:1024 lds")
    k(f"buffer_load_dwordx4 v[{W}:{W+3}], v{t2}, s[8:11], s21 offen")
    k(f"buffer_load_dwordx4 v[{W+4}:{W+7}], v{t2}, s[8:11], s21 offen offset:1024")
    k.stamp(0)
    k(f"s_lshl_b32 s22, s{sw}, 4")
    k(f"v_add_u32 v{t0}, s22, v{v16}")
    k(f"v_cvt_f32_u32 v{tg}, v{t0}")
    k(f"v_cvt_f32_u32 v{tg+1}, v{vg}")
    k(f"v_cvt_f32_u32 v{tg+2}, v{v16}")
    k(f"v_lshlrev_b32 v{t0}, 31, v{v16}")
    k(f"v_lshrrev_b32 v{t1}, 16, v{t0}")
    k(f"v_or_b32 v{t0}, v{t0}, v{t1}")
    vsm = t0
    k(f"v_mul_f32 v{tg+3}, {fh(1/64)}, v{tg}")
    k(f"v_mul_f32 v{tf}, v{tg}, v{tg+1}")
    k(f"v_mul_f32 v{tf}, {fh(1/8)}, v{tf}")
    for j in range(1, 8): k(f"v_add_f32 v{tf+j}, v{tf+j-1}, v{tg+3}")
    for j in range(8): k(f"v_cos_f32 v{FA+j}, v{tf+j}")
    for j in range(8): k(f"v_sin_f32 v{FA+8+j}, v{tf+j}")
    for z in range(4): k(f"v_cvt_pk_bf16_f32 v{C64+z}, v{FA+2*z}, v{FA+2*z+1}")
    for z in range(4): k(f"v_cvt_pk_bf16_f32 v{S64+z}, v{FA+8+2*z}, v{FA+8+2*z+1}")
    k(f"s_mov_b32 s23, 0x80008000")
    for z in range(4):
        k(f"v_xor_b32 v{C64+4+z}, v{vsm}, v{C64+z}")
        k(f"v_xor_b32 v{S64+4+z}, v{vsm}, v{S64+z}")
    for z in range(8): k(f"v_xor_b32 v{N64+z}, s23, v{S64+z}")
    k(f"v_mul_f32 v{tg+3}, {fh(1/32)}, v{tg+2}")
    k(f"v_mul_f32 v{tf}, v{tg+2}, v{tg+1}")
    k(f"v_mul_f32 v{tf}, {fh(1/8)}, v{tf}")
    for j in range(1, 4): k(f"v_add_f32 v{tf+j}, v{tf+j-1}, v{tg+3}")
    for j in range(4): k(f"v_cos_f32 v{FA+j}, v{tf+j}")
    for j in range(4): k(f"v_sin_f32 v{FA+4+j}, v{tf+j}")
    k("s_nop 0")
    for z in range(2): k(f"v_cvt_pk_bf16_f32 v{C32+z}, v{FA+2*z}, v{FA+2*z+1}")
    for z in range(2): k(f"v_cvt_pk_bf16_f32 v{S32+z}, v{FA+4+2*z}, v{FA+4+2*z+1}")
    for z in range(2):
        k(f"v_xor_b32 v{C32+2+z}, v{vsm}, v{C32+z}")
        k(f"v_xor_b32 v{S32+2+z}, v{vsm}, v{S32+z}")
    k(f"s_brev_b32 s24, 1")
    for z in range(4):
        k(f"v_xor_b32 v{C32+4+z}, s24, v{C32+z}")
        k(f"v_xor_b32 v{S32+4+z}, s24, v{S32+z}")
    for z in range(8): k(f"v_xor_b32 v{N32+z}, s23, v{S32+z}")
    k(f"v_mul_f32 v{tg+3}, {fh(1/2048)}, v{tg}")
    k(f"v_mul_f32 v{tf}, v{tg+3}, v{tg+1}")
    k(f"v_mul_f32 v{tf}, 4.0, v{tf}")
    for j in range(1, 4): k(f"v_add_f32 v{tf+j}, v{tf+j-1}, v{tg+3}")
    k(f"v_mul_f32 v{tg+4}, {fh(16.0)}, v{tg+3}")
    for j in range(4): k(f"v_add_f32 v{tf+4+j}, v{tf+j}, v{tg+4}")
    for j in range(8): k(f"v_cos_f32 v{T1c+j}, v{tf+j}")
    for j in range(8): k(f"v_sin_f32 v{T1s+j}, v{tf+j}")
    k(f"v_fma_f32 v{tg+5}, v{tg+1}, 4.0, v{tg}")
    k(f"v_sub_f32 v{tg+5}, v{tg+5}, v{tg+2}")
    k(f"v_mul_f32 v{tg+5}, {fh(1/2048)}, v{tg+5}")
    k(f"v_mul_f32 v{tg+3}, {fh(1/2048)}, v{tg+2}")
    k(f"v_mul_f32 v{tf}, v{tg+5}, v{tg+2}")
    for j in range(1, 4): k(f"v_add_f32 v{tf+j}, v{tf+j-1}, v{tg+3}")
    k(f"v_mul_f32 v{tg+4}, {fh(16.0)}, v{tg+5}")
    for j in range(4):
        k(f"v_add_f32 v{tf+4+j}, v{tf+j}, v{tg+4}")
        if j < 3: k(f"v_add_f32 v{tg+4}, {fh(16/2048)}, v{tg+4}")
    for j in range(8): k(f"v_cos_f32 v{T2c+j}, v{tf+j}")
    for j in range(8): k(f"v_sin_f32 v{T2s+j}, v{tf+j}")
    k(f"v_lshrrev_b32 v{t1}, 2, v{v16}")
    k(f"v_lshlrev_b32 v{t1}, 6, v{t1}")
    k(f"v_lshl_add_u32 v{t1}, v{vg}, 9, v{t1}")
    k(f"v_bfe_u32 v{t2}, v{v16}, 1, 1")
    k(f"v_lshlrev_b32 v{tf}, 1, v{vg}")
    k(f"v_and_b32 v{tf}, 2, v{tf}")
    k(f"v_xor_b32 v{t2}, v{t2}, v{tf}")
    k(f"v_lshl_add_u32 v{t1}, v{t2}, 4, v{t1}")
    k(f"v_and_b32 v{t2}, 1, v{v16}")
    k(f"v_lshl_add_u32 v{vA}, v{t2}, 3, v{t1}")
    k(f"v_xor_b32 v{vA+1}, 32, v{vA}")
    k(f"v_bfe_u32 v{t1}, v{v16}, 1, 1")
    k(f"v_lshrrev_b32 v{t2}, 3, v{v16}")
    k(f"v_lshl_or_b32 v{t1}, v{t2}, 1, v{t1}")
    k(f"v_lshrrev_b32 v{t2}, 1, v{vg}")
    k(f"s_lshl_b32 s22, s{sw}, 1")
    k(f"v_add_u32 v{t2}, s22, v{t2}")
    k(f"v_xor_b32 v{t1}, v{t1}, v{t2}")
    k(f"v_lshlrev_b32 v{t1}, 4, v{t1}")
    k(f"v_lshl_add_u32 v{t1}, v{v16}, 7, v{t1}")
    k(f"v_and_b32 v{t2}, 1, v{vg}")
    k(f"v_lshl_add_u32 v{t1}, v{t2}, 3, v{t1}")
    k(f"v_add_u32 v{vWr}, 8192, v{t1}")
    k(f"v_xor_b32 v{t1}, 64, v{t1}")
    k(f"v_add_u32 v{vWr+1}, {8192+2048}, v{t1}")
    k(f"v_lshrrev_b32 v{t2}, 2, v{v16}")
    k(f"v_bfe_u32 v{t1}, v{v16}, 1, 1")
    k(f"v_lshl_or_b32 v{t1}, v{t2}, 1, v{t1}")
    k(f"v_xor_b32 v{t1}, v{t1}, v{vg}")
    k(f"v_lshlrev_b32 v{t1}, 4, v{t1}")
    k(f"v_lshl_add_u32 v{t1}, v{t2}, 10, v{t1}")
    k(f"v_and_b32 v{t2}, 3, v{v16}")
    k(f"v_lshl_add_u32 v{t1}, v{t2}, 7, v{t1}")
    k(f"v_add_u32 v{vB}, 8192, v{t1}")
    k(f"v_xor_b32 v{vB+1}, 64, v{vB}")
    k(f"v_lshlrev_b32 v{t1}, 6, v{v16}")
    k(f"v_lshl_add_u32 v{vSt}, v{vg}, 4, v{t1}")
    k(f"s_lshl_b32 s22, s{sw}, 10")
    k(f"s_add_u32 s22, s22, s18")
    k(f"s_add_u32 s25, s22, {WS_UT}")
    for i in range(16): k(f"v_mov_b32 v{AC+i}, 0")
    for i in range(16): k(f"v_mov_b32 v{AD+i}, 0")
    k.stamp(1)
    k("s_waitcnt vmcnt(2)")
    k("s_barrier")
    k.stamp(2)
    def fa(p, mt, ks): return FA + 16*p + 8*mt + 4*ks
    for ks in range(2):
        for p in range(2):
            for mt in range(2):
                for z in range(2):
                    b = fa(p, mt, ks) + 2*z
                    k(f"ds_read_b64_tr_b16 v[{b}:{b+1}], v{vA+mt} offset:{p*4096 + ks*2048 + z*256}")
    def mf(d, a_, b_): k(f"v_mfma_f32_16x16x32_bf16 v[{d}:{d+3}], v[{a_}:{a_+3}], v[{b_}:{b_+3}], v[{d}:{d+3}]")
    def acc(base, t, c): return base + 8*t + 4*c
    for ks in range(2):
        k(f"s_waitcnt lgkmcnt({12 if ks == 0 else 4})")
        for mt in range(2):
            mf(acc(AC,mt,0), fa(0,mt,ks), C64+4*ks)
            mf(acc(AC,mt,1), fa(0,mt,ks), N64+4*ks)
        k(f"s_waitcnt lgkmcnt({8 if ks == 0 else 0})")
        for mt in range(2):
            mf(acc(AC,mt,0), fa(1,mt,ks), S64+4*ks)
            mf(acc(AC,mt,1), fa(1,mt,ks), C64+4*ks)
    k("s_nop 7")
    def cmul(base, c, s_, sign, outr, outi):
        for t in range(2):
            r, im = acc(base,t,0), acc(base,t,1)
            for z in range(2):
                rr, ii = r+2*z, im+2*z; cc, ss = c+4*t+2*z, s_+4*t+2*z
                a0 = tf + 4*z
                k(f"v_pk_mul_f32 v[{a0}:{a0+1}], v[{rr}:{rr+1}], v[{cc}:{cc+1}]")
                k(f"v_pk_mul_f32 v[{a0+2}:{a0+3}], v[{ii}:{ii+1}], v[{cc}:{cc+1}]")
            for z in range(2):
                rr, ii = r+2*z, im+2*z; cc, ss = c+4*t+2*z, s_+4*t+2*z
                a0 = tf + 4*z
                n1 = "" if sign > 0 else " neg_lo:[0,1,0] neg_hi:[0,1,0]"
                n2 = " neg_lo:[0,1,0] neg_hi:[0,1,0]" if sign > 0 else ""
                k(f"v_pk_fma_f32 v[{a0}:{a0+1}], v[{ii}:{ii+1}], v[{ss}:{ss+1}], v[{a0}:{a0+1}]{n1}")
                k(f"v_pk_fma_f32 v[{a0+2}:{a0+3}], v[{rr}:{rr+1}], v[{ss}:{ss+1}], v[{a0+2}:{a0+3}]{n2}")
            for z in range(2):
                a0 = tf + 4*z
                k(f"v_cvt_pk_bf16_f32 v{outr+2*t+z}, v{a0}, v{a0+1}")
                k(f"v_cvt_pk_bf16_f32 v{outi+2*t+z}, v{a0+2}, v{a0+3}")
    cmul(AC, T1c, T1s, +1, Br, Bi)
    k("s_nop 1")
    for t in range(2):
        mf(acc(AD,t,0), C32+4*t, Br); mf(acc(AD,t,1), C32+4*t, Bi)
    for t in range(2):
        mf(acc(AD,t,0), S32+4*t, Bi); mf(acc(AD,t,1), N32+4*t, Br)
    k("s_waitcnt vmcnt(0)")
    for j in range(8):
        k(f"v_lshlrev_b32 v{FA+j}, 16, v{W+j}")
        k(f"v_and_b32 v{FA+8+j}, 0xffff0000, v{W+j}")
    for i in range(16): k(f"v_mov_b32 v{AC+i}, 0")
    k("s_nop 1")
    cmul(AD, FA, FA+8, -1, Br, Bi)
    k("s_nop 1")
    for t in range(2):
        mf(acc(AC,t,0), Br, C32+4*t); mf(acc(AC,t,1), Bi, C32+4*t)
    for t in range(2):
        mf(acc(AC,t,0), Bi, N32+4*t); mf(acc(AC,t,1), Br, S32+4*t)
    for i in range(16): k(f"v_mov_b32 v{AD+i}, 0")
    k("s_nop 1")
    Or = FA; Oi = FA + 4
    cmul(AC, T2c, T2s, -1, Or, Oi)
    for t in range(2):
        k(f"ds_write_b64 v{vWr+t}, v[{Or+2*t}:{Or+2*t+1}]")
        k(f"ds_write_b64 v{vWr+t}, v[{Oi+2*t}:{Oi+2*t+1}] offset:4096")
    k.stamp(3)
    k("s_waitcnt lgkmcnt(0)")
    k("s_barrier")
    def fb(p, t, ks): return FA + 16*p + 8*t + 4*ks
    for ks in range(2):
        for p in range(2):
            for t in range(2):
                b = fb(p, t, ks)
                k(f"ds_read_b128 v[{b}:{b+3}], v{vB+ks} offset:{p*4096 + t*512}")
    for ks in range(2):
        k(f"s_waitcnt lgkmcnt({6 if ks == 0 else 2})")
        for t in range(2):
            mf(acc(AD,t,0), fb(0,t,ks), C64+4*ks)
            mf(acc(AD,t,1), fb(0,t,ks), S64+4*ks)
        k(f"s_waitcnt lgkmcnt({4 if ks == 0 else 0})")
        for t in range(2):
            mf(acc(AD,t,0), fb(1,t,ks), N64+4*ks)
            mf(acc(AD,t,1), fb(1,t,ks), C64+4*ks)
    k("s_nop 7")
    for c in range(2):
        o = Br if c == 0 else Bi
        for t in range(2):
            for z in range(2):
                k(f"v_cvt_pk_bf16_f32 v{o+2*t+z}, v{acc(AD,t,c)+2*z}, v{acc(AD,t,c)+2*z+1}")
        k(f"s_add_u32 s26, s25, {4096*c}")
        k(f"buffer_store_dwordx4 v[{o}:{o+3}], v{vSt}, s[8:11], s26 offen")
    if side:
        k("s_endpgm")
        k.lab(f"{label}_side")
        prep_job(k, label, 0, END, NW=4, NI=NI)
    k.lab(END)
    k("s_endpgm")
    return k
if __name__ == "__main__":
    from k1 import make_k1
    build([make_k1(), make_k2()], "k12.s")
```

```python
from common import *
def make_k3(label="k3_kernel", var="", pf=1, nxt=None, NSH=0, SHP=3, side=1, kin=None, NEXT=None, st={}):
    XO = 81920
    fused = kin is not None
    NSD = 90 if side else 0
    SC = " sc1" if fused else ""
    if fused:
        k = kin; label = label + "_p3"
        _stamp = k.stamp
        def stamp(i):
            if i in st: _stamp(st[i])
    else:
        k = Kern(label, grid=160+NSD, block=512, lds=81920+16384, vgpr=248)
        stamp = k.stamp
    END = f"{label}_end"
    SIDE = f"{label}_side"; PROD = f"{label}_prod"
    if not fused:
        k(f"s_cmp_ge_u32 s2, {160+NSD}")
        k(f"s_cbranch_scc1 {END}")
        k("s_load_dwordx2 s[4:5], s[0:1], 0")
        k("s_load_dwordx2 s[6:7], s[0:1], 72")
        if pf: k.prefetch(nxt=nxt)
        if side:
            k("s_cmp_lt_u32 s2, 90")
            k(f"s_cbranch_scc1 {SIDE}")
    A = Alloc(1)
    vl = A(); t0 = A(); t1 = A(); t2 = A()
    vm = A(2); vB = A(4); vxr = A(); vst = A()
    vrev = A(); vdl = A(); vstep = A(); vc2 = A(2, 2); vtmp = A(8, 2)
    vfb = A(24, 4); vacc = A(32, 4); vG = A(160, 4)
    if not fused: k.vgpr = A.n
    assert A.n <= 254, A.n
    sw, srow, scol = 16, 17, 18
    k(f"v_and_b32 v{vl}, 63, v0")
    k(f"v_lshrrev_b32 v{t0}, 6, v0")
    k(f"s_sub_u32 s27, s2, {NSD}")
    wg_rowcol5(k, srow, scol, 27)
    k(f"v_readfirstlane_b32 s21, v{t0}")
    k(f"s_and_b32 s{sw}, s21, 3")
    k("s_cmp_ge_u32 s21, 4")
    k(f"s_cbranch_scc1 {PROD}")
    k(f"v_and_b32 v{t0}, 19, v{vl}")
    k(f"v_bfe_u32 v{t1}, v{vl}, 2, 1")
    k(f"v_lshl_or_b32 v{t0}, v{t1}, 3, v{t0}")
    k(f"v_bfe_u32 v{t1}, v{vl}, 3, 1")
    k(f"v_lshl_or_b32 v{t0}, v{t1}, 2, v{t0}")
    k(f"s_lshl_b32 s26, s{scol}, 2")
    k(f"s_add_u32 s26, s26, s{sw}")
    k(f"s_lshl_b32 s24, s26, 5")
    k(f"v_add_u32 v{t0}, s24, v{t0}")
    k(f"v_cvt_f32_u32 v{vtmp}, v{t0}")
    k(f"v_lshrrev_b32 v{t1}, 5, v{vl}")
    k(f"v_cvt_f32_u32 v{vtmp+1}, v{t1}")
    k(f"v_mul_f32 v{vdl}, {fh(1/640)}, v{vtmp}")
    k(f"v_mul_f32 v{vtmp+1}, {fh(0.25)}, v{vtmp+1}")
    k(f"v_add_f32 v{vrev}, v{vtmp+1}, v{vdl}")
    k(f"v_mul_f32 v{vstep}, {fh(1/16)}, v{vtmp}")
    k(f"v_fract_f32 v{vstep}, v{vstep}")
    k(f"v_add_f32 v{vtmp}, v{vdl}, v{vdl}")
    k(f"v_cos_f32 v{vc2}, v{vtmp}")
    k("s_nop 0")
    k(f"v_add_f32 v{vc2}, v{vc2}, v{vc2}")
    def gblock(b, nopk=False):
        c = Cap()
        cos_block(c, vG + 20*b, 20, vrev, vdl, vc2, vtmp, halve_last=(b == 7), nopk=nopk)
        if b < 7:
            c(f"v_add_f32 v{vrev}, v{vrev}, v{vstep}")
            c(f"v_fract_f32 v{vrev}, v{vrev}")
        return c.L
    for b in range(8 - NSH):
        for t in gblock(b): k(t)
        if b == 2:
            k("s_waitcnt lgkmcnt(0)")
            k.srd(12, 6, WS_END)
            k(f"v_and_b32 v{vm+1}, 31, v{vl}")
            k(f"v_lshlrev_b32 v{vm+1}, 2, v{vm+1}")
            k(f"s_lshl_b32 s22, s{srow}, 8")
            k(f"s_add_u32 s22, s22, {WS_MS}")
            k(f"buffer_load_dword v{vm}, v{vm+1}, s[12:15], s22 offen")
            k(f"buffer_load_dword v{vm+1}, v{vm+1}, s[12:15], s22 offen offset:128")
    c = k
    c(f"v_bfe_u32 v{t0}, v{vl}, 2, 2")
    c(f"v_lshrrev_b32 v{t1}, 5, v{vl}")
    c(f"v_lshlrev_b32 v{t1}, 3, v{t1}")
    c(f"v_bfe_u32 v{t2}, v{vl}, 4, 1")
    c(f"v_lshl_or_b32 v{t1}, v{t2}, 1, v{t1}")
    c(f"v_bfe_u32 v{t2}, v{vl}, 1, 1")
    c(f"v_or_b32 v{t1}, v{t1}, v{t2}")
    c(f"v_lshlrev_b32 v{t2}, 2, v{t0}")
    c(f"v_xor_b32 v{t1}, v{t1}, v{t2}")
    c(f"v_lshlrev_b32 v{t1}, 4, v{t1}")
    c(f"v_lshl_add_u32 v{t1}, v{t0}, 8, v{t1}")
    c(f"v_and_b32 v{t2}, 1, v{vl}")
    c(f"v_lshl_add_u32 v{vB}, v{t2}, 3, v{t1}")
    c(f"v_xor_b32 v{vB+1}, 64, v{vB}")
    c(f"v_add_u32 v{vB+2}, 40960, v{vB}")
    c(f"v_add_u32 v{vB+3}, 40960, v{vB+1}")
    c(f"v_lshrrev_b32 v{t1}, 5, v{vl}")
    c(f"s_lshl_b32 s24, s{sw}, 2")
    c(f"v_add_u32 v{t1}, s24, v{t1}")
    c(f"v_xor_b32 v{t1}, v{t1}, v{vl}")
    c(f"v_and_b32 v{t1}, 15, v{t1}")
    c(f"v_lshlrev_b32 v{t1}, 4, v{t1}")
    c(f"v_and_b32 v{t2}, 31, v{vl}")
    c(f"v_lshl_add_u32 v{t1}, v{t2}, 8, v{t1}")
    c(f"v_add_u32 v{vxr}, {XO}, v{t1}")
    c(f"v_lshlrev_b32 v{vst}, 4, v{vl}")
    c(f"s_mul_i32 s24, s{srow}, {80*1024}")
    c(f"s_lshl_b32 s25, s26, 11")
    c(f"s_add_u32 s24, s24, s25")
    c(f"s_add_u32 s24, s24, {WS_HC}")
    stamp(0)
    shadow = []
    for b in range(8 - NSH, 8): shadow += gblock(b, True)
    def rd(kk):
        sl = kk % 3
        hi = 2 if kk >= 20 else 0
        off = (kk % 20) * 2048
        for nt in range(2):
            for z in range(2):
                b = vfb + sl*8 + nt*4 + 2*z
                k(f"ds_read_b64_tr_b16 v[{b}:{b+1}], v{vB+hi+nt} offset:{off + z*1024}")
    k("s_barrier"); stamp(2); rd(0); rd(1)
    tot = len(shadow)
    for kk in range(40):
        nk = kk + 2
        if nk < 40:
            if nk % 8 == 0: k("s_barrier")
            rd(nk)
            k("s_waitcnt lgkmcnt(8)")
        elif nk == 40: k("s_waitcnt lgkmcnt(4)")
        else: k("s_waitcnt lgkmcnt(0)")
        sl = kk % 3
        if kk % 5 == 0 and kk // 5 >= 8 - NSH:
            done = tot - len(shadow)
            need = sum(len(gblock(b, True)) for b in range(8 - NSH, kk // 5 + 1))
            assert done >= need, (kk, done, need)
        for nt in range(2):
            fb = vfb + sl*8 + nt*4
            cs = f"v[{vacc+16*nt}:{vacc+16*nt+15}]" if kk else "0"
            k(f"v_mfma_f32_32x32x16_bf16 v[{vacc+16*nt}:{vacc+16*nt+15}], v[{vG+4*kk}:{vG+4*kk+3}], v[{fb}:{fb+3}], {cs}")
            for _ in range(SHP):
                if shadow: k(shadow.pop(0))
    assert not shadow
    stamp(3)
    k("s_waitcnt vmcnt(0)")
    k("s_barrier")
    vx = vG; vu = vG + 16; vo = vG + 48; vxr2 = vG + 64; vsc = vG + 66; vmm = vG + 68; vsq = vG + 72
    k(f"v_xor_b32 v{vxr2}, 32, v{vxr}")
    for nt in range(2):
        k(f"ds_read_b128 v[{vx+8*nt}:{vx+8*nt+3}], v{vxr} offset:{8192*nt}")
        k(f"ds_read_b128 v[{vx+8*nt+4}:{vx+8*nt+7}], v{vxr2} offset:{8192*nt}")
    k(f"v_mov_b32 v{vsc}, {fh(2/(2048*640))}")
    for nt in range(2):
        k(f"v_xor_b32 v{vmm+2*nt}, 0x80000000, v{vm+nt}")
    k("s_waitcnt lgkmcnt(0)")
    for nt in range(2):
        for q in range(2):
            xb = vx + 8*nt + 4*q; ub = vu + 8*(2*nt+q); ab = vacc + 16*nt + 8*q; ob = vo + 4*(2*nt+q)
            for z in range(4):
                k(f"v_lshlrev_b32 v{ub+2*z}, 16, v{xb+z}")
                k(f"v_and_b32 v{ub+2*z+1}, 0xffff0000, v{xb+z}")
            for z in range(4):
                k(f"v_pk_add_f32 v[{ub+2*z}:{ub+2*z+1}], v[{ub+2*z}:{ub+2*z+1}], v[{vmm+2*nt}:{vmm+2*nt+1}] op_sel_hi:[1,0]")
            for z in range(4):
                k(f"v_pk_fma_f32 v[{ub+2*z}:{ub+2*z+1}], v[{ab+2*z}:{ab+2*z+1}], v[{vsc}:{vsc+1}], v[{ub+2*z}:{ub+2*z+1}] op_sel_hi:[1,0,1]")
            for z in range(4):
                k(f"v_cvt_pk_bf16_f32 v{ob+z}, v{ub+2*z}, v{ub+2*z+1}")
            k(f"s_add_u32 s25, s24, {(nt*40 + q)*1024}")
            k(f"buffer_store_dwordx4 v[{ob}:{ob+3}], v{vst}, s[12:15], s25 offen{SC}")
            for z in range(4):
                if q == 0 and z == 0: k(f"v_pk_mul_f32 v[{vsq+2*nt}:{vsq+2*nt+1}], v[{ub}:{ub+1}], v[{ub}:{ub+1}]")
                else: k(f"v_pk_fma_f32 v[{vsq+2*nt}:{vsq+2*nt+1}], v[{ub+2*z}:{ub+2*z+1}], v[{ub+2*z}:{ub+2*z+1}], v[{vsq+2*nt}:{vsq+2*nt+1}]")
    k(f"v_add_f32 v{vsq}, v{vsq}, v{vsq+1}")
    k(f"v_add_f32 v{vsq+2}, v{vsq+2}, v{vsq+3}")
    k(f"s_mul_i32 s24, s{srow}, {20*256}")
    k(f"s_lshl_b32 s25, s26, 8")
    k(f"s_add_u32 s24, s24, s25")
    k(f"s_add_u32 s24, s24, {WS_SQ}")
    k(f"v_permlane32_swap_b32 v{vsq}, v{vsq+2}")
    k(f"v_lshlrev_b32 v{t1}, 2, v{vl}")
    k("s_nop 0")
    k(f"v_add_f32 v{vsq}, v{vsq}, v{vsq+2}")
    k(f"buffer_store_dword v{vsq}, v{t1}, s[12:15], s24 offen{SC}")
    if fused:
        k(f"s_mul_i32 s24, s{srow}, 20")
        k("s_add_u32 s24, s24, s26")
        k("s_lshl_b32 s24, s24, 7")
        k(f"s_add_u32 s24, s24, {WS_FL2}")
        k(f"v_mov_b32 v{t1}, 1")
        k("s_mov_b64 exec, 1")
        k("s_waitcnt vmcnt(0)")
        k(f"buffer_store_dword v{t1}, off, s[12:15], s24 sc1")
        k("s_mov_b64 exec, -1")
        stamp(4)
        k(f"s_branch {NEXT}")
    else: k("s_endpgm")
    k.lab(PROD)
    B = Alloc(t2 + 1)
    vdma = B(); vxd = B(4)
    k(f"v_lshrrev_b32 v{t0}, 4, v{vl}")
    k(f"v_lshlrev_b32 v{t1}, 2, v{t0}")
    k(f"v_xor_b32 v{t1}, v{t1}, v{vl}")
    k(f"v_and_b32 v{t1}, 15, v{t1}")
    k(f"v_lshrrev_b32 v{t2}, 3, v{t1}")
    k(f"v_and_b32 v{t1}, 7, v{t1}")
    k(f"v_lshlrev_b32 v{t1}, 4, v{t1}")
    k(f"v_lshl_add_u32 v{t1}, v{t2}, 12, v{t1}")
    k(f"v_lshl_add_u32 v{vdma}, v{t0}, 13, v{t1}")
    k(f"s_lshl_b32 s19, s{srow}, 7")
    k(f"s_lshl_b32 s20, s{sw}, 16")
    k(f"s_add_u32 s19, s19, s20")
    k(f"s_add_u32 s19, s19, {WS_UT}")
    k(f"s_lshl_b32 s20, s{sw}, 11")
    k("s_waitcnt lgkmcnt(0)")
    k.srd(12, 6, WS_END)
    k.srd(8, 4, 2621440)
    for c in range(10):
        for i in range(2):
            k(f"s_add_u32 m0, s20, {c*8192 + i*1024}")
            k(f"s_add_u32 s22, s19, {c*8*32768 + i*32768}")
            k(f"buffer_load_dwordx4 v{vdma}, s[12:15], s22 offen lds")
    k(f"v_xor_b32 v{t1}, v{t0}, v{vl}")
    k(f"v_and_b32 v{t1}, 15, v{t1}")
    k(f"v_lshlrev_b32 v{t1}, 4, v{t1}")
    k(f"v_mul_u32_u24 v{t2}, 1280, v{t0}")
    for i in range(4):
        k(f"v_xor_b32 v{vxd+i}, {64*i}, v{t1}")
        k(f"v_add_u32 v{vxd+i}, v{vxd+i}, v{t2}")
    k(f"s_lshl_b32 s22, s{srow}, 2")
    k(f"s_add_u32 s22, s22, s{sw}")
    k(f"s_mul_i32 s21, s22, {16*1280}")
    k(f"s_lshl_b32 s23, s{scol}, 8")
    k(f"s_add_u32 s21, s21, s23")
    k(f"s_lshl_b32 s23, s{sw}, 12")
    for i in range(4):
        k(f"s_add_u32 m0, s23, {XO + i*1024}")
        k(f"s_add_u32 s22, s21, {4*i*1280}")
        k(f"buffer_load_dwordx4 v{vxd+i}, s[8:11], s22 offen lds")
    stamp(0)
    for p in range(5):
        k(f"s_waitcnt vmcnt({20-4*p})")
        k("s_barrier")
        if p == 0: stamp(1)
    k("s_waitcnt vmcnt(0)")
    k("s_barrier")
    stamp(3)
    if fused:
        k(f"s_branch {NEXT}")
        return k
    k("s_endpgm")
    if side:
        k.lab(SIDE)
        prep_job(k, label, 0, END, NW=8)
    k.lab(END)
    k("s_endpgm")
    return k
if __name__ == "__main__":
    from k1 import make_k1
    from k2 import make_k2
    build([make_k1(), make_k2(), make_k3()], "k123.s")
```

```python
from common import *
def make_k45(label="k45_kernel", NS=7, var="", P=4, rot=0, pf=1, nxt=None, TR0=1, TRN=2, CW0=26, SPIN=20000, f3=0, st=None):
    ST = 20480
    k = Kern(label, grid=256, block=512, lds=NS*ST, vgpr=256)
    END = f"{label}_end"
    k("s_cmp_ge_u32 s2, 256")
    k(f"s_cbranch_scc1 {END}")
    k("s_load_dwordx2 s[6:7], s[0:1], 72")
    k("s_load_dwordx2 s[58:59], s[0:1], 56")
    if f3: k("s_load_dwordx2 s[4:5], s[0:1], 0")
    if pf: k.prefetch(nxt=None, regs=(254, 255), shift=7)
    st = st if st is not None else {"a_end": 0, "h_flag": 1, "h_got": 2, "b_end": 3}
    _st = k.stamp
    def stamp(n):
        if n in st: _st(st[n])
    if f3:
        from k3 import make_k3
        P4 = f"{label}_p4"
        k("s_cmp_ge_u32 s2, 160")
        k(f"s_cbranch_scc1 {P4}")
        make_k3(label=label, side=0, kin=k, NEXT=P4, st={i: st[n] for i, n in ((0, "p3_c0"), (2, "p3_bar"), (3, "p3_end"), (4, "p3_flag")) if n in st})
        k.lab(P4)
    A = Alloc(1)
    vl = A(); t0 = A(); t1 = A()
    vdma = A(); vA = A(3); vB = A(3); vst = A()
    vr = A(8, 2); vt = A(20, 2)
    vacc = A(96, 4); fA = A(24, 4); fB = A(16, 4)
    assert A.n == 176 and vdma == 4 and t0 == 2, A.n
    vm = VM(k); vmh = [vm]
    sw, swm, swn, srow, sf = 16, 17, 18, 19, 20
    k(f"v_and_b32 v{vl}, 63, v0")
    k(f"v_lshrrev_b32 v{t0}, 6, v0")
    k("s_and_b32 s22, s2, 7")
    k("s_lshr_b32 s23, s2, 3")
    k(f"v_readfirstlane_b32 s21, v{t0}")
    k(f"s_and_b32 s{sw}, s21, 3")
    k("s_and_b32 s24, s22, 3")
    k("s_lshl_b32 s24, s24, 2")
    k("s_and_b32 s25, s23, 3")
    k(f"s_add_u32 s{sf}, s24, s25")
    k("s_lshr_b32 s24, s22, 2")
    k("s_lshl_b32 s24, s24, 3")
    k("s_lshr_b32 s25, s23, 2")
    k(f"s_add_u32 s{srow}, s24, s25")
    k(f"s_lshr_b32 s{swm}, s{sw}, 1")
    k(f"s_and_b32 s{swn}, s{sw}, 1")
    k(f"v_lshlrev_b32 v{vdma}, 4, v{vl}")
    sA, sB, mA, mB, sQ = 26, 27, 28, 29, 30
    k(f"s_mul_i32 s{sA}, s{sf}, {40*6144}")
    k(f"s_mul_i32 s22, s{sw}, 3072")
    k(f"s_add_u32 s{sA}, s{sA}, s22")
    k(f"s_add_u32 s{sA}, s{sA}, {WS_WA}")
    k(f"s_lshl_b32 s23, s{srow}, 2")
    k(f"s_add_u32 s23, s23, s{sw}")
    k(f"s_mul_i32 s{sB}, s23, 40960")
    k(f"s_add_u32 s{sB}, s{sB}, {WS_HC}")
    k(f"s_mov_b32 s{mA}, s22")
    k(f"s_lshl_b32 s{mB}, s{sw}, 11")
    k(f"s_add_u32 s{mB}, s{mB}, 12288")
    k(f"s_lshl_b32 s23, s{srow}, 1")
    k(f"s_add_u32 s23, s23, s{swn}")
    k(f"s_mul_i32 s{sQ}, s23, {20*256}")
    k(f"s_add_u32 s{sQ}, s{sQ}, {WS_SQ}")
    k(f"v_lshlrev_b32 v{t1}, 2, v{vl}")
    k("s_waitcnt lgkmcnt(0)")
    k.srd(8, 6, WS_END)
    k.srd(12, 58, 2621440)
    WB0 = 136; vld = vdma; vld4 = t0
    k("s_and_b32 s22, s2, 7")
    k("s_lshl_b32 s22, s22, 2")
    k("s_lshr_b32 s23, s2, 6")
    k("s_add_u32 s36, s22, s23")
    k("s_lshr_b32 s23, s2, 3")
    k("s_and_b32 s37, s23, 7")
    k("s_mul_i32 s38, s21, 240")
    k("s_mul_i32 s22, s37, 5")
    k("s_add_u32 s38, s38, s22")
    k("s_lshl_b32 s38, s38, 10")
    k(f"s_add_u32 s38, s38, {WS_WB}")
    def w2ld(n):
        i, mt = n // 5, n % 5
        b = WB0 + 20*i + 4*mt
        L = []
        if mt == 0: L.append(f"s_add_u32 s35, s38, {i*40960}")
        L.append(f"buffer_load_dwordx4 v[{b}:{b+3}], v{vld if mt < 4 else vld4}, s[8:11], s35 offen offset:{1024*(mt%4)}")
        return L
    def phaseB(hi):
        g = 21
        mts = [3, 4] if hi else [0, 1, 2]; Lt = len(mts)
        HA, HB, HC, ACC = 8, 24, 120, 40
        vhc, vo, vma = 5, 6, 7
        W = lambda i: WB0 + 20*i
        k(f"s_mul_i32 s22, s{g}, 6")
        for n in range(4):
            k(f"s_add_u32 s23, s{g}, {n}")
            k("s_and_b32 s23, s23, 3")
            k("s_lshl_b32 s24, s36, 2")
            k("s_add_u32 s23, s23, s24")
            k("s_mul_i32 s23, s23, 48")
            k("s_add_u32 s23, s23, s22")
            k("s_lshl_b32 s23, s23, 10")
            k(f"s_add_u32 s{40+n}, s23, {WS_HF}")
        k("s_lshl_b32 s23, s36, 5")
        k(f"s_lshl_b32 s24, s{g}, 2")
        k("s_add_u32 s23, s23, s24")
        k("s_lshl_b32 s23, s23, 7")
        k(f"s_add_u32 s39, s23, {WS_FL}")
        k(f"v_and_b32 v{t1}, 3, v{vl}")
        k(f"v_lshlrev_b32 v{t1}, 7, v{t1}")
        for n in range(4):
            for h in range(2):
                d = 44 + 2*n + h
                k(f"s_add_u32 s23, s{g}, {n}")
                k("s_and_b32 s23, s23, 3")
                k(f"s_sub_u32 s24, s{g}, s23")
                k(f"s_sub_u32 s24, s24, {4*h + 1}")
                k("s_and_b32 s24, s24, 7")
                k(f"s_mul_i32 s24, s24, {2048 if h else 3072}")
                k(f"s_mul_i32 s23, s23, {14336 if h else 21504}")
                k(f"s_add_u32 s{d}, s23, s24")
                if h: k(f"s_add_u32 s{d}, s{d}, {4*21504}")
        k(f"s_and_b32 s53, s{g}, 3")
        k(f"s_mul_i32 s52, s53, {14336 if hi else 21504}")
        if hi: k(f"s_add_u32 s52, s52, {4*21504}")
        k(f"v_lshrrev_b32 v{vo}, 4, v{vl}")
        k(f"v_and_b32 v{vma}, 15, v{vl}")
        k(f"v_lshrrev_b32 v8, 1, v{vo}")
        k(f"v_lshlrev_b32 v8, 9, v8")
        k(f"v_lshl_add_u32 v8, v{vma}, 4, v8")
        k(f"v_and_b32 v{vhc}, 1, v{vo}")
        k(f"v_lshl_add_u32 v{vhc}, v{vhc}, 3, v8")
        k(f"v_mul_u32_u24 v8, 1280, v{vma}")
        k(f"v_lshl_add_u32 v{vo}, v{vo}, 3, v8")
        k(f"v_lshlrev_b32 v{vma}, 2, v{vma}")
        k("s_lshl_b32 s22, s36, 1")
        k("s_lshr_b32 s23, s53, 1")
        k("s_add_u32 s22, s22, s23")
        k("s_mul_i32 s22, s22, 40")
        k("s_mul_i32 s23, s37, 5")
        k("s_add_u32 s22, s22, s23")
        k(f"s_add_u32 s22, s22, {mts[0]}")
        k("s_lshl_b32 s22, s22, 10")
        k("s_and_b32 s23, s53, 1")
        k("s_lshl_b32 s23, s23, 8")
        k("s_add_u32 s22, s22, s23")
        k(f"s_add_u32 s54, s22, {WS_HC}")
        k("s_lshl_b32 s22, s36, 2")
        k("s_add_u32 s22, s22, s53")
        k("s_lshl_b32 s23, s22, 6")
        k(f"s_add_u32 s55, s23, {WS_MS}")
        k(f"s_mul_i32 s56, s22, {16*1280}")
        k("s_mul_i32 s23, s37, 160")
        k("s_add_u32 s56, s56, s23")
        lp = k.newlab("poll"); dn = k.newlab("got")
        k(f"s_mov_b32 s57, {SPIN}")
        k.lab(lp)
        k(f"buffer_load_dword v8, v{t1}, s[8:11], s39 offen sc1")
        k("s_sub_u32 s57, s57, 1")
        k("s_cmp_eq_u32 s57, 0")
        k(f"s_cbranch_scc1 {dn}")
        k("s_waitcnt vmcnt(0)")
        k("v_cmp_ne_u32 vcc, 1, v8")
        k("s_cmp_lg_u64 vcc, 0")
        k(f"s_cbranch_scc1 {lp}")
        k.lab(dn)
        k("s_waitcnt vmcnt(0)")
        stamp("h_got")
        vb = VM(k)
        Hreg = [HA, HB, HC, HA, W(0), HB]
        def hld(i, n):
            b = Hreg[i] + 4*n
            vb.issue(f"buffer_load_dwordx4 v[{b}:{b+3}], v{vld if i < 4 else vld4}, s[8:11], s{40+n} offen offset:{1024*(i%4)}", ("h", i))
        for i in range(3):
            for n in range(4): hld(i, n)
        E = W(1)
        for i in range(6):
            vb.wait(("h", i))
            for n in range(4):
                for mt in range(5):
                    d = ACC + 4*(5*n + mt)
                    cs = f"v[{d}:{d+3}]" if i else "0"
                    k(f"v_mfma_f32_16x16x32_bf16 v[{d}:{d+3}], v[{W(i)+4*mt}:{W(i)+4*mt+3}], v[{Hreg[i]+4*n}:{Hreg[i]+4*n+3}], {cs}")
                if i == 0: hld(3, n)
                if i == 1: hld(4, n)
                if i == 1 and n == 3:
                    pass
                if i == 2 and n == 0:
                    for q in range(4): hld(5, q)
                if i == 2 and n == 1:
                    for t in range(Lt):
                        vb.issue(f"buffer_load_dwordx2 v[{E+2*t}:{E+2*t+1}], v{vhc}, s[8:11], s54 offen offset:{1024*t}", "e")
                    vb.issue(f"buffer_load_dword v{E+8}, v{vma}, s[8:11], s55 offen", "e")
        stamp("b_end")
        k("s_nop 4")
        va = HC
        for n in (1, 2, 3, 0):
            for h in range(2):
                if n == 0 and h == (1 if hi else 0): continue
                k(f"v_add_u32 v{va + 2*n + h}, s{44 + 2*n + h}, v{vld}")
                for t, mt in enumerate([3, 4] if h else [0, 1, 2]):
                    d = ACC + 4*(5*n + mt)
                    k(f"ds_write_b128 v{va + 2*n + h}, v[{d}:{d+3}] offset:{1024*t}")
        k(f"v_add_u32 v{va+8}, s52, v{vld}")
        k("s_waitcnt lgkmcnt(0)")
        k("s_barrier")
        R = 168
        assert R + 7*Lt*4 <= 256
        for sl in range(7):
            for t in range(Lt):
                b = R + 4*(sl*Lt + t)
                k(f"ds_read_b128 v[{b}:{b+3}], v{va+8} offset:{1024*(sl*Lt + t)}")
        u = 8
        vb.wait("e")
        for t in range(Lt):
            for z in range(2):
                k(f"v_lshlrev_b32 v{u+4*t+2*z}, 16, v{E+2*t+z}")
                k(f"v_and_b32 v{u+4*t+2*z+1}, 0xffff0000, v{E+2*t+z}")
        for z in range(2*Lt):
            k(f"v_pk_add_f32 v[{u+2*z}:{u+2*z+1}], v[{u+2*z}:{u+2*z+1}], v[{E+8}:{E+9}] op_sel_hi:[1,0]")
        own = ACC + 4*mts[0]
        for z in range(2*Lt):
            k(f"v_pk_add_f32 v[{u+2*z}:{u+2*z+1}], v[{u+2*z}:{u+2*z+1}], v[{own+2*z}:{own+2*z+1}]")
        n_rd = 7*Lt
        def wait_sl(sl): k(f"s_waitcnt lgkmcnt({min(15, n_rd - (sl+1)*Lt)})")
        wait_sl(1)
        for z in range(2*Lt):
            k(f"v_pk_add_f32 v[{R+2*z}:{R+2*z+1}], v[{R+2*z}:{R+2*z+1}], v[{R+4*Lt+2*z}:{R+4*Lt+2*z+1}]")
        for sl in range(2, 7):
            wait_sl(sl)
            tgt = u if sl % 2 == 0 else R
            for z in range(2*Lt):
                k(f"v_pk_add_f32 v[{tgt+2*z}:{tgt+2*z+1}], v[{tgt+2*z}:{tgt+2*z+1}], v[{R+4*Lt*sl+2*z}:{R+4*Lt*sl+2*z+1}]")
        for z in range(2*Lt):
            k(f"v_pk_add_f32 v[{u+2*z}:{u+2*z+1}], v[{u+2*z}:{u+2*z+1}], v[{R+2*z}:{R+2*z+1}]")
        o = 24
        for t in range(Lt):
            for z in range(2):
                k(f"v_cvt_pk_bf16_f32 v{o+2*t+z}, v{u+4*t+2*z}, v{u+4*t+2*z+1}")
            k(f"buffer_store_dwordx2 v[{o+2*t}:{o+2*t+1}], v{vo}, s[12:15], s56 offen offset:{32*mts[t]}")
        k("s_endpgm")
    scur = 34
    def dma_items(c):
        sl = c % NS
        def mk(i):
            def f():
                if "nodma" in var: return
                if i == 0:
                    k(f"s_add_u32 m0, s{mA}, {sl*ST}")
                    k(f"s_mul_i32 s22, s{scur}, 12288")
                    k(f"s_add_u32 s22, s22, s{sA}")
                if i == 3:
                    k(f"s_add_u32 m0, s{mB}, {sl*ST}")
                    k(f"s_lshl_b32 s22, s{scur}, 11")
                    k(f"s_add_u32 s22, s22, s{sB}")
                o = i if i < 3 else i - 3
                vmh[0].issue(f"buffer_load_dwordx4 v{vdma}, s[8:11], s22 offen offset:{1024*o} lds", ("c", c))
                if i == 4:
                    k(f"s_add_u32 s{scur}, s{scur}, 1")
                    k(f"s_cmp_eq_u32 s{scur}, 20")
                    k(f"s_cselect_b32 s{scur}, 0, s{scur}")
            return f
        return [mk(i) for i in range(5)]
    if rot:
        k("s_lshr_b32 s23, s2, 3")
        k("s_and_b32 s24, s23, 3")
        k("s_mul_i32 s24, s24, 5")
        k("s_lshr_b32 s23, s23, 2")
        k("s_mul_i32 s23, s23, 5")
        k("s_lshr_b32 s23, s23, 1")
        k(f"s_add_u32 s{scur}, s23, s24")
        k(f"s_cmp_ge_u32 s{scur}, 20")
        k(f"s_cselect_b32 s24, 20, 0")
        k(f"s_sub_u32 s{scur}, s{scur}, s24")
    else:
        k(f"s_mov_b32 s{scur}, 0")
    PROD = f"{label}_prod"
    k("s_cmp_ge_u32 s21, 4")
    k(f"s_cbranch_scc1 {PROD}")
    def sqloads():
        for j in range(20):
            vm.issue(f"buffer_load_dword v{vt+j}, v{t1}, s[8:11], s{sQ} offen offset:{256*j}" if j < 16 else
                     f"buffer_load_dword v{vt+j}, v{t1}, s[8:11], s31 offen offset:{256*(j-16)}", "sq")
            if j == 0: k(f"s_add_u32 s31, s{sQ}, 4096")
    if not f3: sqloads()
    setup = []
    setup += [f"s_mul_i32 s23, s{swm}, 3072", f"v_add_u32 v{vA}, s23, v{vdma}", f"s_lshl_b32 s23, s{swn}, 12", f"s_add_u32 s23, s23, 12288", f"v_add_u32 v{vB}, s23, v{vdma}"]
    for i in range(1, 3):
        setup += [f"v_add_u32 v{vA+i}, {i*3*ST}, v{vA}", f"v_add_u32 v{vB+i}, {i*3*ST}, v{vB}"]
    setup += [f"v_bfe_u32 v{t0}, v{vl}, 4, 1", f"v_mul_u32_u24 v{t0}, 49152, v{t0}", f"v_lshrrev_b32 v{vst}, 5, v{vl}",
              f"v_lshl_add_u32 v{t0}, v{vst}, 8, v{t0}", f"v_and_b32 v{vst}, 15, v{vl}", f"v_lshl_add_u32 v{vst}, v{vst}, 4, v{t0}"]
    for t in setup: k(t)
    k(f"v_add_u32 v{vld4}, 4096, v{vld}")
    def rd_items(kk):
        if "nord" in var: return []
        c, k2 = kk // 2, kk % 2
        sl = c % NS; st, so = sl // 3, (sl % 3) * ST
        b = kk & 1
        L = []
        L.append(f"ds_read_b128 v[{fA+12*b}:{fA+12*b+3}], v{vA+st} offset:{so + k2*6144}")
        for nt in range(2):
            L.append(f"ds_read_b128 v[{fB+8*b+4*nt}:{fB+8*b+4*nt+3}], v{vB+st} offset:{so + nt*2048 + k2*1024}")
        for i in range(1, 3):
            L.append(f"ds_read_b128 v[{fA+12*b+4*i}:{fA+12*b+4*i+3}], v{vA+st} offset:{so + k2*6144 + i*1024}")
        return L
    def wait_chunk(c):
        k("s_barrier")
    wait_chunk(0)
    stamp("a_c0")
    if f3: sqloads()
    if "clk" in var: k.stamp(10)
    for t in rd_items(0): k(t)
    pend = []
    nextc = NS
    rl0 = vr; rl1 = vr + 4
    cw = list(range(10, 30))
    extra = []
    for kk in range(40):
        c = kk // 2
        b = kk & 1
        k("s_waitcnt lgkmcnt(0)")
        if kk & 1 and kk + 1 < 40:
            wait_chunk(c + 1)
        mf = []
        for i in range(3):
            for nt in range(2):
                d = vacc + 16*(2*i + nt)
                cs = f"v[{d}:{d+15}]" if kk else "0"
                mf.append(f"v_mfma_f32_32x32x16_bf16 v[{d}:{d+15}], v[{fA+12*b+4*i}:{fA+12*b+4*i+3}], v[{fB+8*b+4*nt}:{fB+8*b+4*nt+3}], {cs}")
        if "nomfma" in var: mf = ["" for _ in mf]
        rds = rd_items(kk + 1) if kk + 1 < 40 else []
        ndma = 2 if (kk & 1) else 3
        dm = pend[:ndma]; pend = pend[ndma:]
        if kk == 6:
            def w(): vm.wait("sq")
            extra = [w] + [f"v_add_f32 v{vt+2*z}, v{vt+2*z}, v{vt+2*z+1}" for z in range(10)]
            extra += [f"v_add_f32 v{vt+4*z}, v{vt+4*z}, v{vt+4*z+2}" for z in range(5)]
            extra += [f"v_add_f32 v{vt}, v{vt}, v{vt+4}", f"v_add_f32 v{vt+8}, v{vt+8}, v{vt+12}", f"v_add_f32 v{vt}, v{vt}, v{vt+16}", f"v_add_f32 v{vt}, v{vt}, v{vt+8}",
                      f"v_mul_f32 v{vt}, {fh(1/640)}, v{vt}", f"v_add_f32 v{vt}, {fh(1e-5)}, v{vt}",
                      f"v_mov_b32 v{vt+1}, v{vt}", "s_nop 1", f"v_permlane32_swap_b32 v{vt}, v{vt+1}", "s_nop 1",
                      f"v_rsq_f32 v{vt+2}, v{vt}", f"v_rsq_f32 v{vt+3}, v{vt+1}", "s_nop 0",
                      f"v_mul_f32 v{rl0}, {fh(-1.4426950408889634)}, v{vt+2}", f"v_mul_f32 v{rl1}, {fh(-1.4426950408889634)}, v{vt+3}",
                      f"v_mov_b32 v{rl0+2}, v{vt}", f"v_mov_b32 v{rl1+2}, v{vt+1}"]
        slots = [[] for _ in range(6)]
        for j, t in enumerate(rds): slots[[0,0,1,1,2][j]].append(t)
        for j, t in enumerate(dm): slots[3 + j].append(t)
        if kk >= CW0:
            for j in (3, 5):
                if cw: slots[j] += w2ld(cw.pop(0))
        ne = 0
        for i in range(6):
            if mf[i]: k(mf[i])
            for t in slots[i]:
                if callable(t): t()
                else: k(t)
            for _ in range(3):
                if extra:
                    t = extra.pop(0)
                    if callable(t): t()
                    else: k(t)
    assert not pend and not extra and not cw
    k("s_barrier")
    stamp("a_end")
    k(f"s_lshl_b32 s23, s{srow}, 2")
    k(f"s_lshl_b32 s24, s{swn}, 1")
    k(f"s_add_u32 s23, s23, s24")
    k(f"s_mul_i32 s23, s23, {96*1024}")
    k(f"s_add_u32 s23, s23, {WS_HF}")
    k(f"s_mul_i32 s24, s{sf}, 6")
    k(f"s_mul_i32 s25, s{swm}, 3")
    k(f"s_add_u32 s24, s24, s25")
    k(f"s_lshl_b32 s24, s24, 9")
    k(f"s_add_u32 s23, s23, s24")
    k("s_nop 3")
    tiles = [(i, nt) for i in range(3) for nt in range(2)]
    def stA(t):
        i, nt = tiles[t]; d = vacc + 16*(2*i + nt); rl = vr + 4*nt; e = vt + 8*(t & 1)
        L = [f"v_pk_mul_f32 v[{e+2*z}:{e+2*z+1}], v[{d+2*z}:{d+2*z+1}], v[{rl}:{rl+1}] op_sel_hi:[1,0]" for z in range(4)]
        L += [f"v_exp_f32 v{e+z}, v{e+z}" for z in range(8)]
        return L
    def stB(t):
        i, nt = tiles[t]; d = vacc + 16*(2*i + nt); r2 = vr + 4*nt + 2; e = vt + 8*(t & 1)
        L = [f"v_pk_fma_f32 v[{e+2*z}:{e+2*z+1}], v[{e+2*z}:{e+2*z+1}], v[{r2}:{r2+1}], v[{r2}:{r2+1}] op_sel_hi:[1,0,0]" for z in range(4)]
        L += [f"v_pk_mul_f32 v[{d+2*z}:{d+2*z+1}], v[{d+2*z}:{d+2*z+1}], v[{d+8+2*z}:{d+8+2*z+1}]" for z in range(4)]
        L += [f"v_rcp_f32 v{e+z}, v{e+z}" for z in range(8)]
        L += ["s_nop 0"]
        L += [f"v_pk_mul_f32 v[{d+2*z}:{d+2*z+1}], v[{d+2*z}:{d+2*z+1}], v[{e+2*z}:{e+2*z+1}]" for z in range(4)]
        L += [f"v_cvt_pk_bf16_f32 v{d+8+z}, v{d+2*z}, v{d+2*z+1}" for z in range(4)]
        L += [f"s_add_u32 s25, s23, {nt*96*1024 + i*512}", f"buffer_store_dwordx4 v[{d+8}:{d+11}], v{vst}, s[8:11], s25 offen sc1"]
        return L
    cw = list(range(10))
    def cwl(n):
        for _ in range(n):
            if cw:
                for x in w2ld(cw.pop(0)): k(x)
    cwl(2)
    for t in stA(0): k(t)
    for t in range(6):
        cwl(1)
        if t + 1 < 6:
            for x in stA(t+1): k(x)
        else: k("s_nop 0")
        cwl(1)
        for x in stB(t): k(x)
    assert not cw or True
    cwl(10)
    k(f"s_lshl_b32 s23, s{srow}, 1")
    k(f"s_add_u32 s23, s23, s{swn}")
    k("s_lshl_b32 s23, s23, 5")
    k(f"s_lshl_b32 s24, s{sf}, 1")
    k("s_add_u32 s23, s23, s24")
    k(f"s_add_u32 s23, s23, s{swm}")
    k("s_lshl_b32 s23, s23, 7")
    k(f"s_add_u32 s23, s23, {WS_FL}")
    k(f"v_mov_b32 v{t1}, 1")
    k("s_mov_b64 exec, 1")
    k("s_waitcnt vmcnt(0)")
    k(f"buffer_store_dword v{t1}, off, s[8:11], s23 sc1")
    k("s_mov_b64 exec, -1")
    stamp("h_flag")
    phaseB(False)
    k.lab(PROD)
    vm = VM(k); vmh[0] = vm
    nxt = 0
    if f3:
        its = [dma_items(c) for c in range(P)]
        k(f"s_mov_b32 s{scur}, 0")
        for c in range(P):
            k(f"s_mov_b32 s{scur}, {c}")
            for f in its[c][:3]: f()
        k(f"s_lshl_b32 s23, s{srow}, 1")
        k(f"s_lshr_b32 s24, s{sw}, 1")
        k("s_add_u32 s23, s23, s24")
        k(f"s_mul_i32 s23, s23, {20*128}")
        k(f"s_add_u32 s39, s23, {WS_FL2}")
        k(f"v_min_u32 v{t1}, 19, v{vl}")
        k(f"v_lshlrev_b32 v{t1}, 7, v{t1}")
        lp = k.newlab("poll"); dn = k.newlab("got")
        k(f"s_mov_b32 s57, {SPIN}")
        k.lab(lp)
        k(f"buffer_load_dword v8, v{t1}, s[8:11], s39 offen sc1")
        k("s_sub_u32 s57, s57, 1")
        k("s_cmp_eq_u32 s57, 0")
        k(f"s_cbranch_scc1 {dn}")
        k("s_waitcnt vmcnt(0)")
        k("v_cmp_ne_u32 vcc, 1, v8")
        k("s_cmp_lg_u64 vcc, 0")
        k(f"s_cbranch_scc1 {lp}")
        k.lab(dn)
        k("s_waitcnt vmcnt(0)")
        stamp("p_got")
        vm = VM(k); vmh[0] = vm
        for c in range(P):
            k(f"s_mov_b32 s{scur}, {c}")
            for f in its[c][3:]: f()
            nxt += 1
    else:
        for c in range(P):
            for f in dma_items(c): f()
            nxt += 1
    k(f"v_add_u32 v{vld4}, 4096, v{vld}")
    pw = list(range(30))
    for c in range(20):
        if "nodma" not in var: vm.wait(("c", c))
        k("s_barrier")
        n = 0
        while nxt < 20 and nxt <= c - 1 + NS and n < 2 and nxt <= c + NS - 1:
            for f in dma_items(nxt): f()
            nxt += 1; n += 1
            if nxt - c > NS - 1: break
        if c >= TR0:
            for _ in range(TRN):
                if pw:
                    j = pw.pop(0); L = w2ld(j)
                    for x in L[:-1]: k(x)
                    vm.issue(L[-1], ("w", j))
    assert nxt == 20 and not pw
    k("s_barrier")
    stamp("a_end")
    phaseB(True)
    k.lab(END)
    k("s_endpgm")
    return k
```

```python
import sys
from k1 import make_k1
from k2 import make_k2
from k3 import make_k3
from k4 import make_k4
from k5 import make_k5
from k45 import make_k45
from gl import *
def kset(pf=2, fuse=1, **kw):
    n = (lambda x: [x]) if pf >= 2 else (lambda x: None)
    p = 1 if pf else 0
    if fuse == 8: return [make_k1(pf=p, nxt=n('k2_kernel'), wpf=2), make_k2(pf=p, nxt=n('k3_kernel'), side=2), make_k3(pf=p, nxt=n('k45_kernel'), side=0), make_k45(pf=p, **kw)]
    if fuse == 9: return [make_k1(pf=p, nxt=n('k2_kernel'), wpf=0), make_k2(pf=p, nxt=n('k3_kernel'), side=2), make_k3(pf=p, nxt=n('k45_kernel'), side=0), make_k45(pf=p, **kw)]
    if fuse >= 100: return [make_k1(pf=p, nxt=n('k2_kernel'), wpf=2, tlb=fuse-100), make_k2(pf=p, nxt=n('k345_kernel'), side=2), make_k45(label='k345_kernel', pf=p, f3=1, **kw)]
    if fuse >= 10: return [make_k1(pf=p, nxt=n('k2_kernel'), wpf=fuse-10), make_k2(pf=p, nxt=n('k345_kernel'), side=2), make_k45(label='k345_kernel', pf=p, f3=1, **kw)]
    if fuse in (6, 7): return [make_k1(pf=p, nxt=n('k2_kernel'), wpf=1), make_k2(pf=p, nxt=n('k345_kernel'), side={6: 2, 7: 1}[fuse]), make_k45(label='k345_kernel', pf=p, f3=1, **kw)]
    if fuse in (4, 5): return [make_k1(pf=p, nxt=n('k2_kernel')), make_k2(pf=p, nxt=n('k345_kernel'), side={4: 2, 5: 4}[fuse]), make_k45(label='k345_kernel', pf=p, f3=1, **kw)]
    if fuse == 3: return [make_k1(pf=p, nxt=n('k2_kernel'), prep=1), make_k2(pf=p, nxt=n('k345_kernel'), side=0), make_k45(label='k345_kernel', pf=p, f3=1, **kw)]
    if fuse == 2: return [make_k1(pf=p, nxt=n('k2_kernel')), make_k2(pf=p, nxt=n('k345_kernel'), side=1), make_k45(label='k345_kernel', pf=p, f3=1, **kw)]
    if fuse: return [make_k1(pf=p, nxt=n('k2_kernel')), make_k2(pf=p, nxt=n('k3_kernel')), make_k3(pf=p, nxt=n('k45_kernel')), make_k45(pf=p, **kw)]
    return [make_k1(pf=p, nxt=n("k2_kernel")), make_k2(pf=p, nxt=n("k3_kernel")), make_k3(pf=p, nxt=n("k4_kernel")), make_k4(pf=p, nxt=n("k5_kernel")), make_k5(pf=p)]
if __name__ == "__main__":
    out = sys.argv[1] if len(sys.argv) > 1 else "all.s"
    pf = int(sys.argv[2]) if len(sys.argv) > 2 else 2
    fuse = int(sys.argv[3]) if len(sys.argv) > 3 else 1
    build(kset(pf, fuse), out)
```

```python
from common import *
def make_k1(label="k1_kernel", var="", pf=1, nxt=None, SPL=(3,4,4,4,5), prep=0, wpf=0, tlb=0):
    NSD = 96 if prep else 80
    k = Kern(label, grid=160+NSD, block=512, lds=81920+2048+1024, vgpr=248)
    END = f"{label}_end"; SIDE = f"{label}_side"; PROD = f"{label}_prod"
    k(f"s_cmp_ge_u32 s2, {160+NSD}")
    k(f"s_cbranch_scc1 {END}")
    k("s_load_dwordx2 s[4:5], s[0:1], 0")
    k("s_load_dwordx2 s[6:7], s[0:1], 72")
    if pf: k.prefetch(nxt=nxt)
    k(f"s_cmp_lt_u32 s2, {NSD}")
    k(f"s_cbranch_scc1 {SIDE}")
    RS = 81920
    A = Alloc(1)
    vlane = A(); vt0 = A(); vt1 = A()
    vard = A(8)
    vst = A()
    vrev = A(); vdl = A(); vstep = A(); vc2 = A(2, 2); vtmp = A(8, 2)
    vfa = A(24, 4)
    vacc = A(32, 4)
    vF = A(160, 4)
    assert A.n <= 254, A.n
    sw, srow, scol, sso, sm0 = 16, 17, 18, 19, 20
    k(f"v_and_b32 v{vlane}, 63, v0")
    k(f"v_lshrrev_b32 v{vt0}, 6, v0")
    k(f"s_and_b32 s22, s2, 7")
    k(f"s_lshr_b32 s23, s2, 3")
    k(f"s_sub_u32 s23, s23, {NSD//8}")
    k(f"v_readfirstlane_b32 s21, v{vt0}")
    k(f"s_mul_i32 s24, s23, 52")
    k(f"s_lshr_b32 s24, s24, 8")
    k(f"s_mul_i32 s25, s24, 5")
    k(f"s_sub_u32 s{scol}, s23, s25")
    k(f"s_lshl_b32 s24, s24, 3")
    k(f"s_add_u32 s{srow}, s24, s22")
    k(f"s_and_b32 s{sw}, s21, 3")
    k("s_cmp_ge_u32 s21, 4")
    k(f"s_cbranch_scc1 {PROD}")
    k(f"s_lshl_b32 s22, s{scol}, 2")
    k(f"s_add_u32 s22, s22, s{sw}")
    k(f"s_lshl_b32 s22, s22, 4")
    k(f"s_add_u32 s22, s22, 1")
    k(f"v_and_b32 v{vt0}, 15, v{vlane}")
    k(f"v_add_u32 v{vt0}, s22, v{vt0}")
    k(f"v_cvt_f32_u32 v{vtmp}, v{vt0}")
    k(f"v_bfe_u32 v{vt1}, v{vlane}, 4, 1")
    k(f"v_lshl_add_u32 v{vst}, v{vt0}, 1, v{vt1}")
    k(f"v_lshlrev_b32 v{vst}, 12, v{vst}")
    k(f"v_subrev_u32 v{vst}, {2*4096}, v{vst}")
    k(f"v_cvt_f32_u32 v{vtmp+1}, v{vt1}")
    k(f"v_lshrrev_b32 v{vt1}, 5, v{vlane}")
    k(f"v_lshl_add_u32 v{vst}, v{vt1}, 4, v{vst}")
    k(f"v_cvt_f32_u32 v{vtmp+2}, v{vt1}")
    k(f"v_mul_f32 v{vdl}, {fh(1/640)}, v{vtmp}")
    k(f"v_mul_f32 v{vrev}, v{vtmp+2}, v{vtmp}")
    k(f"v_mul_f32 v{vrev}, 0.5, v{vrev}")
    k(f"v_mul_f32 v{vtmp+1}, {fh(0.25)}, v{vtmp+1}")
    k(f"v_add_f32 v{vrev}, v{vrev}, v{vtmp+1}")
    k(f"v_fract_f32 v{vrev}, v{vrev}")
    k(f"v_mul_f32 v{vstep}, {fh(1/16)}, v{vtmp}")
    k(f"v_fract_f32 v{vstep}, v{vstep}")
    k(f"v_add_f32 v{vtmp}, v{vdl}, v{vdl}")
    k(f"v_cos_f32 v{vc2}, v{vtmp}")
    k("s_nop 0")
    k(f"v_add_f32 v{vc2}, v{vc2}, v{vc2}")
    for b in range(8):
        cos_block(k, vF + 20*b, 20, vrev, vdl, vc2, vtmp)
        if b < 7:
            k(f"v_add_f32 v{vrev}, v{vrev}, v{vstep}")
            k(f"v_fract_f32 v{vrev}, v{vrev}")
    k(f"v_and_b32 v{vt0}, 19, v{vlane}")
    k(f"v_bfe_u32 v{vt1}, v{vlane}, 2, 1")
    k(f"v_lshl_or_b32 v{vt0}, v{vt1}, 3, v{vt0}")
    k(f"v_bfe_u32 v{vt1}, v{vlane}, 3, 1")
    k(f"v_lshl_or_b32 v{vt0}, v{vt1}, 2, v{vt0}")
    k(f"v_bfe_u32 v{vt1}, v{vt0}, 1, 3")
    k(f"v_lshlrev_b32 v{vt1}, 4, v{vt1}")
    k(f"v_lshl_or_b32 v{vt1}, v{vt0}, 7, v{vt1}")
    k(f"v_lshrrev_b32 v{vtmp}, 5, v{vlane}")
    k(f"v_mul_u32_u24 v{vtmp}, {5*8192}, v{vtmp}")
    k(f"v_add_u32 v{vard}, v{vt1}, v{vtmp}")
    for u in range(1, 8):
        k(f"v_xor_b32 v{vard+u}, {u<<4}, v{vard}")
    k("s_waitcnt lgkmcnt(0)")
    k.srd(12, 6, WS_END)
    if 'clk' not in var: k.stamp(0)
    def rd(kk):
        p, u = kk // 8, kk % 8
        sl = kk % 3
        for t in range(2):
            k(f"ds_read_b128 v[{vfa+sl*8+t*4}:{vfa+sl*8+t*4+3}], v{vard+u} offset:{p*8192 + t*4096}")
    k("s_barrier")
    if 'clk' in var: k.stamp(10)
    k.stamp(2)
    rd(0); rd(1)
    for kk in range(40):
        nk = kk + 2
        if nk < 40:
            if nk % 8 == 0: k("s_barrier")
            rd(nk)
            k(f"s_waitcnt lgkmcnt(4)")
        elif nk == 40: k(f"s_waitcnt lgkmcnt(2)")
        else: k("s_waitcnt lgkmcnt(0)")
        sl = kk % 3
        for t in range(2):
            fa = vfa + sl*8 + t*4
            cs = f"v[{vacc+16*t}:{vacc+16*t+15}]" if kk else "0"
            k(f"v_mfma_f32_32x32x16_bf16 v[{vacc+16*t}:{vacc+16*t+15}], v[{fa}:{fa+3}], v[{vF+4*kk}:{vF+4*kk+3}], {cs}")
    k.stamp(3)
    if 'clk' in var: k.stamp(11)
    k(f"v_lshrrev_b32 v{vt1}, 5, v{vlane}")
    k(f"v_lshlrev_b32 v{vt1}, 5, v{vt1}")
    k(f"v_add_u32 v{vt1}, {RS}, v{vt1}")
    k(f"s_lshl_b32 s22, s{srow}, 7")
    k(f"s_add_u32 s22, s22, {WS_PT}")
    k("s_barrier")
    vr = vF
    for t in range(2):
        for q in range(2):
            for z in range(2):
                b = vr + 16*t + 8*q + 4*z
                k(f"ds_read_b128 v[{b}:{b+3}], v{vt1} offset:{128*t + 64*q + 16*z}")
    vo = vF + 32
    for t in range(2):
        for q in range(2):
            b = 16*t + 8*q
            k(f"s_waitcnt lgkmcnt({6 - 2*(2*t+q)})")
            for z in range(4):
                k(f"v_pk_mul_f32 v[{vacc+b+2*z}:{vacc+b+2*z+1}], v[{vacc+b+2*z}:{vacc+b+2*z+1}], v[{vr+b+2*z}:{vr+b+2*z+1}]")
            ob = vo + 4*(2*t+q)
            for z in range(4):
                k(f"v_cvt_pk_bf16_f32 v{ob+z}, v{vacc+b+2*z}, v{vacc+b+2*z+1}")
            k(f"buffer_store_dwordx4 v[{ob}:{ob+3}], v{vst}, s[12:15], s22 offen offset:{64*t+32*q}")
    k("s_endpgm")
    k.vgpr = A.n
    k.lab(PROD)
    B = Alloc(vt1 + 1)
    vdma = B(2); vsa = B(2); vs2 = B(8, 2); vsb = B(16, 4); vun = B(4, 2); vsum = B(4, 2); vq = B(2); vpfa = B(); vpfd = B()
    if wpf:
        k("s_load_dwordx4 s[44:47], s[0:1], 32")
        k("s_load_dwordx2 s[48:49], s[0:1], 48")
    k(f"v_lshrrev_b32 v{vt0}, 3, v{vlane}")
    k(f"v_mul_u32_u24 v{vt0}, 1280, v{vt0}")
    k(f"v_lshrrev_b32 v{vt1}, 4, v{vlane}")
    k(f"v_xor_b32 v{vt1}, v{vt1}, v{vlane}")
    k(f"v_and_b32 v{vt1}, 7, v{vt1}")
    k(f"v_lshl_add_u32 v{vdma}, v{vt1}, 4, v{vt0}")
    k(f"v_xor_b32 v{vdma+1}, 64, v{vdma}")
    k(f"v_add_u32 v{vdma+1}, {8*1280}, v{vdma+1}")
    k(f"s_lshl_b32 s22, s{srow}, 2")
    k(f"s_add_u32 s22, s22, s{sw}")
    k(f"s_mul_i32 s{sso}, s22, {16*1280}")
    k(f"s_lshl_b32 s{sm0}, s{sw}, 11")
    k("s_waitcnt lgkmcnt(0)")
    k.srd(8, 4, 2621440)
    k.srd(12, 6, WS_END)
    order = [0,5,1,6,2,7,3,8,4,9]
    for c in order:
        for i in range(2):
            k(f"s_add_u32 m0, s{sm0}, {c*8192 + i*1024}")
            k(f"s_add_u32 s22, s{sso}, {c*128}")
            k(f"buffer_load_dwordx4 v{vdma+i}, s[8:11], s22 offen lds")
    def wtouch():
        for m in range(3): k.srd(64 + 4*m, 44 + 2*m, 1966080)
        k(f"s_sub_u32 s23, s2, {NSD}")
        k("s_lshl_b32 s23, s23, 2")
        k(f"s_add_u32 s23, s23, s{sw}")
        for m, sub in ((0, 0), (1, 240), (2, 480), (2, -160)):
            k(f"s_sub_u32 s22, s23, {sub}" if sub >= 0 else f"s_add_u32 s22, s23, {-sub}")
            k("s_lshl_b32 s22, s22, 13")
            k(f"v_lshlrev_b32 v{vpfa}, 7, v{vlane}")
            k(f"v_add_u32 v{vpfa}, s22, v{vpfa}")
            k(f"buffer_load_dword v{vpfd}, v{vpfa}, s[{64+4*m}:{67+4*m}], 0 offen")
    if wpf == 1: wtouch()
    if 'clk' not in var: k.stamp(0)
    for i in range(8): k(f"v_mov_b32 v{vs2+i}, 0")
    k(f"v_lshlrev_b32 v{vsa}, 4, v{vlane}")
    k(f"v_add_u32 v{vsa}, s{sm0}, v{vsa}")
    k(f"v_add_u32 v{vsa+1}, {5*8192}, v{vsa}")
    k("s_mov_b32 s21, 0xffff0000")
    def statrd(r):
        p, j = r // 4, r % 4
        b = vsb + 4*(r % 4)
        k(f"ds_read_b128 v[{b}:{b+3}], v{vsa+(j>>1)} offset:{p*8192 + (j&1)*1024}")
    def statproc(r):
        i = r & 1; b = vsb + 4*(r % 4)
        for q in range(4):
            u = vun + 2*(q & 1)
            k(f"v_lshlrev_b32 v{u}, 16, v{b+q}")
            k(f"v_and_b32 v{u+1}, s21, v{b+q}")
            k(f"v_add_f32 v{vs2+4*i}, v{vs2+4*i}, v{u}")
            k(f"v_fmac_f32 v{vs2+4*i+2}, v{u}, v{u}")
            k(f"v_add_f32 v{vs2+4*i+1}, v{vs2+4*i+1}, v{u+1}")
            k(f"v_fmac_f32 v{vs2+4*i+3}, v{u+1}, v{u+1}")
    r0 = 0
    for p in range(5):
        k(f"s_waitcnt vmcnt({16-4*p + (4 if wpf and p >= wpf - 1 else 0)})")
        k("s_barrier")
        if wpf >= 2 and p == wpf - 2: wtouch()
        if p == 0 and 'clk' not in var: k.stamp(1)
        rs = list(range(r0, r0 + SPL[p])); r0 += SPL[p]
        assert rs[-1] < 4*(p+1)
        todo = rs[:]
        first = todo[:4]
        for r in first: statrd(r)
        rest = todo[4:]
        for n, r in enumerate(first):
            k(f"s_waitcnt lgkmcnt({len(first)-1-n if not rest or n == 0 else min(len(first)-1-n + 1, 15)})" if False else f"s_waitcnt lgkmcnt({len(first)-1-n + (1 if rest and n >= 1 else 0)})")
            statproc(r)
            if n == 0 and rest: statrd(rest[0])
        for r in rest:
            k("s_waitcnt lgkmcnt(0)")
            statproc(r)
    assert r0 == 20
    for i in range(2):
        k(f"v_add_f32 v{vsum+2*i}, v{vs2+4*i}, v{vs2+4*i+1}")
        k(f"v_add_f32 v{vsum+2*i+1}, v{vs2+4*i+2}, v{vs2+4*i+3}")
    for dpp in ["quad_perm:[1,0,3,2]", "quad_perm:[2,3,0,1]", "row_half_mirror"]:
        k("s_nop 0")
        for q in range(4):
            k(f"v_add_f32_dpp v{vsum+q}, v{vsum+q}, v{vsum+q} {dpp} row_mask:0xf bank_mask:0xf")
    k(f"v_and_b32 v{vt1}, 1, v{vlane}")
    k(f"v_cmp_eq_u32 vcc, 1, v{vt1}")
    k(f"v_lshrrev_b32 v{vq}, 3, v{vlane}")
    k(f"v_lshl_add_u32 v{vq}, v{vt1}, 3, v{vq}")
    k(f"v_cndmask_b32 v{vsum}, v{vsum}, v{vsum+2}, vcc")
    k(f"v_cndmask_b32 v{vsum+1}, v{vsum+1}, v{vsum+3}, vcc")
    k(f"v_mul_f32 v{vsum}, {fh(1/640)}, v{vsum}")
    k(f"v_mul_f32 v{vsum+2}, v{vsum}, v{vsum}")
    k(f"v_mul_f32 v{vsum+1}, {fh(1/640)}, v{vsum+1}")
    k(f"v_sub_f32 v{vsum+1}, v{vsum+1}, v{vsum+2}")
    k(f"v_max_f32 v{vsum+1}, 0, v{vsum+1}")
    k(f"v_add_f32 v{vsum+1}, {fh(1e-5)}, v{vsum+1}")
    k(f"v_rsq_f32 v{vsum+1}, v{vsum+1}")
    k(f"s_lshl_b32 s22, s{sw}, 4")
    k(f"v_add_u32 v{vq}, s22, v{vq}")
    k(f"v_lshlrev_b32 v{vq}, 2, v{vq}")
    k(f"v_add_u32 v{vq+1}, {RS}, v{vq}")
    k(f"ds_write_b32 v{vq+1}, v{vsum+1}")
    skip = k.newlab()
    k(f"s_cmp_lg_u32 s{scol}, 0")
    k(f"s_cbranch_scc1 {skip}")
    k(f"s_lshl_b32 s22, s{srow}, 8")
    k(f"s_add_u32 s22, s22, {WS_MS}")
    k(f"buffer_store_dword v{vsum}, v{vq}, s[12:15], s22 offen")
    k.lab(skip)
    k("s_waitcnt lgkmcnt(0)")
    k("s_barrier")
    k.stamp(3)
    k("s_endpgm")
    k.lab(SIDE)
    k("v_lshrrev_b32 v1, 6, v0")
    k("s_nop 0")
    k("v_readfirstlane_b32 s24, v1")
    k("s_cmp_ge_u32 s24, 4")
    k(f"s_cbranch_scc1 {label + ('_prep' if prep else '_clr')}")
    if prep:
        k("s_cmp_ge_u32 s2, 80")
        k(f"s_cbranch_scc1 {label}_clr")
    k("s_load_dwordx2 s[32:33], s[0:1], 8")
    k("s_load_dwordx2 s[16:17], s[0:1], 16")
    k("s_mul_i32 s21, s2, 205")
    k("s_lshr_b32 s21, s21, 11")
    k("s_mul_i32 s22, s21, 10")
    k("s_sub_u32 s22, s2, s22")
    k("s_lshr_b32 s23, s21, 1")
    k("s_lshl_b32 s23, s23, 4")
    k("s_and_b32 s25, s21, 1")
    k("s_lshl_b32 s25, s25, 10")
    k("s_add_u32 s23, s23, s25")
    k("s_lshl_b32 s25, s24, 8")
    k("s_add_u32 s23, s23, s25")
    k("v_bfe_u32 v2, v0, 2, 4")
    k("v_add_u32 v1, s23, v2")
    k("v_mul_u32_u24 v1, 642, v1")
    k("v_and_b32 v3, 3, v0")
    k("v_lshl_add_u32 v1, v3, 4, v1")
    k("s_lshl_b32 s25, s22, 6")
    k("s_add_u32 s25, s25, 2")
    k("v_lshlrev_b32 v3, 16, v3")
    k("v_lshl_add_u32 v2, v2, 4, v3")
    k("s_waitcnt lgkmcnt(0)")
    k.srd(8, 32, 1314816); k.srd(28, 16, 1314816); k.srd(12, 6, WS_END)
    for i in range(4):
        k(f"buffer_load_dwordx4 v[{4+4*i}:{7+4*i}], v1, s[8:11], s25 offen")
        k(f"buffer_load_dwordx4 v[{20+4*i}:{23+4*i}], v1, s[28:31], s25 offen")
        if i < 3: k(f"s_add_u32 s25, s25, {64*642}")
    k.stamp(0)
    k("s_mov_b32 s26, 0x05040100\ns_mov_b32 s27, 0x07060302")
    k("s_lshl_b32 s23, s22, 18")
    k("s_lshl_b32 s25, s21, 10")
    k("s_add_u32 s23, s23, s25")
    k("s_lshl_b32 s25, s24, 8")
    k("s_add_u32 s23, s23, s25")
    k(f"s_add_u32 s23, s23, {WS_WT}")
    k("s_waitcnt vmcnt(0)"); k.stamp(1)
    for z in range(8):
        d, hh = z // 2, z % 2
        o = 36 + 4*z
        for i in range(4):
            k(f"v_perm_b32 v{o+i}, v{20+4*i+d}, v{4+4*i+d}, s{26+hh}")
        k(f"buffer_store_dwordx4 v[{o}:{o+3}], v2, s[12:15], s23 offen")
        if z < 7: k("s_add_u32 s23, s23, 8192")
    k.stamp(3)
    k("s_endpgm")
    k.lab(f"{label}_clr")
    k("s_load_dwordx2 s[6:7], s[0:1], 72")
    if prep:
        k("s_sub_u32 s21, s2, 80")
        k("s_lshl_b32 s21, s21, 2")
        k("s_add_u32 s21, s21, s24")
        k("s_lshl_b32 s21, s21, 12")
    else:
        if tlb: k("s_load_dwordx2 s[8:9], s[0:1], 56")
        k("s_cmp_ge_u32 s2, 64")
        k(f"s_cbranch_scc1 {label + '_tlb' if tlb else END}")
        k("s_lshl_b32 s21, s2, 2")
        k("s_add_u32 s21, s21, s24")
        k("s_sub_u32 s21, s21, 4")
        k("s_lshl_b32 s21, s21, 10")
    k(f"s_add_u32 s21, s21, {WS_FL}")
    k("v_and_b32 v1, 63, v0")
    k("v_lshlrev_b32 v1, 4, v1")
    for z in range(4): k(f"v_mov_b32 v{4+z}, 0")
    k("s_waitcnt lgkmcnt(0)")
    k.srd(12, 6, WS_END)
    for z in range(4 if prep else 1):
        k(f"buffer_store_dwordx4 v[4:7], v1, s[12:15], s21 offen offset:{1024*z}")
    if tlb and not prep:
        k.lab(f"{label}_tlb")
        k("s_waitcnt lgkmcnt(0)")
        k.srd(16, 6, WS_END)
        k.srd(28, 8, 2621440)
        k("s_lshr_b32 s21, s2, 3")
        k("s_lshl_b32 s21, s21, 2")
        k("s_add_u32 s21, s21, s24")
        k("s_sub_u32 s21, s21, 4")
        k("s_lshl_b32 s21, s21, 6")
        k("v_and_b32 v1, 63, v0")
        k("v_add_u32 v1, s21, v1")
        k(f"v_lshlrev_b32 v1, {tlb}, v1")
        k("buffer_load_dword v8, v1, s[16:19], 0 offen")
        k("buffer_load_dword v9, v1, s[28:31], 0 offen")
    if prep:
        k("s_endpgm")
        k.lab(f"{label}_prep")
        prep_job(k, label, 0, END, NW=4, wsub=4)
    k.lab(END)
    k("s_endpgm")
    return k
if __name__ == "__main__":
    build([make_k1()], "k1.s")
```

```python
from gl import *
WS_PT = 0x000000
WS_WT = 0x280000
WS_UT = 0x500000
WS_HC = 0x780000
WS_HF = 0xA00000
WS_MS = 0x1000000
WS_WA = 0x1100000
WS_WB = 0x1500000
WS_SQ = 0x1080000
WS_FL = 0x1700000
WS_FL2 = 0x1720000
WS_FL3 = 0x1740000
WS_NONCE = 0x175F000
WS_END = 0x1760000
class Cap:
    def __init__(self): self.L = []
    def __call__(self, t):
        for ln in t.strip('\n').split('\n'): self.L.append(ln.strip())
class Alloc:
    def __init__(self, start=0): self.n = start
    def __call__(self, cnt=1, align=1):
        self.n = (self.n + align - 1) // align * align
        r = self.n; self.n += cnt
        return r
def gen_cos_seq(k, dst0, ndw, T, c2, rev0_expr_regs, step, seed_every):
    pass
def cos_block(k, dst0, ndw, vrev, vdl, c2, t, halve_last=False, nopk=False):
    P = [t, t+2, t+4]; sc = t+6
    k(f"v_add_f32 v{sc}, v{vrev}, v{vdl}")
    k(f"v_cos_f32 v{P[0]}, v{vrev}")
    k(f"v_cos_f32 v{P[0]+1}, v{sc}")
    k(f"v_add_f32 v{sc+1}, v{sc}, v{vdl}")
    k(f"v_add_f32 v{sc}, v{sc+1}, v{vdl}")
    k(f"v_cos_f32 v{P[1]}, v{sc+1}")
    k(f"v_cos_f32 v{P[1]+1}, v{sc}")
    k(f"v_cvt_pk_bf16_f32 v{dst0}, v{P[0]}, v{P[0]+1}")
    k(f"s_nop 0")
    k(f"v_cvt_pk_bf16_f32 v{dst0+1}, v{P[1]}, v{P[1]+1}")
    a_, b_, c_ = 0, 1, 2
    for i in range(2, ndw):
        if nopk:
            for z in range(2): k(f"v_fma_f32 v{P[c_]+z}, v{c2}, v{P[b_]+z}, -v{P[a_]+z}")
        else:
            k(f"v_pk_fma_f32 v[{P[c_]}:{P[c_]+1}], v[{c2}:{c2+1}], v[{P[b_]}:{P[b_]+1}], v[{P[a_]}:{P[a_]+1}] op_sel_hi:[0,1,1] neg_lo:[0,0,1] neg_hi:[0,0,1]")
        if halve_last and i == ndw-1:
            k(f"v_mul_f32 v{P[c_]+1}, 0.5, v{P[c_]+1}")
        k(f"v_cvt_pk_bf16_f32 v{dst0+i}, v{P[c_]}, v{P[c_]+1}")
        a_, b_, c_ = b_, c_, a_

def wg_rowcol5(k, srow, scol, sid=2):
    k(f"s_and_b32 s22, s{sid}, 7")
    k(f"s_lshr_b32 s23, s{sid}, 3")
    k(f"s_mul_i32 s24, s23, 52")
    k(f"s_lshr_b32 s24, s24, 8")
    k(f"s_mul_i32 s25, s24, 5")
    k(f"s_sub_u32 s{scol}, s23, s25")
    k(f"s_lshl_b32 s24, s24, 3")
    k(f"s_add_u32 s{srow}, s24, s22")

def prep_job(k, label, nbase, END, NW=4, wsub=0, NI=None):
    W2 = f"{label}_w2"
    k("s_load_dwordx2 s[32:33], s[0:1], 32")
    k("s_load_dwordx2 s[34:35], s[0:1], 40")
    k("s_load_dwordx2 s[36:37], s[0:1], 48")
    k("s_load_dwordx2 s[38:39], s[0:1], 72")
    k("v_and_b32 v1, 63, v0")
    k("v_lshrrev_b32 v2, 6, v0")
    k(f"s_sub_u32 s16, s2, {nbase}")
    k("v_readfirstlane_b32 s17, v2")
    if wsub: k(f"s_sub_u32 s17, s17, {wsub}")
    NI = NI or 16 // NW
    nWG = 1440 // (NW*NI); nWA = nWG*2//3
    k(f"s_cmp_ge_u32 s16, {nWG}")
    k(f"s_cbranch_scc1 {END}")
    LG = {4: 2, 8: 3}[NW]; LI = {4: 2, 2: 1, 1: 0}[NI]
    k(f"s_lshl_b32 s18, s16, {LG}")
    k("s_add_u32 s18, s18, s17")
    k(f"s_lshl_b32 s19, s17, {12+LI}")
    k("v_bfe_u32 v3, v1, 2, 2")
    k("v_and_b32 v4, 3, v1")
    k("v_lshrrev_b32 v5, 4, v1")
    k("v_lshlrev_b32 v10, 4, v1")
    k(f"s_cmp_ge_u32 s16, {nWA}")
    k(f"s_cbranch_scc1 {W2}")
    k("s_mul_i32 s20, s18, 2731")
    k("s_lshr_b32 s20, s20, 16")
    k("s_mul_i32 s21, s20, 24")
    k("s_sub_u32 s21, s18, s21")
    k("v_lshrrev_b32 v6, 3, v1")
    k("v_mul_u32_u24 v6, 3072, v6")
    k("v_and_b32 v7, 7, v1")
    k("v_lshl_add_u32 v6, v7, 4, v6")
    k("s_mul_i32 s22, s20, %d" % (16*NI*3072))
    k("s_lshl_b32 s23, s21, 7")
    k("s_add_u32 s22, s22, s23")
    k("s_waitcnt lgkmcnt(0)")
    k.srd(8, 32, 1966080); k.srd(12, 34, 1966080); k.srd(40, 38, WS_END)
    for i in range(NI):
        for mtx in range(2):
            for hh in range(2):
                k(f"s_add_u32 m0, s19, {i*4096 + mtx*2048 + hh*1024}")
                k(f"s_add_u32 s24, s22, {(16*i + 8*hh)*3072}")
                k(f"buffer_load_dwordx4 v6, s[{8+4*mtx}:{11+4*mtx}], s24 offen lds")
    k.stamp(0)
    k("v_and_b32 v7, 1, v5")
    k("v_lshlrev_b32 v7, 11, v7")
    k("v_lshrrev_b32 v8, 1, v5")
    k("v_lshl_add_u32 v7, v8, 10, v7")
    k("v_lshl_add_u32 v7, v3, 7, v7")
    k("v_and_b32 v8, 1, v4")
    k("v_lshlrev_b32 v8, 1, v8")
    k("v_lshrrev_b32 v9, 1, v4")
    k("v_or_b32 v8, v8, v9")
    k("v_lshl_add_u32 v7, v8, 3, v7")
    k("v_add_u32 v7, s19, v7")
    for i in range(NI):
        if i == 0:
            k("s_waitcnt vmcnt(0)"); k.stamp(1)
        for mt in range(4):
            b = 12 + 4*mt + 16*(i & 1)
            for z in range(2):
                k(f"ds_read_b64_tr_b16 v[{b+2*z}:{b+2*z+1}], v7 offset:{i*4096 + z*512 + mt*32}")
        for mt in range(4):
            b = 12 + 4*mt + 16*(i & 1)
            k("s_lshl_b32 s24, s21, 2")
            k(f"s_add_u32 s24, s24, {mt}")
            k("s_mul_i32 s25, s24, 43")
            k("s_lshr_b32 s25, s25, 8")
            k("s_mul_i32 s26, s25, 6")
            k("s_sub_u32 s24, s24, s26")
            k("s_mul_i32 s25, s25, 40")
            k(f"s_lshl_b32 s26, s20, {LI}")
            k("s_add_u32 s25, s25, s26")
            k(f"s_add_u32 s25, s25, {i}")
            k("s_mul_i32 s25, s25, 6")
            k("s_add_u32 s25, s25, s24")
            k("s_lshl_b32 s25, s25, 10")
            k(f"s_add_u32 s25, s25, {WS_WA}")
            k(f"s_waitcnt lgkmcnt({6-2*mt})")
            k(f"buffer_store_dwordx4 v[{b}:{b+3}], v10, s[40:43], s25 offen")
    k.stamp(3)
    k("s_endpgm")
    k.lab(W2)
    k(f"s_sub_u32 s18, s18, {nWA*NW}")
    k("s_mul_i32 s20, s18, 205")
    k("s_lshr_b32 s20, s20, 11")
    k("s_mul_i32 s21, s20, 10")
    k("s_sub_u32 s21, s18, s21")
    k("v_lshrrev_b32 v6, 3, v1")
    k("v_mul_u32_u24 v6, 1280, v6")
    k("v_and_b32 v7, 7, v1")
    k("v_lshl_add_u32 v6, v7, 4, v6")
    k("s_mul_i32 s22, s20, %d" % (32*NI*1280))
    k("s_lshl_b32 s23, s21, 7")
    k("s_add_u32 s22, s22, s23")
    k("s_waitcnt lgkmcnt(0)")
    k.srd(8, 36, 1966080); k.srd(40, 38, WS_END)
    for i in range(NI):
        for q in range(4):
            k(f"s_add_u32 m0, s19, {i*4096 + q*1024}")
            k(f"s_add_u32 s24, s22, {(32*i + 8*q)*1280}")
            k(f"buffer_load_dwordx4 v6, s[8:11], s24 offen lds")
    k("v_lshlrev_b32 v7, 10, v5")
    k("v_lshl_add_u32 v7, v3, 7, v7")
    k("v_lshl_add_u32 v7, v4, 3, v7")
    k("v_add_u32 v7, s19, v7")
    k("s_waitcnt vmcnt(0)")
    k(f"s_mul_i32 s24, s20, {40*NI}")
    k("s_lshl_b32 s25, s21, 2")
    k("s_add_u32 s24, s24, s25")
    k("s_lshl_b32 s24, s24, 10")
    k(f"s_add_u32 s24, s24, {WS_WB}")
    for i in range(NI):
        for mt in range(4):
            b = 12 + 4*mt + 16*(i & 1)
            for z in range(2):
                k(f"ds_read_b64_tr_b16 v[{b+2*z}:{b+2*z+1}], v7 offset:{i*4096 + z*512 + mt*32}")
        for mt in range(4):
            b = 12 + 4*mt + 16*(i & 1)
            k(f"s_add_u32 s25, s24, {(i*40 + mt)*1024}")
            k(f"s_waitcnt lgkmcnt({6-2*mt})")
            k(f"buffer_store_dwordx4 v[{b}:{b+3}], v10, s[40:43], s25 offen")
    k("s_endpgm")


class VM:
    def __init__(self, k): self.k = k; self.ops = []
    def issue(self, txt, tag):
        self.k(txt); self.ops.append(tag)
    def cnt(self, tag):
        idx = [i for i, t in enumerate(self.ops) if t == tag]
        assert idx, tag
        return len(self.ops) - 1 - idx[-1]
    def wait(self, tag):
        n = self.cnt(tag); assert n <= 63, (tag, n)
        self.k(f"s_waitcnt vmcnt({n})")

def interleave(k, main, fill, per=None, start=0):
    n = len(main); m = len(fill)
    if per is None:
        per = [0]*n
        for j in range(m): per[start + (j*(n-start))//m] += 1
    j = 0
    for i, t in enumerate(main):
        k(t)
        for _ in range(per[i]):
            if j < m:
                f = fill[j]; j += 1
                if callable(f): f()
                else: k(f)
    while j < m:
        f = fill[j]; j += 1
        if callable(f): f()
        else: k(f)

def get_nonce(k, vx, SPIN=20000):
    lp = k.newlab("nlp"); dn = k.newlab("ndn")
    k(f"s_mov_b32 s47, {SPIN}")
    k.lab(lp)
    k(f"buffer_load_dword v{vx}, off, s[36:39], 0 sc1")
    k("s_waitcnt vmcnt(0)")
    k(f"v_readfirstlane_b32 s46, v{vx}")
    k("s_sub_u32 s47, s47, 1")
    k("s_cmp_eq_u32 s47, 0")
    k(f"s_cbranch_scc1 {dn}")
    k("s_cmp_eq_u32 s46, 0")
    k(f"s_cbranch_scc1 {lp}")
    k.lab(dn)
def put_flag(k, vx, sline):
    k(f"v_mov_b32 v{vx}, s46")
    k("s_mov_b64 exec, 1")
    k(f"buffer_store_dword v{vx}, off, s[12:15], s{sline} sc1")
    k("s_mov_b64 exec, -1")
```

```python
from common import *
def make_k1(label="k1_kernel", var="", pf=1, nxt=None, SPL=(3,4,4,4,5), prep=0, wpf=0, tlb=0, f2=0):
    NSD = 96 if prep else 80
    LB2 = 81920+2048+1024
    k = Kern(label, grid=160+NSD, block=512, lds=LB2 + (32768 if f2 else 0), vgpr=248)
    K2E = f"{label}_k2e"
    sc = " sc1" if f2 else ""
    _stamp = k.stamp
    if f2: assert prep; k.stamp = lambda n: None
    END = f"{label}_end"; SIDE = f"{label}_side"; PROD = f"{label}_prod"
    k(f"s_cmp_ge_u32 s2, {160+NSD}")
    k(f"s_cbranch_scc1 {END}")
    k("s_load_dwordx2 s[4:5], s[0:1], 0")
    k("s_load_dwordx2 s[6:7], s[0:1], 72")
    if f2: k("s_load_dwordx2 s[42:43], s[0:1], 64")
    if pf: k.prefetch(nxt=nxt, shift=6 if f2 else None)
    k(f"s_cmp_lt_u32 s2, {NSD}")
    k(f"s_cbranch_scc1 {SIDE}")
    RS = 81920
    A = Alloc(1)
    vlane = A(); vt0 = A(); vt1 = A()
    vard = A(8)
    vst = A()
    vrev = A(); vdl = A(); vstep = A(); vc2 = A(2, 2); vtmp = A(8, 2)
    vfa = A(24, 4)
    vacc = A(32, 4)
    vF = A(160, 4)
    assert A.n <= 254, A.n
    sw, srow, scol, sso, sm0 = 16, 17, 18, 19, 20
    k(f"v_and_b32 v{vlane}, 63, v0")
    k(f"v_lshrrev_b32 v{vt0}, 6, v0")
    k(f"s_and_b32 s22, s2, 7")
    k(f"s_lshr_b32 s23, s2, 3")
    k(f"s_sub_u32 s23, s23, {NSD//8}")
    k(f"v_readfirstlane_b32 s21, v{vt0}")
    k(f"s_mul_i32 s24, s23, 52")
    k(f"s_lshr_b32 s24, s24, 8")
    k(f"s_mul_i32 s25, s24, 5")
    k(f"s_sub_u32 s{scol}, s23, s25")
    k(f"s_lshl_b32 s24, s24, 3")
    k(f"s_add_u32 s{srow}, s24, s22")
    k(f"s_and_b32 s{sw}, s21, 3")
    k("s_cmp_ge_u32 s21, 4")
    k(f"s_cbranch_scc1 {PROD}")
    k(f"s_lshl_b32 s22, s{scol}, 2")
    k(f"s_add_u32 s22, s22, s{sw}")
    k(f"s_lshl_b32 s22, s22, 4")
    k(f"s_add_u32 s22, s22, 1")
    k(f"v_and_b32 v{vt0}, 15, v{vlane}")
    k(f"v_add_u32 v{vt0}, s22, v{vt0}")
    k(f"v_cvt_f32_u32 v{vtmp}, v{vt0}")
    k(f"v_bfe_u32 v{vt1}, v{vlane}, 4, 1")
    k(f"v_lshl_add_u32 v{vst}, v{vt0}, 1, v{vt1}")
    k(f"v_lshlrev_b32 v{vst}, 12, v{vst}")
    k(f"v_subrev_u32 v{vst}, {2*4096}, v{vst}")
    k(f"v_cvt_f32_u32 v{vtmp+1}, v{vt1}")
    k(f"v_lshrrev_b32 v{vt1}, 5, v{vlane}")
    k(f"v_lshl_add_u32 v{vst}, v{vt1}, 4, v{vst}")
    k(f"v_cvt_f32_u32 v{vtmp+2}, v{vt1}")
    k(f"v_mul_f32 v{vdl}, {fh(1/640)}, v{vtmp}")
    k(f"v_mul_f32 v{vrev}, v{vtmp+2}, v{vtmp}")
    k(f"v_mul_f32 v{vrev}, 0.5, v{vrev}")
    k(f"v_mul_f32 v{vtmp+1}, {fh(0.25)}, v{vtmp+1}")
    k(f"v_add_f32 v{vrev}, v{vrev}, v{vtmp+1}")
    k(f"v_fract_f32 v{vrev}, v{vrev}")
    k(f"v_mul_f32 v{vstep}, {fh(1/16)}, v{vtmp}")
    k(f"v_fract_f32 v{vstep}, v{vstep}")
    k(f"v_add_f32 v{vtmp}, v{vdl}, v{vdl}")
    k(f"v_cos_f32 v{vc2}, v{vtmp}")
    k("s_nop 0")
    k(f"v_add_f32 v{vc2}, v{vc2}, v{vc2}")
    for b in range(8):
        cos_block(k, vF + 20*b, 20, vrev, vdl, vc2, vtmp)
        if b < 7:
            k(f"v_add_f32 v{vrev}, v{vrev}, v{vstep}")
            k(f"v_fract_f32 v{vrev}, v{vrev}")
    k(f"v_and_b32 v{vt0}, 19, v{vlane}")
    k(f"v_bfe_u32 v{vt1}, v{vlane}, 2, 1")
    k(f"v_lshl_or_b32 v{vt0}, v{vt1}, 3, v{vt0}")
    k(f"v_bfe_u32 v{vt1}, v{vlane}, 3, 1")
    k(f"v_lshl_or_b32 v{vt0}, v{vt1}, 2, v{vt0}")
    k(f"v_bfe_u32 v{vt1}, v{vt0}, 1, 3")
    k(f"v_lshlrev_b32 v{vt1}, 4, v{vt1}")
    k(f"v_lshl_or_b32 v{vt1}, v{vt0}, 7, v{vt1}")
    k(f"v_lshrrev_b32 v{vtmp}, 5, v{vlane}")
    k(f"v_mul_u32_u24 v{vtmp}, {5*8192}, v{vtmp}")
    k(f"v_add_u32 v{vard}, v{vt1}, v{vtmp}")
    for u in range(1, 8):
        k(f"v_xor_b32 v{vard+u}, {u<<4}, v{vard}")
    k("s_waitcnt lgkmcnt(0)")
    k.srd(12, 6, WS_END)
    if 'clk' not in var: k.stamp(0)
    def rd(kk):
        p, u = kk // 8, kk % 8
        sl = kk % 3
        for t in range(2):
            k(f"ds_read_b128 v[{vfa+sl*8+t*4}:{vfa+sl*8+t*4+3}], v{vard+u} offset:{p*8192 + t*4096}")
    k("s_barrier")
    if 'clk' in var: k.stamp(10)
    k.stamp(2)
    rd(0); rd(1)
    for kk in range(40):
        nk = kk + 2
        if nk < 40:
            if nk % 8 == 0: k("s_barrier")
            rd(nk)
            k(f"s_waitcnt lgkmcnt(4)")
        elif nk == 40: k(f"s_waitcnt lgkmcnt(2)")
        else: k("s_waitcnt lgkmcnt(0)")
        sl = kk % 3
        for t in range(2):
            fa = vfa + sl*8 + t*4
            cs = f"v[{vacc+16*t}:{vacc+16*t+15}]" if kk else "0"
            k(f"v_mfma_f32_32x32x16_bf16 v[{vacc+16*t}:{vacc+16*t+15}], v[{fa}:{fa+3}], v[{vF+4*kk}:{vF+4*kk+3}], {cs}")
    k.stamp(3)
    if 'clk' in var: k.stamp(11)
    k(f"v_lshrrev_b32 v{vt1}, 5, v{vlane}")
    k(f"v_lshlrev_b32 v{vt1}, 5, v{vt1}")
    k(f"v_add_u32 v{vt1}, {RS}, v{vt1}")
    k(f"s_lshl_b32 s22, s{srow}, 7")
    k(f"s_add_u32 s22, s22, {WS_PT}")
    k("s_barrier")
    vr = vF
    for t in range(2):
        for q in range(2):
            for z in range(2):
                b = vr + 16*t + 8*q + 4*z
                k(f"ds_read_b128 v[{b}:{b+3}], v{vt1} offset:{128*t + 64*q + 16*z}")
    vo = vF + 32
    vx = vF + 80
    if f2 >= 4:
        k(f"v_and_b32 v{vx}, 31, v{vlane}")
        k(f"v_lshrrev_b32 v{vx+1}, 5, v{vlane}")
        k(f"v_and_b32 v{vx+2}, 7, v{vlane}")
        k(f"v_xor_b32 v{vx+1}, v{vx+1}, v{vx+2}")
        k(f"v_lshlrev_b32 v{vx+1}, 4, v{vx+1}")
        k(f"v_lshl_add_u32 v{vx}, v{vx}, 7, v{vx+1}")
        k(f"s_lshl_b32 s23, s{sw}, 12")
        k(f"v_add_u32 v{vx}, s23, v{vx}")
        k(f"v_lshrrev_b32 v{vx+5}, 3, v{vlane}")
        k(f"v_xor_b32 v{vx+4}, v{vx+5}, v{vx+2}")
        k(f"v_lshlrev_b32 v{vx+4}, 4, v{vx+4}")
        k(f"v_lshl_add_u32 v{vx+4}, v{vx+5}, 7, v{vx+4}")
        k(f"v_add_u32 v{vx+4}, s23, v{vx+4}")
        for z in range(1, 4): k(f"v_xor_b32 v{vx+z}, {32*z}, v{vx}")
        k(f"s_lshl_b32 s23, s{scol}, 2")
        k(f"s_add_u32 s23, s23, s{sw}")
        k("s_lshl_b32 s23, s23, 4")
        k(f"v_add_u32 v{vx+5}, s23, v{vx+5}")
        k(f"v_lshlrev_b32 v{vx+5}, 13, v{vx+5}")
        k(f"v_and_b32 v{vx+6}, 7, v{vlane}")
        k(f"v_lshl_add_u32 v{vx+5}, v{vx+6}, 4, v{vx+5}")
    for t in range(2):
        for q in range(2):
            b = 16*t + 8*q
            k(f"s_waitcnt lgkmcnt({6 - 2*(2*t+q)})")
            for z in range(4):
                k(f"v_pk_mul_f32 v[{vacc+b+2*z}:{vacc+b+2*z+1}], v[{vacc+b+2*z}:{vacc+b+2*z+1}], v[{vr+b+2*z}:{vr+b+2*z+1}]")
            ob = vo + 4*(2*t+q)
            for z in range(4):
                k(f"v_cvt_pk_bf16_f32 v{ob+z}, v{vacc+b+2*z}, v{vacc+b+2*z+1}")
            if f2 >= 4: k(f"ds_write_b128 v{vx+2*t+q}, v[{ob}:{ob+3}]")
            else: k(f"buffer_store_dwordx4 v[{ob}:{ob+3}], v{vst}, s[12:15], s22 offen offset:{64*t+32*q}{sc}")
    if f2 >= 4:
        k("s_waitcnt lgkmcnt(0)")
        for j in range(4): k(f"ds_read_b128 v[{vo+16+4*j}:{vo+19+4*j}], v{vx+4} offset:{1024*j}")
        for j in range(4):
            k(f"s_add_u32 s23, s22, {(j&1)*8*8192 + (j>>1)*4096}")
            k(f"s_waitcnt lgkmcnt({3-j})")
            k(f"buffer_store_dwordx4 v[{vo+16+4*j}:{vo+19+4*j}], v{vx+5}, s[12:15], s23 offen sc1")
    if f2:
        k(f"s_lshl_b32 s40, s{scol}, 2")
        k(f"s_add_u32 s40, s40, s{sw}")
        k("s_lshl_b32 s40, s40, 5")
        k(f"s_add_u32 s40, s40, s{srow}")
        k("s_lshl_b32 s40, s40, 7")
        k(f"s_add_u32 s40, s40, {WS_FL3}")
        k(f"s_branch {K2E}")
    else: k("s_endpgm")
    k.vgpr = A.n
    k.lab(PROD)
    B = Alloc(vt1 + 1)
    vdma = B(2); vsa = B(2); vs2 = B(8, 2); vsb = B(16, 4); vun = B(4, 2); vsum = B(4, 2); vq = B(2); vpfa = B(); vpfd = B()
    if wpf:
        k("s_load_dwordx4 s[44:47], s[0:1], 32")
        k("s_load_dwordx2 s[48:49], s[0:1], 48")
    k(f"v_lshrrev_b32 v{vt0}, 3, v{vlane}")
    k(f"v_mul_u32_u24 v{vt0}, 1280, v{vt0}")
    k(f"v_lshrrev_b32 v{vt1}, 4, v{vlane}")
    k(f"v_xor_b32 v{vt1}, v{vt1}, v{vlane}")
    k(f"v_and_b32 v{vt1}, 7, v{vt1}")
    k(f"v_lshl_add_u32 v{vdma}, v{vt1}, 4, v{vt0}")
    k(f"v_xor_b32 v{vdma+1}, 64, v{vdma}")
    k(f"v_add_u32 v{vdma+1}, {8*1280}, v{vdma+1}")
    k(f"s_lshl_b32 s22, s{srow}, 2")
    k(f"s_add_u32 s22, s22, s{sw}")
    k(f"s_mul_i32 s{sso}, s22, {16*1280}")
    k(f"s_lshl_b32 s{sm0}, s{sw}, 11")
    k("s_waitcnt lgkmcnt(0)")
    k.srd(8, 4, 2621440)
    k.srd(12, 6, WS_END)
    order = [0,5,1,6,2,7,3,8,4,9]
    for c in order:
        for i in range(2):
            k(f"s_add_u32 m0, s{sm0}, {c*8192 + i*1024}")
            k(f"s_add_u32 s22, s{sso}, {c*128}")
            k(f"buffer_load_dwordx4 v{vdma+i}, s[8:11], s22 offen lds")
    def wtouch():
        for m in range(3): k.srd(64 + 4*m, 44 + 2*m, 1966080)
        k(f"s_sub_u32 s23, s2, {NSD}")
        k("s_lshl_b32 s23, s23, 2")
        k(f"s_add_u32 s23, s23, s{sw}")
        for m, sub in ((0, 0), (1, 240), (2, 480), (2, -160)):
            k(f"s_sub_u32 s22, s23, {sub}" if sub >= 0 else f"s_add_u32 s22, s23, {-sub}")
            k("s_lshl_b32 s22, s22, 13")
            k(f"v_lshlrev_b32 v{vpfa}, 7, v{vlane}")
            k(f"v_add_u32 v{vpfa}, s22, v{vpfa}")
            k(f"buffer_load_dword v{vpfd}, v{vpfa}, s[{64+4*m}:{67+4*m}], 0 offen")
    if wpf == 1: wtouch()
    if 'clk' not in var: k.stamp(0)
    for i in range(8): k(f"v_mov_b32 v{vs2+i}, 0")
    k(f"v_lshlrev_b32 v{vsa}, 4, v{vlane}")
    k(f"v_add_u32 v{vsa}, s{sm0}, v{vsa}")
    k(f"v_add_u32 v{vsa+1}, {5*8192}, v{vsa}")
    k("s_mov_b32 s21, 0xffff0000")
    def statrd(r):
        p, j = r // 4, r % 4
        b = vsb + 4*(r % 4)
        k(f"ds_read_b128 v[{b}:{b+3}], v{vsa+(j>>1)} offset:{p*8192 + (j&1)*1024}")
    def statproc(r):
        i = r & 1; b = vsb + 4*(r % 4)
        for q in range(4):
            u = vun + 2*(q & 1)
            k(f"v_lshlrev_b32 v{u}, 16, v{b+q}")
            k(f"v_and_b32 v{u+1}, s21, v{b+q}")
            k(f"v_add_f32 v{vs2+4*i}, v{vs2+4*i}, v{u}")
            k(f"v_fmac_f32 v{vs2+4*i+2}, v{u}, v{u}")
            k(f"v_add_f32 v{vs2+4*i+1}, v{vs2+4*i+1}, v{u+1}")
            k(f"v_fmac_f32 v{vs2+4*i+3}, v{u+1}, v{u+1}")
    r0 = 0
    for p in range(5):
        k(f"s_waitcnt vmcnt({16-4*p + (4 if wpf and p >= wpf - 1 else 0)})")
        k("s_barrier")
        if wpf >= 2 and p == wpf - 2: wtouch()
        if p == 0 and 'clk' not in var: k.stamp(1)
        rs = list(range(r0, r0 + SPL[p])); r0 += SPL[p]
        assert rs[-1] < 4*(p+1)
        todo = rs[:]
        first = todo[:4]
        for r in first: statrd(r)
        rest = todo[4:]
        for n, r in enumerate(first):
            k(f"s_waitcnt lgkmcnt({len(first)-1-n if not rest or n == 0 else min(len(first)-1-n + 1, 15)})" if False else f"s_waitcnt lgkmcnt({len(first)-1-n + (1 if rest and n >= 1 else 0)})")
            statproc(r)
            if n == 0 and rest: statrd(rest[0])
        for r in rest:
            k("s_waitcnt lgkmcnt(0)")
            statproc(r)
    assert r0 == 20
    for i in range(2):
        k(f"v_add_f32 v{vsum+2*i}, v{vs2+4*i}, v{vs2+4*i+1}")
        k(f"v_add_f32 v{vsum+2*i+1}, v{vs2+4*i+2}, v{vs2+4*i+3}")
    for dpp in ["quad_perm:[1,0,3,2]", "quad_perm:[2,3,0,1]", "row_half_mirror"]:
        k("s_nop 0")
        for q in range(4):
            k(f"v_add_f32_dpp v{vsum+q}, v{vsum+q}, v{vsum+q} {dpp} row_mask:0xf bank_mask:0xf")
    k(f"v_and_b32 v{vt1}, 1, v{vlane}")
    k(f"v_cmp_eq_u32 vcc, 1, v{vt1}")
    k(f"v_lshrrev_b32 v{vq}, 3, v{vlane}")
    k(f"v_lshl_add_u32 v{vq}, v{vt1}, 3, v{vq}")
    k(f"v_cndmask_b32 v{vsum}, v{vsum}, v{vsum+2}, vcc")
    k(f"v_cndmask_b32 v{vsum+1}, v{vsum+1}, v{vsum+3}, vcc")
    k(f"v_mul_f32 v{vsum}, {fh(1/640)}, v{vsum}")
    k(f"v_mul_f32 v{vsum+2}, v{vsum}, v{vsum}")
    k(f"v_mul_f32 v{vsum+1}, {fh(1/640)}, v{vsum+1}")
    k(f"v_sub_f32 v{vsum+1}, v{vsum+1}, v{vsum+2}")
    k(f"v_max_f32 v{vsum+1}, 0, v{vsum+1}")
    k(f"v_add_f32 v{vsum+1}, {fh(1e-5)}, v{vsum+1}")
    k(f"v_rsq_f32 v{vsum+1}, v{vsum+1}")
    k(f"s_lshl_b32 s22, s{sw}, 4")
    k(f"v_add_u32 v{vq}, s22, v{vq}")
    k(f"v_lshlrev_b32 v{vq}, 2, v{vq}")
    k(f"v_add_u32 v{vq+1}, {RS}, v{vq}")
    k(f"ds_write_b32 v{vq+1}, v{vsum+1}")
    skip = k.newlab()
    k(f"s_cmp_lg_u32 s{scol}, 0")
    k(f"s_cbranch_scc1 {skip}")
    k(f"s_lshl_b32 s22, s{srow}, 8")
    k(f"s_add_u32 s22, s22, {WS_MS}")
    k(f"buffer_store_dword v{vsum}, v{vq}, s[12:15], s22 offen")
    k.lab(skip)
    k("s_waitcnt lgkmcnt(0)")
    k("s_barrier")
    k.stamp(3)
    if f2:
        k.lab(K2E)
        k.stamp = _stamp
        k("v_lshrrev_b32 v1, 6, v0")
        k("s_nop 0")
        k("v_readfirstlane_b32 s44, v1")
        k.srd(36, 42, 256)
        k.srd(12, 6, WS_END)
        k.stamp(0)
        k("s_lshr_b32 s22, s44, 2")
        k(f"s_sub_u32 s27, s2, {NSD}")
        k("s_lshl_b32 s27, s27, 1")
        k("s_add_u32 s27, s27, s22")
        k("s_lshl_b32 s45, s22, 14")
        k(f"s_add_u32 s45, s45, {LB2}")
        def own_flag(t0):
            get_nonce(k, t0)
            nf = k.newlab("nofl")
            k("s_cmp_ge_u32 s44, 4")
            k(f"s_cbranch_scc1 {nf}")
            put_flag(k, t0, 40)
            k.lab(nf)
        if f2 >= 2: own_flag(1)
        def hook(k, r):
            vl, t0, t1, t2, sw2 = r["vl"], r["t0"], r["t1"], r["t2"], r["sw"]
            if f2 == 1: own_flag(t0)
            k.stamp(1)
            k("s_lshr_b32 s28, s27, 4")
            k("s_lshl_b32 s28, s28, 5")
            k(f"s_and_b32 s29, s{sw2}, 1")
            k("s_lshl_b32 s29, s29, 4")
            k("s_add_u32 s28, s28, s29")
            k("s_lshr_b32 s29, s27, 5")
            k("s_lshl_b32 s29, s29, 3")
            k(f"s_lshl_b32 s30, s{sw2}, 1")
            k("s_add_u32 s29, s29, s30")
            k("s_lshl_b32 s29, s29, 2")
            k(f"s_add_u32 s29, s29, {640 - 16}")
            k(f"v_add_u32 v{t0}, s28, v{vl}")
            k(f"v_add_u32 v{t1}, s29, v{vl}")
            k(f"v_cmp_gt_u32 vcc, 16, v{vl}")
            k(f"v_cndmask_b32 v{t0}, v{t1}, v{t0}, vcc")
            k(f"v_mov_b32 v{t1}, s28")
            k(f"v_cmp_gt_u32 vcc, 24, v{vl}")
            k(f"v_cndmask_b32 v{t0}, v{t1}, v{t0}, vcc")
            k(f"v_lshlrev_b32 v{t0}, 7, v{t0}")
            k(f"s_mov_b32 s31, {WS_FL3}")
            lp = k.newlab("poll"); dn = k.newlab("got")
            k("s_mov_b32 s47, 20000")
            k.lab(lp)
            k(f"buffer_load_dword v{t1}, v{t0}, s[12:15], s31 offen sc1")
            k("s_sub_u32 s47, s47, 1")
            k("s_cmp_eq_u32 s47, 0")
            k(f"s_cbranch_scc1 {dn}")
            k("s_waitcnt vmcnt(0)")
            k(f"v_cmp_ne_u32 vcc, s46, v{t1}")
            k("s_cmp_lg_u64 vcc, 0")
            k(f"s_cbranch_scc1 {lp}")
            k.lab(dn)
            k("s_waitcnt vmcnt(0)")
        from k2 import make_k2
        make_k2(kin=k, hook=hook, slb=45)
        k.stamp = lambda n: None
    else: k("s_endpgm")
    k.lab(SIDE)
    k.stamp = _stamp
    k("v_lshrrev_b32 v1, 6, v0")
    k("s_nop 0")
    k("v_readfirstlane_b32 s24, v1")
    k("s_cmp_ge_u32 s24, 4")
    k(f"s_cbranch_scc1 {label + ('_pw' if f2 >= 3 else '_prep' if prep else '_clr')}")
    if prep:
        k("s_cmp_ge_u32 s2, 80")
        k(f"s_cbranch_scc1 {label}_clr")
    k("s_load_dwordx2 s[32:33], s[0:1], 8")
    k("s_load_dwordx2 s[16:17], s[0:1], 16")
    k("s_mul_i32 s21, s2, 205")
    k("s_lshr_b32 s21, s21, 11")
    k("s_mul_i32 s22, s21, 10")
    k("s_sub_u32 s22, s2, s22")
    k("s_lshr_b32 s23, s21, 1")
    k("s_lshl_b32 s23, s23, 4")
    k("s_and_b32 s25, s21, 1")
    k("s_lshl_b32 s25, s25, 10")
    k("s_add_u32 s23, s23, s25")
    k("s_lshl_b32 s25, s24, 8")
    k("s_add_u32 s23, s23, s25")
    k("v_bfe_u32 v2, v0, 2, 4")
    k("v_add_u32 v1, s23, v2")
    k("v_mul_u32_u24 v1, 642, v1")
    k("v_and_b32 v3, 3, v0")
    k("v_lshl_add_u32 v1, v3, 4, v1")
    k("s_lshl_b32 s25, s22, 6")
    k("s_add_u32 s25, s25, 2")
    k("v_lshlrev_b32 v3, 16, v3")
    k("v_lshl_add_u32 v2, v2, 4, v3")
    k("s_waitcnt lgkmcnt(0)")
    k.srd(8, 32, 1314816); k.srd(28, 16, 1314816); k.srd(12, 6, WS_END)
    for i in range(4):
        k(f"buffer_load_dwordx4 v[{4+4*i}:{7+4*i}], v1, s[8:11], s25 offen")
        k(f"buffer_load_dwordx4 v[{20+4*i}:{23+4*i}], v1, s[28:31], s25 offen")
        if i < 3: k(f"s_add_u32 s25, s25, {64*642}")
    k.stamp(0)
    k("s_mov_b32 s26, 0x05040100\ns_mov_b32 s27, 0x07060302")
    k("s_lshl_b32 s23, s22, 18")
    k("s_lshl_b32 s25, s21, 10")
    k("s_add_u32 s23, s23, s25")
    k("s_lshl_b32 s25, s24, 8")
    k("s_add_u32 s23, s23, s25")
    k(f"s_add_u32 s23, s23, {WS_WT}")
    k("s_waitcnt vmcnt(0)"); k.stamp(1)
    for z in range(8):
        d, hh = z // 2, z % 2
        o = 36 + 4*z
        for i in range(4):
            k(f"v_perm_b32 v{o+i}, v{20+4*i+d}, v{4+4*i+d}, s{26+hh}")
        k(f"buffer_store_dwordx4 v[{o}:{o+3}], v2, s[12:15], s23 offen{sc}")
        if z < 7: k("s_add_u32 s23, s23, 8192")
    k.stamp(3)
    if f2:
        k.srd(36, 42, 256)
        k("s_lshl_b32 s40, s22, 3")
        k("s_add_u32 s40, s40, s21")
        k("s_lshl_b32 s40, s40, 2")
        k("s_add_u32 s40, s40, s24")
        k("s_lshl_b32 s40, s40, 7")
        k(f"s_add_u32 s40, s40, {WS_FL3 + 640*128}")
        get_nonce(k, 1)
        put_flag(k, 1, 40)
        k.stamp(2)
    if f2 >= 3: k(f"s_branch {label}_pw")
    else: k("s_endpgm")
    k.lab(f"{label}_clr")
    k("s_load_dwordx2 s[6:7], s[0:1], 72")
    if prep:
        k("s_sub_u32 s21, s2, 80")
        k("s_lshl_b32 s21, s21, 2")
        k("s_add_u32 s21, s21, s24")
        k("s_lshl_b32 s21, s21, 12")
    else:
        if tlb: k("s_load_dwordx2 s[8:9], s[0:1], 56")
        k("s_cmp_ge_u32 s2, 64")
        k(f"s_cbranch_scc1 {label + '_tlb' if tlb else END}")
        k("s_lshl_b32 s21, s2, 2")
        k("s_add_u32 s21, s21, s24")
        k("s_sub_u32 s21, s21, 4")
        k("s_lshl_b32 s21, s21, 10")
    k(f"s_add_u32 s21, s21, {WS_FL}")
    k("v_and_b32 v1, 63, v0")
    k("v_lshlrev_b32 v1, 4, v1")
    for z in range(4): k(f"v_mov_b32 v{4+z}, 0")
    k("s_waitcnt lgkmcnt(0)")
    k.srd(12, 6, WS_END)
    if f2:
        nn = k.newlab("nonn")
        k(f"s_cmp_lg_u32 s21, {WS_FL}")
        k(f"s_cbranch_scc1 {nn}")
        k.srd(36, 42, 256)
        k(f"s_mov_b32 s22, {WS_NONCE}")
        k("buffer_load_dword v8, off, s[12:15], s22 sc1")
        k("s_waitcnt vmcnt(0)")
        k("v_add_u32 v8, 1, v8")
        k("v_or_b32 v8, 0x80000000, v8")
        k("s_mov_b64 exec, 1")
        k("buffer_store_dword v8, off, s[36:39], 0 sc1")
        k("buffer_store_dword v8, off, s[12:15], s22 sc1")
        k("s_mov_b64 exec, -1")
        k.lab(nn)
    for z in range(4 if prep else 1):
        k(f"buffer_store_dwordx4 v[4:7], v1, s[12:15], s21 offen offset:{1024*z}")
    if tlb and not prep:
        k.lab(f"{label}_tlb")
        k("s_waitcnt lgkmcnt(0)")
        k.srd(16, 6, WS_END)
        k.srd(28, 8, 2621440)
        k("s_lshr_b32 s21, s2, 3")
        k("s_lshl_b32 s21, s21, 2")
        k("s_add_u32 s21, s21, s24")
        k("s_sub_u32 s21, s21, 4")
        k("s_lshl_b32 s21, s21, 6")
        k("v_and_b32 v1, 63, v0")
        k("v_add_u32 v1, s21, v1")
        k(f"v_lshlrev_b32 v1, {tlb}, v1")
        k("buffer_load_dword v8, v1, s[16:19], 0 offen")
        k("buffer_load_dword v9, v1, s[28:31], 0 offen")
    if f2 >= 3:
        k.lab(f"{label}_pw")
        k("s_barrier")
        prep_job(k, label, 0, END, NW=8, wsub=0, NI=2)
    elif prep:
        k("s_endpgm")
        k.lab(f"{label}_prep")
        prep_job(k, label, 0, END, NW=4, wsub=4)
    k.lab(END)
    k("s_endpgm")
    return k
if __name__ == "__main__":
    build([make_k1()], "k1.s")
```

```python
from common import *
def make_k2(label="k2_kernel", pf=1, nxt=None, side=0, kin=None, hook=None, slb=45):
    NI = 4 // side if side else 0; NSD = 90*side
    END = f"{label}_end"
    if kin is None:
        k = Kern(label, grid=320+NSD, block=256, lds=max(16384, 16384*NI), vgpr=200)
        k(f"s_cmp_ge_u32 s2, {320+NSD}")
        k(f"s_cbranch_scc1 {END}")
        k("s_load_dwordx2 s[6:7], s[0:1], 72")
        if pf: k.prefetch(nxt=nxt)
    else: k = kin
    if side:
        k(f"s_cmp_lt_u32 s2, {NSD}")
        k(f"s_cbranch_scc1 {label}_side")
    if kin is None: k(f"s_sub_u32 s27, s2, {NSD}")
    A = Alloc(1)
    vl = A(); vg = A(); v16 = A(); t0 = A(); t1 = A(); t2 = A()
    vA = A(2); vWr = A(2); vB = A(2); vSt = A()
    tf = A(8, 2)
    tg = A(8, 2)
    C64 = A(8, 4); S64 = A(8, 4); N64 = A(8, 4)
    C32 = A(8, 4); S32 = A(8, 4); N32 = A(8, 4)
    T1c = A(8, 2); T1s = A(8, 2); T2c = A(8, 2); T2s = A(8, 2)
    W = A(8, 4)
    FA = A(32, 4)
    AC = A(16, 4)
    AD = A(16, 4)
    Br = A(4, 4); Bi = A(4, 4)
    if kin is None: k.vgpr = A.n
    sw = 16
    k(f"v_and_b32 v{vl}, 63, v0")
    k(f"v_lshrrev_b32 v{t0}, 6, v0")
    if kin is not None: k(f"v_and_b32 v{t0}, 3, v{t0}")
    k(f"v_lshrrev_b32 v{vg}, 4, v{vl}")
    k(f"v_readfirstlane_b32 s{sw}, v{t0}")
    k(f"v_and_b32 v{v16}, 15, v{vl}")
    k(f"v_lshrrev_b32 v{t1}, 5, v{vl}")
    k(f"v_lshlrev_b32 v{t1}, 1, v{t1}")
    k(f"v_xor_b32 v{t1}, v{t1}, v{vl}")
    k(f"v_lshlrev_b32 v{t1}, 4, v{t1}")
    k(f"v_lshlrev_b32 v{t2}, 4, v{vl}")
    k(f"s_lshl_b32 s17, s{sw}, 11")
    k(f"s_lshl_b32 s18, s27, 13")
    k(f"s_add_u32 s19, s18, s17")
    k(f"s_add_u32 s20, s19, {WS_PT}")
    k(f"s_add_u32 s21, s19, {WS_WT}")
    def loads(va, vb):
        k(f"buffer_load_dwordx4 v{va}, s[8:11], s20 offen lds")
        k(f"buffer_load_dwordx4 v{va}, s[8:11], s20 offen offset:1024 lds")
        k(f"buffer_load_dwordx4 v[{W}:{W+3}], v{vb}, s[8:11], s21 offen")
        k(f"buffer_load_dwordx4 v[{W+4}:{W+7}], v{vb}, s[8:11], s21 offen offset:1024")
    if kin is None:
        k(f"s_mov_b32 m0, s17")
        k("s_waitcnt lgkmcnt(0)")
        k.srd(8, 6, WS_END)
        loads(t1, t2)
    else:
        vd0 = AD; vd1 = AD + 1
        k(f"s_add_u32 s17, s17, s{slb}")
        k(f"s_mov_b32 m0, s17")
        k.srd(8, 6, WS_END)
        k(f"v_mov_b32 v{vd0}, v{t1}")
        k(f"v_mov_b32 v{vd1}, v{t2}")
    if kin is None: k.stamp(0)
    k(f"s_lshl_b32 s22, s{sw}, 4")
    k(f"v_add_u32 v{t0}, s22, v{v16}")
    k(f"v_cvt_f32_u32 v{tg}, v{t0}")
    k(f"v_cvt_f32_u32 v{tg+1}, v{vg}")
    k(f"v_cvt_f32_u32 v{tg+2}, v{v16}")
    k(f"v_lshlrev_b32 v{t0}, 31, v{v16}")
    k(f"v_lshrrev_b32 v{t1}, 16, v{t0}")
    k(f"v_or_b32 v{t0}, v{t0}, v{t1}")
    vsm = t0
    k(f"v_mul_f32 v{tg+3}, {fh(1/64)}, v{tg}")
    k(f"v_mul_f32 v{tf}, v{tg}, v{tg+1}")
    k(f"v_mul_f32 v{tf}, {fh(1/8)}, v{tf}")
    for j in range(1, 8): k(f"v_add_f32 v{tf+j}, v{tf+j-1}, v{tg+3}")
    for j in range(8): k(f"v_cos_f32 v{FA+j}, v{tf+j}")
    for j in range(8): k(f"v_sin_f32 v{FA+8+j}, v{tf+j}")
    for z in range(4): k(f"v_cvt_pk_bf16_f32 v{C64+z}, v{FA+2*z}, v{FA+2*z+1}")
    for z in range(4): k(f"v_cvt_pk_bf16_f32 v{S64+z}, v{FA+8+2*z}, v{FA+8+2*z+1}")
    k(f"s_mov_b32 s23, 0x80008000")
    for z in range(4):
        k(f"v_xor_b32 v{C64+4+z}, v{vsm}, v{C64+z}")
        k(f"v_xor_b32 v{S64+4+z}, v{vsm}, v{S64+z}")
    for z in range(8): k(f"v_xor_b32 v{N64+z}, s23, v{S64+z}")
    k(f"v_mul_f32 v{tg+3}, {fh(1/32)}, v{tg+2}")
    k(f"v_mul_f32 v{tf}, v{tg+2}, v{tg+1}")
    k(f"v_mul_f32 v{tf}, {fh(1/8)}, v{tf}")
    for j in range(1, 4): k(f"v_add_f32 v{tf+j}, v{tf+j-1}, v{tg+3}")
    for j in range(4): k(f"v_cos_f32 v{FA+j}, v{tf+j}")
    for j in range(4): k(f"v_sin_f32 v{FA+4+j}, v{tf+j}")
    k("s_nop 0")
    for z in range(2): k(f"v_cvt_pk_bf16_f32 v{C32+z}, v{FA+2*z}, v{FA+2*z+1}")
    for z in range(2): k(f"v_cvt_pk_bf16_f32 v{S32+z}, v{FA+4+2*z}, v{FA+4+2*z+1}")
    for z in range(2):
        k(f"v_xor_b32 v{C32+2+z}, v{vsm}, v{C32+z}")
        k(f"v_xor_b32 v{S32+2+z}, v{vsm}, v{S32+z}")
    k(f"s_brev_b32 s24, 1")
    for z in range(4):
        k(f"v_xor_b32 v{C32+4+z}, s24, v{C32+z}")
        k(f"v_xor_b32 v{S32+4+z}, s24, v{S32+z}")
    for z in range(8): k(f"v_xor_b32 v{N32+z}, s23, v{S32+z}")
    k(f"v_mul_f32 v{tg+3}, {fh(1/2048)}, v{tg}")
    k(f"v_mul_f32 v{tf}, v{tg+3}, v{tg+1}")
    k(f"v_mul_f32 v{tf}, 4.0, v{tf}")
    for j in range(1, 4): k(f"v_add_f32 v{tf+j}, v{tf+j-1}, v{tg+3}")
    k(f"v_mul_f32 v{tg+4}, {fh(16.0)}, v{tg+3}")
    for j in range(4): k(f"v_add_f32 v{tf+4+j}, v{tf+j}, v{tg+4}")
    for j in range(8): k(f"v_cos_f32 v{T1c+j}, v{tf+j}")
    for j in range(8): k(f"v_sin_f32 v{T1s+j}, v{tf+j}")
    k(f"v_fma_f32 v{tg+5}, v{tg+1}, 4.0, v{tg}")
    k(f"v_sub_f32 v{tg+5}, v{tg+5}, v{tg+2}")
    k(f"v_mul_f32 v{tg+5}, {fh(1/2048)}, v{tg+5}")
    k(f"v_mul_f32 v{tg+3}, {fh(1/2048)}, v{tg+2}")
    k(f"v_mul_f32 v{tf}, v{tg+5}, v{tg+2}")
    for j in range(1, 4): k(f"v_add_f32 v{tf+j}, v{tf+j-1}, v{tg+3}")
    k(f"v_mul_f32 v{tg+4}, {fh(16.0)}, v{tg+5}")
    for j in range(4):
        k(f"v_add_f32 v{tf+4+j}, v{tf+j}, v{tg+4}")
        if j < 3: k(f"v_add_f32 v{tg+4}, {fh(16/2048)}, v{tg+4}")
    for j in range(8): k(f"v_cos_f32 v{T2c+j}, v{tf+j}")
    for j in range(8): k(f"v_sin_f32 v{T2s+j}, v{tf+j}")
    k(f"v_lshrrev_b32 v{t1}, 2, v{v16}")
    k(f"v_lshlrev_b32 v{t1}, 6, v{t1}")
    k(f"v_lshl_add_u32 v{t1}, v{vg}, 9, v{t1}")
    k(f"v_bfe_u32 v{t2}, v{v16}, 1, 1")
    k(f"v_lshlrev_b32 v{tf}, 1, v{vg}")
    k(f"v_and_b32 v{tf}, 2, v{tf}")
    k(f"v_xor_b32 v{t2}, v{t2}, v{tf}")
    k(f"v_lshl_add_u32 v{t1}, v{t2}, 4, v{t1}")
    k(f"v_and_b32 v{t2}, 1, v{v16}")
    k(f"v_lshl_add_u32 v{vA}, v{t2}, 3, v{t1}")
    if kin is not None: k(f"v_add_u32 v{vA}, s{slb}, v{vA}")
    k(f"v_xor_b32 v{vA+1}, 32, v{vA}")
    k(f"v_bfe_u32 v{t1}, v{v16}, 1, 1")
    k(f"v_lshrrev_b32 v{t2}, 3, v{v16}")
    k(f"v_lshl_or_b32 v{t1}, v{t2}, 1, v{t1}")
    k(f"v_lshrrev_b32 v{t2}, 1, v{vg}")
    k(f"s_lshl_b32 s22, s{sw}, 1")
    k(f"v_add_u32 v{t2}, s22, v{t2}")
    k(f"v_xor_b32 v{t1}, v{t1}, v{t2}")
    k(f"v_lshlrev_b32 v{t1}, 4, v{t1}")
    k(f"v_lshl_add_u32 v{t1}, v{v16}, 7, v{t1}")
    k(f"v_and_b32 v{t2}, 1, v{vg}")
    k(f"v_lshl_add_u32 v{t1}, v{t2}, 3, v{t1}")
    k(f"v_add_u32 v{vWr}, 8192, v{t1}")
    k(f"v_xor_b32 v{t1}, 64, v{t1}")
    k(f"v_add_u32 v{vWr+1}, {8192+2048}, v{t1}")
    if kin is not None:
        k(f"v_add_u32 v{vWr}, s{slb}, v{vWr}")
        k(f"v_add_u32 v{vWr+1}, s{slb}, v{vWr+1}")
    k(f"v_lshrrev_b32 v{t2}, 2, v{v16}")
    k(f"v_bfe_u32 v{t1}, v{v16}, 1, 1")
    k(f"v_lshl_or_b32 v{t1}, v{t2}, 1, v{t1}")
    k(f"v_xor_b32 v{t1}, v{t1}, v{vg}")
    k(f"v_lshlrev_b32 v{t1}, 4, v{t1}")
    k(f"v_lshl_add_u32 v{t1}, v{t2}, 10, v{t1}")
    k(f"v_and_b32 v{t2}, 3, v{v16}")
    k(f"v_lshl_add_u32 v{t1}, v{t2}, 7, v{t1}")
    k(f"v_add_u32 v{vB}, 8192, v{t1}")
    if kin is not None: k(f"v_add_u32 v{vB}, s{slb}, v{vB}")
    k(f"v_xor_b32 v{vB+1}, 64, v{vB}")
    k(f"v_lshlrev_b32 v{t1}, 6, v{v16}")
    k(f"v_lshl_add_u32 v{vSt}, v{vg}, 4, v{t1}")
    k(f"s_lshl_b32 s22, s{sw}, 10")
    k(f"s_add_u32 s22, s22, s18")
    k(f"s_add_u32 s25, s22, {WS_UT}")
    for i in range(16): k(f"v_mov_b32 v{AC+i}, 0")
    if kin is not None:
        hook(k, dict(vl=vl, t0=t1, t1=t2, t2=tf, sw=sw))
        loads(vd0, vd1)
    for i in range(16): k(f"v_mov_b32 v{AD+i}, 0")
    if kin is None: k.stamp(1)
    k("s_waitcnt vmcnt(2)")
    k("s_barrier")
    k.stamp(2 if kin is None else 2)
    def fa(p, mt, ks): return FA + 16*p + 8*mt + 4*ks
    for ks in range(2):
        for p in range(2):
            for mt in range(2):
                for z in range(2):
                    b = fa(p, mt, ks) + 2*z
                    k(f"ds_read_b64_tr_b16 v[{b}:{b+1}], v{vA+mt} offset:{p*4096 + ks*2048 + z*256}")
    def mf(d, a_, b_): k(f"v_mfma_f32_16x16x32_bf16 v[{d}:{d+3}], v[{a_}:{a_+3}], v[{b_}:{b_+3}], v[{d}:{d+3}]")
    def acc(base, t, c): return base + 8*t + 4*c
    for ks in range(2):
        k(f"s_waitcnt lgkmcnt({12 if ks == 0 else 4})")
        for mt in range(2):
            mf(acc(AC,mt,0), fa(0,mt,ks), C64+4*ks)
            mf(acc(AC,mt,1), fa(0,mt,ks), N64+4*ks)
        k(f"s_waitcnt lgkmcnt({8 if ks == 0 else 0})")
        for mt in range(2):
            mf(acc(AC,mt,0), fa(1,mt,ks), S64+4*ks)
            mf(acc(AC,mt,1), fa(1,mt,ks), C64+4*ks)
    k("s_nop 7")
    def cmul(base, c, s_, sign, outr, outi):
        for t in range(2):
            r, im = acc(base,t,0), acc(base,t,1)
            for z in range(2):
                rr, ii = r+2*z, im+2*z; cc, ss = c+4*t+2*z, s_+4*t+2*z
                a0 = tf + 4*z
                k(f"v_pk_mul_f32 v[{a0}:{a0+1}], v[{rr}:{rr+1}], v[{cc}:{cc+1}]")
                k(f"v_pk_mul_f32 v[{a0+2}:{a0+3}], v[{ii}:{ii+1}], v[{cc}:{cc+1}]")
            for z in range(2):
                rr, ii = r+2*z, im+2*z; cc, ss = c+4*t+2*z, s_+4*t+2*z
                a0 = tf + 4*z
                n1 = "" if sign > 0 else " neg_lo:[0,1,0] neg_hi:[0,1,0]"
                n2 = " neg_lo:[0,1,0] neg_hi:[0,1,0]" if sign > 0 else ""
                k(f"v_pk_fma_f32 v[{a0}:{a0+1}], v[{ii}:{ii+1}], v[{ss}:{ss+1}], v[{a0}:{a0+1}]{n1}")
                k(f"v_pk_fma_f32 v[{a0+2}:{a0+3}], v[{rr}:{rr+1}], v[{ss}:{ss+1}], v[{a0+2}:{a0+3}]{n2}")
            for z in range(2):
                a0 = tf + 4*z
                k(f"v_cvt_pk_bf16_f32 v{outr+2*t+z}, v{a0}, v{a0+1}")
                k(f"v_cvt_pk_bf16_f32 v{outi+2*t+z}, v{a0+2}, v{a0+3}")
    cmul(AC, T1c, T1s, +1, Br, Bi)
    k("s_nop 1")
    for t in range(2):
        mf(acc(AD,t,0), C32+4*t, Br); mf(acc(AD,t,1), C32+4*t, Bi)
    for t in range(2):
        mf(acc(AD,t,0), S32+4*t, Bi); mf(acc(AD,t,1), N32+4*t, Br)
    k("s_waitcnt vmcnt(0)")
    for j in range(8):
        k(f"v_lshlrev_b32 v{FA+j}, 16, v{W+j}")
        k(f"v_and_b32 v{FA+8+j}, 0xffff0000, v{W+j}")
    for i in range(16): k(f"v_mov_b32 v{AC+i}, 0")
    k("s_nop 1")
    cmul(AD, FA, FA+8, -1, Br, Bi)
    k("s_nop 1")
    for t in range(2):
        mf(acc(AC,t,0), Br, C32+4*t); mf(acc(AC,t,1), Bi, C32+4*t)
    for t in range(2):
        mf(acc(AC,t,0), Bi, N32+4*t); mf(acc(AC,t,1), Br, S32+4*t)
    for i in range(16): k(f"v_mov_b32 v{AD+i}, 0")
    k("s_nop 1")
    Or = FA; Oi = FA + 4
    cmul(AC, T2c, T2s, -1, Or, Oi)
    for t in range(2):
        k(f"ds_write_b64 v{vWr+t}, v[{Or+2*t}:{Or+2*t+1}]")
        k(f"ds_write_b64 v{vWr+t}, v[{Oi+2*t}:{Oi+2*t+1}] offset:4096")
    k.stamp(3)
    k("s_waitcnt lgkmcnt(0)")
    k("s_barrier")
    def fb(p, t, ks): return FA + 16*p + 8*t + 4*ks
    for ks in range(2):
        for p in range(2):
            for t in range(2):
                b = fb(p, t, ks)
                k(f"ds_read_b128 v[{b}:{b+3}], v{vB+ks} offset:{p*4096 + t*512}")
    for ks in range(2):
        k(f"s_waitcnt lgkmcnt({6 if ks == 0 else 2})")
        for t in range(2):
            mf(acc(AD,t,0), fb(0,t,ks), C64+4*ks)
            mf(acc(AD,t,1), fb(0,t,ks), S64+4*ks)
        k(f"s_waitcnt lgkmcnt({4 if ks == 0 else 0})")
        for t in range(2):
            mf(acc(AD,t,0), fb(1,t,ks), N64+4*ks)
            mf(acc(AD,t,1), fb(1,t,ks), C64+4*ks)
    k("s_nop 7")
    for c in range(2):
        o = Br if c == 0 else Bi
        for t in range(2):
            for z in range(2):
                k(f"v_cvt_pk_bf16_f32 v{o+2*t+z}, v{acc(AD,t,c)+2*z}, v{acc(AD,t,c)+2*z+1}")
        k(f"s_add_u32 s26, s25, {4096*c}")
        k(f"buffer_store_dwordx4 v[{o}:{o+3}], v{vSt}, s[8:11], s26 offen")
    if kin is not None:
        k("s_endpgm")
        return k
    if side:
        k("s_endpgm")
        k.lab(f"{label}_side")
        prep_job(k, label, 0, END, NW=4, NI=NI)
    k.lab(END)
    k("s_endpgm")
    return k
if __name__ == "__main__":
    from k1 import make_k1
    build([make_k1(), make_k2()], "k12.s")
```

```python
from common import *
def make_k45(label="k45_kernel", NS=7, var="", P=4, rot=0, pf=1, nxt=None, TR0=1, TRN=2, CW0=26, SPIN=20000, f3=0, st=None, il=0, prio=0, l2p=0):
    ST = 20480
    k = Kern(label, grid=256, block=512, lds=NS*ST, vgpr=256)
    END = f"{label}_end"
    k("s_cmp_ge_u32 s2, 256")
    k(f"s_cbranch_scc1 {END}")
    k("s_load_dwordx2 s[6:7], s[0:1], 72")
    k("s_load_dwordx2 s[58:59], s[0:1], 56")
    if f3: k("s_load_dwordx2 s[4:5], s[0:1], 0")
    if pf: k.prefetch(nxt=None, regs=(254, 255), shift=7)
    st = st if st is not None else {"a_end": 0, "h_flag": 1, "h_got": 2, "b_end": 3}
    _st = k.stamp
    def stamp(n):
        if n in st: _st(st[n])
    if f3:
        from k3 import make_k3
        P4 = f"{label}_p4"
        k("s_cmp_ge_u32 s2, 160")
        k(f"s_cbranch_scc1 {P4}")
        make_k3(label=label, side=0, kin=k, NEXT=P4, st={i: st[n] for i, n in ((0, "p3_c0"), (2, "p3_bar"), (3, "p3_end"), (4, "p3_flag")) if n in st})
        k.lab(P4)
    A = Alloc(1)
    vl = A(); t0 = A(); t1 = A()
    vdma = A(); vA = A(3); vB = A(3); vst = A()
    vr = A(8, 2); vt = A(20, 2)
    vacc = A(96, 4); fA = A(24, 4); fB = A(16, 4)
    assert A.n == 176 and vdma == 4 and t0 == 2, A.n
    vm = VM(k); vmh = [vm]
    sw, swm, swn, srow, sf = 16, 17, 18, 19, 20
    k(f"v_and_b32 v{vl}, 63, v0")
    k(f"v_lshrrev_b32 v{t0}, 6, v0")
    k("s_and_b32 s22, s2, 7")
    k("s_lshr_b32 s23, s2, 3")
    k(f"v_readfirstlane_b32 s21, v{t0}")
    k(f"s_and_b32 s{sw}, s21, 3")
    k("s_and_b32 s24, s22, 3")
    k("s_lshl_b32 s24, s24, 2")
    k("s_and_b32 s25, s23, 3")
    k(f"s_add_u32 s{sf}, s24, s25")
    k("s_lshr_b32 s24, s22, 2")
    k("s_lshl_b32 s24, s24, 3")
    k("s_lshr_b32 s25, s23, 2")
    k(f"s_add_u32 s{srow}, s24, s25")
    k(f"s_lshr_b32 s{swm}, s{sw}, 1")
    k(f"s_and_b32 s{swn}, s{sw}, 1")
    k(f"v_lshlrev_b32 v{vdma}, 4, v{vl}")
    sA, sB, mA, mB, sQ = 26, 27, 28, 29, 30
    k(f"s_mul_i32 s{sA}, s{sf}, {40*6144}")
    k(f"s_mul_i32 s22, s{sw}, 3072")
    k(f"s_add_u32 s{sA}, s{sA}, s22")
    k(f"s_add_u32 s{sA}, s{sA}, {WS_WA}")
    k(f"s_lshl_b32 s23, s{srow}, 2")
    k(f"s_add_u32 s23, s23, s{sw}")
    k(f"s_mul_i32 s{sB}, s23, 40960")
    k(f"s_add_u32 s{sB}, s{sB}, {WS_HC}")
    k(f"s_mov_b32 s{mA}, s22")
    k(f"s_lshl_b32 s{mB}, s{sw}, 11")
    k(f"s_add_u32 s{mB}, s{mB}, 12288")
    k(f"s_lshl_b32 s23, s{srow}, 1")
    k(f"s_add_u32 s23, s23, s{swn}")
    k(f"s_mul_i32 s{sQ}, s23, {20*256}")
    k(f"s_add_u32 s{sQ}, s{sQ}, {WS_SQ}")
    k(f"v_lshlrev_b32 v{t1}, 2, v{vl}")
    k("s_waitcnt lgkmcnt(0)")
    k.srd(8, 6, WS_END)
    k.srd(12, 58, 2621440)
    WB0 = 136; vld = vdma; vld4 = t0
    k("s_and_b32 s22, s2, 7")
    k("s_lshl_b32 s22, s22, 2")
    k("s_lshr_b32 s23, s2, 6")
    k("s_add_u32 s36, s22, s23")
    k("s_lshr_b32 s23, s2, 3")
    k("s_and_b32 s37, s23, 7")
    k("s_mul_i32 s38, s21, 240")
    k("s_mul_i32 s22, s37, 5")
    k("s_add_u32 s38, s38, s22")
    k("s_lshl_b32 s38, s38, 10")
    k(f"s_add_u32 s38, s38, {WS_WB}")
    def w2ld(n):
        i, mt = n // 5, n % 5
        b = WB0 + 20*i + 4*mt
        L = []
        if mt == 0: L.append(f"s_add_u32 s35, s38, {i*40960}")
        L.append(f"buffer_load_dwordx4 v[{b}:{b+3}], v{vld if mt < 4 else vld4}, s[8:11], s35 offen offset:{1024*(mt%4)}")
        return L
    if l2p and f3:
        SK = k.newlab("nol2p")
        k("s_cmp_lt_u32 s2, 160")
        k(f"s_cbranch_scc1 {SK}")
        k(f"v_add_u32 v8, 4096, v{vld}")
        k(f"v_add_u32 v9, 8192, v{vld}")
        def wa():
            k("s_lshr_b32 s22, s2, 3")
            k("s_sub_u32 s22, s22, 20")
            k("s_lshr_b32 s22, s22, 2")
            k("s_lshl_b32 s22, s22, 3")
            k("s_add_u32 s22, s22, s21")
            k("s_mul_i32 s22, s22, 10240")
            k(f"s_mul_i32 s23, s{sf}, {40*6144}")
            k("s_add_u32 s22, s22, s23")
            k(f"s_add_u32 s22, s22, {WS_WA}")
            for n in range(10):
                k(f"buffer_load_dwordx4 v[{40+4*n}:{43+4*n}], v{[vld, 8, 9][n//4]}, s[8:11], s22 offen offset:{1024*(n%4)}")
        def wb():
            for n in range(30):
                if (l2p & 8) and n >= 15: break
                for x in w2ld(n): k(x.replace(f", v{vld4}, s[8:11]", ", v8, s[8:11]"))
        if (l2p & 2) and not (l2p & 4): wa()
        if l2p & 1: wb()
        if (l2p & 2) and (l2p & 4): wa()
        k("s_waitcnt vmcnt(0)")
        k.lab(SK)
    def phaseB(hi):
        g = 21
        mts = [3, 4] if hi else [0, 1, 2]; Lt = len(mts)
        HA, HB, HC, ACC = 8, 24, 120, 40
        vhc, vo, vma = 5, 6, 7
        W = lambda i: WB0 + 20*i
        k(f"s_mul_i32 s22, s{g}, 6")
        for n in range(4):
            k(f"s_add_u32 s23, s{g}, {n}")
            k("s_and_b32 s23, s23, 3")
            k("s_lshl_b32 s24, s36, 2")
            k("s_add_u32 s23, s23, s24")
            k("s_mul_i32 s23, s23, 48")
            k("s_add_u32 s23, s23, s22")
            k("s_lshl_b32 s23, s23, 10")
            k(f"s_add_u32 s{40+n}, s23, {WS_HF}")
        k("s_lshl_b32 s23, s36, 5")
        k(f"s_lshl_b32 s24, s{g}, 2")
        k("s_add_u32 s23, s23, s24")
        k("s_lshl_b32 s23, s23, 7")
        k(f"s_add_u32 s39, s23, {WS_FL}")
        k(f"v_and_b32 v{t1}, 3, v{vl}")
        k(f"v_lshlrev_b32 v{t1}, 7, v{t1}")
        for n in range(4):
            for h in range(2):
                d = 44 + 2*n + h
                k(f"s_add_u32 s23, s{g}, {n}")
                k("s_and_b32 s23, s23, 3")
                k(f"s_sub_u32 s24, s{g}, s23")
                k(f"s_sub_u32 s24, s24, {4*h + 1}")
                k("s_and_b32 s24, s24, 7")
                k(f"s_mul_i32 s24, s24, {2048 if h else 3072}")
                k(f"s_mul_i32 s23, s23, {14336 if h else 21504}")
                k(f"s_add_u32 s{d}, s23, s24")
                if h: k(f"s_add_u32 s{d}, s{d}, {4*21504}")
        k(f"s_and_b32 s53, s{g}, 3")
        k(f"s_mul_i32 s52, s53, {14336 if hi else 21504}")
        if hi: k(f"s_add_u32 s52, s52, {4*21504}")
        k(f"v_lshrrev_b32 v{vo}, 4, v{vl}")
        k(f"v_and_b32 v{vma}, 15, v{vl}")
        k(f"v_lshrrev_b32 v8, 1, v{vo}")
        k(f"v_lshlrev_b32 v8, 9, v8")
        k(f"v_lshl_add_u32 v8, v{vma}, 4, v8")
        k(f"v_and_b32 v{vhc}, 1, v{vo}")
        k(f"v_lshl_add_u32 v{vhc}, v{vhc}, 3, v8")
        k(f"v_mul_u32_u24 v8, 1280, v{vma}")
        k(f"v_lshl_add_u32 v{vo}, v{vo}, 3, v8")
        k(f"v_lshlrev_b32 v{vma}, 2, v{vma}")
        k("s_lshl_b32 s22, s36, 1")
        k("s_lshr_b32 s23, s53, 1")
        k("s_add_u32 s22, s22, s23")
        k("s_mul_i32 s22, s22, 40")
        k("s_mul_i32 s23, s37, 5")
        k("s_add_u32 s22, s22, s23")
        k(f"s_add_u32 s22, s22, {mts[0]}")
        k("s_lshl_b32 s22, s22, 10")
        k("s_and_b32 s23, s53, 1")
        k("s_lshl_b32 s23, s23, 8")
        k("s_add_u32 s22, s22, s23")
        k(f"s_add_u32 s54, s22, {WS_HC}")
        k("s_lshl_b32 s22, s36, 2")
        k("s_add_u32 s22, s22, s53")
        k("s_lshl_b32 s23, s22, 6")
        k(f"s_add_u32 s55, s23, {WS_MS}")
        k(f"s_mul_i32 s56, s22, {16*1280}")
        k("s_mul_i32 s23, s37, 160")
        k("s_add_u32 s56, s56, s23")
        lp = k.newlab("poll"); dn = k.newlab("got")
        k(f"s_mov_b32 s57, {SPIN}")
        k.lab(lp)
        k(f"buffer_load_dword v8, v{t1}, s[8:11], s39 offen sc1")
        k("s_sub_u32 s57, s57, 1")
        k("s_cmp_eq_u32 s57, 0")
        k(f"s_cbranch_scc1 {dn}")
        k("s_waitcnt vmcnt(0)")
        k("v_cmp_ne_u32 vcc, 1, v8")
        k("s_cmp_lg_u64 vcc, 0")
        k(f"s_cbranch_scc1 {lp}")
        k.lab(dn)
        k("s_waitcnt vmcnt(0)")
        stamp("h_got")
        vb = VM(k)
        Hreg = [HA, HB, HC, HA, W(0), HB]
        def hld(i, n):
            b = Hreg[i] + 4*n
            vb.issue(f"buffer_load_dwordx4 v[{b}:{b+3}], v{vld if i < 4 else vld4}, s[8:11], s{40+n} offen offset:{1024*(i%4)}", ("h", i))
        for i in range(3):
            for n in range(4): hld(i, n)
        E = W(1)
        for i in range(6):
            vb.wait(("h", i))
            for n in range(4):
                for mt in range(5):
                    d = ACC + 4*(5*n + mt)
                    cs = f"v[{d}:{d+3}]" if i else "0"
                    k(f"v_mfma_f32_16x16x32_bf16 v[{d}:{d+3}], v[{W(i)+4*mt}:{W(i)+4*mt+3}], v[{Hreg[i]+4*n}:{Hreg[i]+4*n+3}], {cs}")
                if i == 0: hld(3, n)
                if i == 1: hld(4, n)
                if i == 1 and n == 3:
                    pass
                if i == 2 and n == 0:
                    for q in range(4): hld(5, q)
                if i == 2 and n == 1:
                    for t in range(Lt):
                        vb.issue(f"buffer_load_dwordx2 v[{E+2*t}:{E+2*t+1}], v{vhc}, s[8:11], s54 offen offset:{1024*t}", "e")
                    vb.issue(f"buffer_load_dword v{E+8}, v{vma}, s[8:11], s55 offen", "e")
        stamp("b_end")
        k("s_nop 4")
        va = HC
        for n in (1, 2, 3, 0):
            for h in range(2):
                if n == 0 and h == (1 if hi else 0): continue
                k(f"v_add_u32 v{va + 2*n + h}, s{44 + 2*n + h}, v{vld}")
                for t, mt in enumerate([3, 4] if h else [0, 1, 2]):
                    d = ACC + 4*(5*n + mt)
                    k(f"ds_write_b128 v{va + 2*n + h}, v[{d}:{d+3}] offset:{1024*t}")
        k(f"v_add_u32 v{va+8}, s52, v{vld}")
        k("s_waitcnt lgkmcnt(0)")
        k("s_barrier")
        R = 168
        assert R + 7*Lt*4 <= 256
        for sl in range(7):
            for t in range(Lt):
                b = R + 4*(sl*Lt + t)
                k(f"ds_read_b128 v[{b}:{b+3}], v{va+8} offset:{1024*(sl*Lt + t)}")
        u = 8
        vb.wait("e")
        for t in range(Lt):
            for z in range(2):
                k(f"v_lshlrev_b32 v{u+4*t+2*z}, 16, v{E+2*t+z}")
                k(f"v_and_b32 v{u+4*t+2*z+1}, 0xffff0000, v{E+2*t+z}")
        for z in range(2*Lt):
            k(f"v_pk_add_f32 v[{u+2*z}:{u+2*z+1}], v[{u+2*z}:{u+2*z+1}], v[{E+8}:{E+9}] op_sel_hi:[1,0]")
        own = ACC + 4*mts[0]
        for z in range(2*Lt):
            k(f"v_pk_add_f32 v[{u+2*z}:{u+2*z+1}], v[{u+2*z}:{u+2*z+1}], v[{own+2*z}:{own+2*z+1}]")
        n_rd = 7*Lt
        def wait_sl(sl): k(f"s_waitcnt lgkmcnt({min(15, n_rd - (sl+1)*Lt)})")
        wait_sl(1)
        for z in range(2*Lt):
            k(f"v_pk_add_f32 v[{R+2*z}:{R+2*z+1}], v[{R+2*z}:{R+2*z+1}], v[{R+4*Lt+2*z}:{R+4*Lt+2*z+1}]")
        for sl in range(2, 7):
            wait_sl(sl)
            tgt = u if sl % 2 == 0 else R
            for z in range(2*Lt):
                k(f"v_pk_add_f32 v[{tgt+2*z}:{tgt+2*z+1}], v[{tgt+2*z}:{tgt+2*z+1}], v[{R+4*Lt*sl+2*z}:{R+4*Lt*sl+2*z+1}]")
        for z in range(2*Lt):
            k(f"v_pk_add_f32 v[{u+2*z}:{u+2*z+1}], v[{u+2*z}:{u+2*z+1}], v[{R+2*z}:{R+2*z+1}]")
        o = 24
        for t in range(Lt):
            for z in range(2):
                k(f"v_cvt_pk_bf16_f32 v{o+2*t+z}, v{u+4*t+2*z}, v{u+4*t+2*z+1}")
            k(f"buffer_store_dwordx2 v[{o+2*t}:{o+2*t+1}], v{vo}, s[12:15], s56 offen offset:{32*mts[t]}")
        k("s_endpgm")
    scur = 34
    def dma_items(c):
        sl = c % NS
        def mk(i):
            def f():
                if "nodma" in var: return
                if i == 0:
                    k(f"s_add_u32 m0, s{mA}, {sl*ST}")
                    k(f"s_mul_i32 s22, s{scur}, 12288")
                    k(f"s_add_u32 s22, s22, s{sA}")
                if i == 3:
                    k(f"s_add_u32 m0, s{mB}, {sl*ST}")
                    k(f"s_lshl_b32 s22, s{scur}, 11")
                    k(f"s_add_u32 s22, s22, s{sB}")
                o = i if i < 3 else i - 3
                vmh[0].issue(f"buffer_load_dwordx4 v{vdma}, s[8:11], s22 offen offset:{1024*o} lds", ("c", c))
                if i == 4:
                    k(f"s_add_u32 s{scur}, s{scur}, 1")
                    k(f"s_cmp_eq_u32 s{scur}, 20")
                    k(f"s_cselect_b32 s{scur}, 0, s{scur}")
            return f
        return [mk(i) for i in range(5)]
    if rot:
        k("s_lshr_b32 s23, s2, 3")
        k("s_and_b32 s24, s23, 3")
        k("s_mul_i32 s24, s24, 5")
        k("s_lshr_b32 s23, s23, 2")
        k("s_mul_i32 s23, s23, 5")
        k("s_lshr_b32 s23, s23, 1")
        k(f"s_add_u32 s{scur}, s23, s24")
        k(f"s_cmp_ge_u32 s{scur}, 20")
        k(f"s_cselect_b32 s24, 20, 0")
        k(f"s_sub_u32 s{scur}, s{scur}, s24")
    else:
        k(f"s_mov_b32 s{scur}, 0")
    PROD = f"{label}_prod"
    k("s_cmp_ge_u32 s21, 4")
    k(f"s_cbranch_scc1 {PROD}")
    def sqloads():
        for j in range(20):
            vm.issue(f"buffer_load_dword v{vt+j}, v{t1}, s[8:11], s{sQ} offen offset:{256*j}" if j < 16 else
                     f"buffer_load_dword v{vt+j}, v{t1}, s[8:11], s31 offen offset:{256*(j-16)}", "sq")
            if j == 0: k(f"s_add_u32 s31, s{sQ}, 4096")
    if not f3: sqloads()
    setup = []
    setup += [f"s_mul_i32 s23, s{swm}, 3072", f"v_add_u32 v{vA}, s23, v{vdma}", f"s_lshl_b32 s23, s{swn}, 12", f"s_add_u32 s23, s23, 12288", f"v_add_u32 v{vB}, s23, v{vdma}"]
    for i in range(1, 3):
        setup += [f"v_add_u32 v{vA+i}, {i*3*ST}, v{vA}", f"v_add_u32 v{vB+i}, {i*3*ST}, v{vB}"]
    setup += [f"v_bfe_u32 v{t0}, v{vl}, 4, 1", f"v_mul_u32_u24 v{t0}, 49152, v{t0}", f"v_lshrrev_b32 v{vst}, 5, v{vl}",
              f"v_lshl_add_u32 v{t0}, v{vst}, 8, v{t0}", f"v_and_b32 v{vst}, 15, v{vl}", f"v_lshl_add_u32 v{vst}, v{vst}, 4, v{t0}"]
    for t in setup: k(t)
    k(f"v_add_u32 v{vld4}, 4096, v{vld}")
    def rd_items(kk):
        if "nord" in var: return []
        c, k2 = kk // 2, kk % 2
        sl = c % NS; st, so = sl // 3, (sl % 3) * ST
        b = kk & 1
        L = []
        L.append(f"ds_read_b128 v[{fA+12*b}:{fA+12*b+3}], v{vA+st} offset:{so + k2*6144}")
        for nt in range(2):
            L.append(f"ds_read_b128 v[{fB+8*b+4*nt}:{fB+8*b+4*nt+3}], v{vB+st} offset:{so + nt*2048 + k2*1024}")
        for i in range(1, 3):
            L.append(f"ds_read_b128 v[{fA+12*b+4*i}:{fA+12*b+4*i+3}], v{vA+st} offset:{so + k2*6144 + i*1024}")
        return L
    def wait_chunk(c):
        k("s_barrier")
    wait_chunk(0)
    stamp("a_c0")
    if f3: sqloads()
    if "clk" in var: k.stamp(10)
    for t in rd_items(0): k(t)
    pend = []
    nextc = NS
    rl0 = vr; rl1 = vr + 4
    cw = list(range(10, 30))
    extra = []
    for kk in range(40):
        c = kk // 2
        b = kk & 1
        k("s_waitcnt lgkmcnt(0)")
        if kk & 1 and kk + 1 < 40:
            wait_chunk(c + 1)
        mf = []
        for i in range(3):
            for nt in range(2):
                d = vacc + 16*(2*i + nt)
                cs = f"v[{d}:{d+15}]" if kk else "0"
                mf.append(f"v_mfma_f32_32x32x16_bf16 v[{d}:{d+15}], v[{fA+12*b+4*i}:{fA+12*b+4*i+3}], v[{fB+8*b+4*nt}:{fB+8*b+4*nt+3}], {cs}")
        if "nomfma" in var: mf = ["" for _ in mf]
        rds = rd_items(kk + 1) if kk + 1 < 40 else []
        ndma = 2 if (kk & 1) else 3
        dm = pend[:ndma]; pend = pend[ndma:]
        if kk == 6:
            def w(): vm.wait("sq")
            extra = [w] + [f"v_add_f32 v{vt+2*z}, v{vt+2*z}, v{vt+2*z+1}" for z in range(10)]
            extra += [f"v_add_f32 v{vt+4*z}, v{vt+4*z}, v{vt+4*z+2}" for z in range(5)]
            extra += [f"v_add_f32 v{vt}, v{vt}, v{vt+4}", f"v_add_f32 v{vt+8}, v{vt+8}, v{vt+12}", f"v_add_f32 v{vt}, v{vt}, v{vt+16}", f"v_add_f32 v{vt}, v{vt}, v{vt+8}",
                      f"v_mul_f32 v{vt}, {fh(1/640)}, v{vt}", f"v_add_f32 v{vt}, {fh(1e-5)}, v{vt}",
                      f"v_mov_b32 v{vt+1}, v{vt}", "s_nop 1", f"v_permlane32_swap_b32 v{vt}, v{vt+1}", "s_nop 1",
                      f"v_rsq_f32 v{vt+2}, v{vt}", f"v_rsq_f32 v{vt+3}, v{vt+1}", "s_nop 0",
                      f"v_mul_f32 v{rl0}, {fh(-1.4426950408889634)}, v{vt+2}", f"v_mul_f32 v{rl1}, {fh(-1.4426950408889634)}, v{vt+3}",
                      f"v_mov_b32 v{rl0+2}, v{vt}", f"v_mov_b32 v{rl1+2}, v{vt+1}"]
        slots = [[] for _ in range(6)]
        for j, t in enumerate(rds): slots[[0,0,1,1,2][j]].append(t)
        for j, t in enumerate(dm): slots[3 + j].append(t)
        if kk >= CW0:
            for j in (3, 5):
                if cw: slots[j] += w2ld(cw.pop(0))
        ne = 0
        for i in range(6):
            if mf[i]: k(mf[i])
            for t in slots[i]:
                if callable(t): t()
                else: k(t)
            for _ in range(3):
                if extra:
                    t = extra.pop(0)
                    if callable(t): t()
                    else: k(t)
    assert not pend and not extra
    cw_left = cw
    k("s_barrier")
    stamp("a_end")
    k(f"s_lshl_b32 s23, s{srow}, 2")
    k(f"s_lshl_b32 s24, s{swn}, 1")
    k(f"s_add_u32 s23, s23, s24")
    k(f"s_mul_i32 s23, s23, {96*1024}")
    k(f"s_add_u32 s23, s23, {WS_HF}")
    k(f"s_mul_i32 s24, s{sf}, 6")
    k(f"s_mul_i32 s25, s{swm}, 3")
    k(f"s_add_u32 s24, s24, s25")
    k(f"s_lshl_b32 s24, s24, 9")
    k(f"s_add_u32 s23, s23, s24")
    k("s_nop 3")
    tiles = [(i, nt) for i in range(3) for nt in range(2)]
    def stA(t):
        i, nt = tiles[t]; d = vacc + 16*(2*i + nt); rl = vr + 4*nt; e = vt + 8*(t & 1)
        L = [f"v_pk_mul_f32 v[{e+2*z}:{e+2*z+1}], v[{d+2*z}:{d+2*z+1}], v[{rl}:{rl+1}] op_sel_hi:[1,0]" for z in range(4)]
        L += [f"v_exp_f32 v{e+z}, v{e+z}" for z in range(8)]
        return L
    def stB(t):
        i, nt = tiles[t]; d = vacc + 16*(2*i + nt); r2 = vr + 4*nt + 2; e = vt + 8*(t & 1)
        L = [f"v_pk_fma_f32 v[{e+2*z}:{e+2*z+1}], v[{e+2*z}:{e+2*z+1}], v[{r2}:{r2+1}], v[{r2}:{r2+1}] op_sel_hi:[1,0,0]" for z in range(4)]
        L += [f"v_pk_mul_f32 v[{d+2*z}:{d+2*z+1}], v[{d+2*z}:{d+2*z+1}], v[{d+8+2*z}:{d+8+2*z+1}]" for z in range(4)]
        L += [f"v_rcp_f32 v{e+z}, v{e+z}" for z in range(8)]
        L += ["s_nop 0"]
        L += [f"v_pk_mul_f32 v[{d+2*z}:{d+2*z+1}], v[{d+2*z}:{d+2*z+1}], v[{e+2*z}:{e+2*z+1}]" for z in range(4)]
        L += [f"v_cvt_pk_bf16_f32 v{d+8+z}, v{d+2*z}, v{d+2*z+1}" for z in range(4)]
        L += [f"s_add_u32 s25, s23, {nt*96*1024 + i*512}", f"buffer_store_dwordx4 v[{d+8}:{d+11}], v{vst}, s[8:11], s25 offen sc1"]
        return L
    cw = list(range(10)) + cw_left
    per = (len(cw) + 11) // 12
    def cwl(n):
        for _ in range(n):
            if cw:
                for x in w2ld(cw.pop(0)): k(x)
    if not il:
        cwl(2 if not cw_left else per)
        for t in stA(0): k(t)
        for t in range(6):
            cwl(1 if not cw_left else per)
            if t + 1 < 6:
                for x in stA(t+1): k(x)
            else: k("s_nop 0")
            cwl(1 if not cw_left else per)
            for x in stB(t): k(x)
    else:
        cwl(2 if not cw_left else per)
        for t in stA(0): k(t)
        k("s_nop 0")
        for t in range(6):
            B = stB(t); An = stA(t+1) if t + 1 < 6 else None
            fma, mulp, rcp, fin, cvt, sto = B[0:4], B[4:8], B[8:16], B[17:21], B[21:25], B[25:]
            for x in fma: k(x)
            cwl(1 if not cw_left else per)
            for z in range(4):
                k(rcp[2*z]); k(An[z] if An else mulp[z]); k(rcp[2*z+1])
                if An: k(mulp[z])
            if not An: k("s_nop 0")
            cwl(1 if not cw_left else per)
            for z in range(4):
                if An: k(An[4+2*z])
                k(fin[z])
                if An: k(An[4+2*z+1])
                k(cvt[z])
            for x in sto: k(x)
    cwl(30)
    k(f"s_lshl_b32 s23, s{srow}, 1")
    k(f"s_add_u32 s23, s23, s{swn}")
    k("s_lshl_b32 s23, s23, 5")
    k(f"s_lshl_b32 s24, s{sf}, 1")
    k("s_add_u32 s23, s23, s24")
    k(f"s_add_u32 s23, s23, s{swm}")
    k("s_lshl_b32 s23, s23, 7")
    k(f"s_add_u32 s23, s23, {WS_FL}")
    k(f"v_mov_b32 v{t1}, 1")
    k("s_mov_b64 exec, 1")
    k("s_waitcnt vmcnt(0)")
    k(f"buffer_store_dword v{t1}, off, s[8:11], s23 sc1")
    k("s_mov_b64 exec, -1")
    stamp("h_flag")
    phaseB(False)
    k.lab(PROD)
    vm = VM(k); vmh[0] = vm
    nxt = 0
    if f3:
        its = [dma_items(c) for c in range(P)]
        k(f"s_mov_b32 s{scur}, 0")
        for c in range(P):
            k(f"s_mov_b32 s{scur}, {c}")
            for f in its[c][:3]: f()
        k(f"s_lshl_b32 s23, s{srow}, 1")
        k(f"s_lshr_b32 s24, s{sw}, 1")
        k("s_add_u32 s23, s23, s24")
        k(f"s_mul_i32 s23, s23, {20*128}")
        k(f"s_add_u32 s39, s23, {WS_FL2}")
        k(f"v_min_u32 v{t1}, 19, v{vl}")
        k(f"v_lshlrev_b32 v{t1}, 7, v{t1}")
        lp = k.newlab("poll"); dn = k.newlab("got")
        k(f"s_mov_b32 s57, {SPIN}")
        k.lab(lp)
        k(f"buffer_load_dword v8, v{t1}, s[8:11], s39 offen sc1")
        k("s_sub_u32 s57, s57, 1")
        k("s_cmp_eq_u32 s57, 0")
        k(f"s_cbranch_scc1 {dn}")
        k("s_waitcnt vmcnt(0)")
        k("v_cmp_ne_u32 vcc, 1, v8")
        k("s_cmp_lg_u64 vcc, 0")
        k(f"s_cbranch_scc1 {lp}")
        k.lab(dn)
        k("s_waitcnt vmcnt(0)")
        stamp("p_got")
        vm = VM(k); vmh[0] = vm
        for c in range(P):
            k(f"s_mov_b32 s{scur}, {c}")
            for f in its[c][3:]: f()
            nxt += 1
    else:
        for c in range(P):
            for f in dma_items(c): f()
            nxt += 1
    k(f"v_add_u32 v{vld4}, 4096, v{vld}")
    pw = list(range(30))
    for c in range(20):
        if "nodma" not in var: vm.wait(("c", c))
        k("s_barrier")
        n = 0
        while nxt < 20 and nxt <= c - 1 + NS and n < 2 and nxt <= c + NS - 1:
            for f in dma_items(nxt): f()
            nxt += 1; n += 1
            if nxt - c > NS - 1: break
        if c >= TR0:
            for _ in range(TRN):
                if pw:
                    j = pw.pop(0); L = w2ld(j)
                    for x in L[:-1]: k(x)
                    vm.issue(L[-1], ("w", j))
    assert nxt == 20
    k("s_barrier")
    stamp("a_end")
    while pw:
        j = pw.pop(0); L = w2ld(j)
        for x in L[:-1]: k(x)
        vm.issue(L[-1], ("w", j))
    phaseB(True)
    k.lab(END)
    k("s_endpgm")
    return k
```

```python
import sys
from k1 import make_k1
from k2 import make_k2
from k3 import make_k3
from k4 import make_k4
from k5 import make_k5
from k45 import make_k45
from gl import *
def kset(pf=2, fuse=1, **kw):
    n = (lambda x: [x]) if pf >= 2 else (lambda x: None)
    p = 1 if pf else 0
    if fuse == 30: return [make_k1(pf=p, prep=1, f2=6, wpf=kw.pop('wpf', 0), k45kw=dict(pf=p, **kw))]
    if fuse == 20: return [make_k1(pf=p, nxt=n('k345_kernel') if kw.pop('nx', 0) else None, prep=1, f2=kw.pop('f2', 3), wpf=kw.pop('wpf', 2), gfirst=kw.pop('gfirst', 0)), make_k45(label='k345_kernel', pf=p, f3=1, **kw)]
    if fuse == 8: return [make_k1(pf=p, nxt=n('k2_kernel'), wpf=2), make_k2(pf=p, nxt=n('k3_kernel'), side=2), make_k3(pf=p, nxt=n('k45_kernel'), side=0), make_k45(pf=p, **kw)]
    if fuse == 9: return [make_k1(pf=p, nxt=n('k2_kernel'), wpf=0), make_k2(pf=p, nxt=n('k3_kernel'), side=2), make_k3(pf=p, nxt=n('k45_kernel'), side=0), make_k45(pf=p, **kw)]
    if fuse >= 100: return [make_k1(pf=p, nxt=n('k2_kernel'), wpf=2, tlb=fuse-100), make_k2(pf=p, nxt=n('k345_kernel'), side=2), make_k45(label='k345_kernel', pf=p, f3=1, **kw)]
    if 10 <= fuse < 20: return [make_k1(pf=p, nxt=n('k2_kernel'), wpf=fuse-10), make_k2(pf=p, nxt=n('k345_kernel'), side=2), make_k45(label='k345_kernel', pf=p, f3=1, **kw)]
    if fuse in (6, 7): return [make_k1(pf=p, nxt=n('k2_kernel'), wpf=1), make_k2(pf=p, nxt=n('k345_kernel'), side={6: 2, 7: 1}[fuse]), make_k45(label='k345_kernel', pf=p, f3=1, **kw)]
    if fuse in (4, 5): return [make_k1(pf=p, nxt=n('k2_kernel')), make_k2(pf=p, nxt=n('k345_kernel'), side={4: 2, 5: 4}[fuse]), make_k45(label='k345_kernel', pf=p, f3=1, **kw)]
    if fuse == 3: return [make_k1(pf=p, nxt=n('k2_kernel'), prep=1), make_k2(pf=p, nxt=n('k345_kernel'), side=0), make_k45(label='k345_kernel', pf=p, f3=1, **kw)]
    if fuse == 2: return [make_k1(pf=p, nxt=n('k2_kernel')), make_k2(pf=p, nxt=n('k345_kernel'), side=1), make_k45(label='k345_kernel', pf=p, f3=1, **kw)]
    if fuse: return [make_k1(pf=p, nxt=n('k2_kernel')), make_k2(pf=p, nxt=n('k3_kernel')), make_k3(pf=p, nxt=n('k45_kernel')), make_k45(pf=p, **kw)]
    return [make_k1(pf=p, nxt=n("k2_kernel")), make_k2(pf=p, nxt=n("k3_kernel")), make_k3(pf=p, nxt=n("k4_kernel")), make_k4(pf=p, nxt=n("k5_kernel")), make_k5(pf=p)]
if __name__ == "__main__":
    out = sys.argv[1] if len(sys.argv) > 1 else "all.s"
    pf = int(sys.argv[2]) if len(sys.argv) > 2 else 2
    fuse = int(sys.argv[3]) if len(sys.argv) > 3 else 1
    kw = eval(sys.argv[4]) if len(sys.argv) > 4 else {}
    build(kset(pf, fuse, **kw), out)
```

```python
from common import *
def make_k1(label="k1_kernel", var="", pf=1, nxt=None, SPL=(3,4,4,4,5), prep=0, wpf=0, tlb=0, f2=0, gfirst=0):
    NSD = 96 if prep else 80
    LB2 = 81920+2048+1024
    k = Kern(label, grid=160+NSD, block=512, lds=LB2 + (32768 if f2 else 0), vgpr=248)
    K2E = f"{label}_k2e"
    sc = " sc1" if f2 else ""
    _stamp = k.stamp
    if f2: assert prep; k.stamp = lambda n: None
    END = f"{label}_end"; SIDE = f"{label}_side"; PROD = f"{label}_prod"
    k(f"s_cmp_ge_u32 s2, {160+NSD}")
    k(f"s_cbranch_scc1 {END}")
    if gfirst:
        k(f"s_add_u32 s2, s2, {NSD}")
        k("s_and_b32 s2, s2, 255")
    k("s_load_dwordx2 s[4:5], s[0:1], 0")
    k("s_load_dwordx2 s[6:7], s[0:1], 72")
    if f2: k("s_load_dwordx2 s[42:43], s[0:1], 64")
    if pf: k.prefetch(nxt=nxt, shift=6 if f2 else None)
    k(f"s_cmp_lt_u32 s2, {NSD}")
    k(f"s_cbranch_scc1 {SIDE}")
    RS = 81920
    A = Alloc(1)
    vlane = A(); vt0 = A(); vt1 = A()
    vard = A(8)
    vst = A()
    vrev = A(); vdl = A(); vstep = A(); vc2 = A(2, 2); vtmp = A(8, 2)
    vfa = A(24, 4)
    vacc = A(32, 4)
    vF = A(160, 4)
    assert A.n <= 254, A.n
    sw, srow, scol, sso, sm0 = 16, 17, 18, 19, 20
    k(f"v_and_b32 v{vlane}, 63, v0")
    k(f"v_lshrrev_b32 v{vt0}, 6, v0")
    k(f"s_and_b32 s22, s2, 7")
    k(f"s_lshr_b32 s23, s2, 3")
    k(f"s_sub_u32 s23, s23, {NSD//8}")
    k(f"v_readfirstlane_b32 s21, v{vt0}")
    k(f"s_mul_i32 s24, s23, 52")
    k(f"s_lshr_b32 s24, s24, 8")
    k(f"s_mul_i32 s25, s24, 5")
    k(f"s_sub_u32 s{scol}, s23, s25")
    k(f"s_lshl_b32 s24, s24, 3")
    k(f"s_add_u32 s{srow}, s24, s22")
    k(f"s_and_b32 s{sw}, s21, 3")
    k("s_cmp_ge_u32 s21, 4")
    k(f"s_cbranch_scc1 {PROD}")
    k(f"s_lshl_b32 s22, s{scol}, 2")
    k(f"s_add_u32 s22, s22, s{sw}")
    k(f"s_lshl_b32 s22, s22, 4")
    k(f"s_add_u32 s22, s22, 1")
    k(f"v_and_b32 v{vt0}, 15, v{vlane}")
    k(f"v_add_u32 v{vt0}, s22, v{vt0}")
    k(f"v_cvt_f32_u32 v{vtmp}, v{vt0}")
    k(f"v_bfe_u32 v{vt1}, v{vlane}, 4, 1")
    k(f"v_lshl_add_u32 v{vst}, v{vt0}, 1, v{vt1}")
    k(f"v_lshlrev_b32 v{vst}, 12, v{vst}")
    k(f"v_subrev_u32 v{vst}, {2*4096}, v{vst}")
    k(f"v_cvt_f32_u32 v{vtmp+1}, v{vt1}")
    k(f"v_lshrrev_b32 v{vt1}, 5, v{vlane}")
    k(f"v_lshl_add_u32 v{vst}, v{vt1}, 4, v{vst}")
    k(f"v_cvt_f32_u32 v{vtmp+2}, v{vt1}")
    k(f"v_mul_f32 v{vdl}, {fh(1/640)}, v{vtmp}")
    k(f"v_mul_f32 v{vrev}, v{vtmp+2}, v{vtmp}")
    k(f"v_mul_f32 v{vrev}, 0.5, v{vrev}")
    k(f"v_mul_f32 v{vtmp+1}, {fh(0.25)}, v{vtmp+1}")
    k(f"v_add_f32 v{vrev}, v{vrev}, v{vtmp+1}")
    k(f"v_fract_f32 v{vrev}, v{vrev}")
    k(f"v_mul_f32 v{vstep}, {fh(1/16)}, v{vtmp}")
    k(f"v_fract_f32 v{vstep}, v{vstep}")
    k(f"v_add_f32 v{vtmp}, v{vdl}, v{vdl}")
    k(f"v_cos_f32 v{vc2}, v{vtmp}")
    k("s_nop 0")
    k(f"v_add_f32 v{vc2}, v{vc2}, v{vc2}")
    for b in range(8):
        cos_block(k, vF + 20*b, 20, vrev, vdl, vc2, vtmp)
        if b < 7:
            k(f"v_add_f32 v{vrev}, v{vrev}, v{vstep}")
            k(f"v_fract_f32 v{vrev}, v{vrev}")
    k(f"v_and_b32 v{vt0}, 19, v{vlane}")
    k(f"v_bfe_u32 v{vt1}, v{vlane}, 2, 1")
    k(f"v_lshl_or_b32 v{vt0}, v{vt1}, 3, v{vt0}")
    k(f"v_bfe_u32 v{vt1}, v{vlane}, 3, 1")
    k(f"v_lshl_or_b32 v{vt0}, v{vt1}, 2, v{vt0}")
    k(f"v_bfe_u32 v{vt1}, v{vt0}, 1, 3")
    k(f"v_lshlrev_b32 v{vt1}, 4, v{vt1}")
    k(f"v_lshl_or_b32 v{vt1}, v{vt0}, 7, v{vt1}")
    k(f"v_lshrrev_b32 v{vtmp}, 5, v{vlane}")
    k(f"v_mul_u32_u24 v{vtmp}, {5*8192}, v{vtmp}")
    k(f"v_add_u32 v{vard}, v{vt1}, v{vtmp}")
    for u in range(1, 8):
        k(f"v_xor_b32 v{vard+u}, {u<<4}, v{vard}")
    k("s_waitcnt lgkmcnt(0)")
    k.srd(12, 6, WS_END)
    if 'clk' not in var: k.stamp(0)
    def rd(kk):
        p, u = kk // 8, kk % 8
        sl = kk % 3
        for t in range(2):
            k(f"ds_read_b128 v[{vfa+sl*8+t*4}:{vfa+sl*8+t*4+3}], v{vard+u} offset:{p*8192 + t*4096}")
    k("s_barrier")
    if 'clk' in var: k.stamp(10)
    k.stamp(2)
    rd(0); rd(1)
    if f2 >= 5: k.srd(36, 42, 256)
    for kk in range(40):
        if f2 >= 5 and kk == 28: k(f"buffer_load_dword v{vt0}, off, s[36:39], 0 sc1")
        nk = kk + 2
        if nk < 40:
            if nk % 8 == 0: k("s_barrier")
            rd(nk)
            k(f"s_waitcnt lgkmcnt(4)")
        elif nk == 40: k(f"s_waitcnt lgkmcnt(2)")
        else: k("s_waitcnt lgkmcnt(0)")
        sl = kk % 3
        for t in range(2):
            fa = vfa + sl*8 + t*4
            cs = f"v[{vacc+16*t}:{vacc+16*t+15}]" if kk else "0"
            k(f"v_mfma_f32_32x32x16_bf16 v[{vacc+16*t}:{vacc+16*t+15}], v[{fa}:{fa+3}], v[{vF+4*kk}:{vF+4*kk+3}], {cs}")
    k.stamp(3)
    if 'clk' in var: k.stamp(11)
    k(f"v_lshrrev_b32 v{vt1}, 5, v{vlane}")
    k(f"v_lshlrev_b32 v{vt1}, 5, v{vt1}")
    k(f"v_add_u32 v{vt1}, {RS}, v{vt1}")
    k(f"s_lshl_b32 s22, s{srow}, 7")
    k(f"s_add_u32 s22, s22, {WS_PT}")
    k("s_barrier")
    vr = vF
    for t in range(2):
        for q in range(2):
            for z in range(2):
                b = vr + 16*t + 8*q + 4*z
                k(f"ds_read_b128 v[{b}:{b+3}], v{vt1} offset:{128*t + 64*q + 16*z}")
    vo = vF + 32
    vx = vF + 80
    if f2 >= 4:
        k(f"v_and_b32 v{vx}, 31, v{vlane}")
        k(f"v_lshrrev_b32 v{vx+1}, 5, v{vlane}")
        k(f"v_and_b32 v{vx+2}, 7, v{vlane}")
        k(f"v_xor_b32 v{vx+1}, v{vx+1}, v{vx+2}")
        k(f"v_lshlrev_b32 v{vx+1}, 4, v{vx+1}")
        k(f"v_lshl_add_u32 v{vx}, v{vx}, 7, v{vx+1}")
        k(f"s_lshl_b32 s23, s{sw}, 12")
        k(f"v_add_u32 v{vx}, s23, v{vx}")
        k(f"v_lshrrev_b32 v{vx+5}, 3, v{vlane}")
        k(f"v_xor_b32 v{vx+4}, v{vx+5}, v{vx+2}")
        k(f"v_lshlrev_b32 v{vx+4}, 4, v{vx+4}")
        k(f"v_lshl_add_u32 v{vx+4}, v{vx+5}, 7, v{vx+4}")
        k(f"v_add_u32 v{vx+4}, s23, v{vx+4}")
        for z in range(1, 4): k(f"v_xor_b32 v{vx+z}, {32*z}, v{vx}")
        k(f"s_lshl_b32 s23, s{scol}, 2")
        k(f"s_add_u32 s23, s23, s{sw}")
        k("s_lshl_b32 s23, s23, 4")
        k(f"v_add_u32 v{vx+5}, s23, v{vx+5}")
        k(f"v_lshlrev_b32 v{vx+5}, 13, v{vx+5}")
        k(f"v_and_b32 v{vx+6}, 7, v{vlane}")
        k(f"v_lshl_add_u32 v{vx+5}, v{vx+6}, 4, v{vx+5}")
    for t in range(2):
        for q in range(2):
            b = 16*t + 8*q
            k(f"s_waitcnt lgkmcnt({6 - 2*(2*t+q)})")
            for z in range(4):
                k(f"v_pk_mul_f32 v[{vacc+b+2*z}:{vacc+b+2*z+1}], v[{vacc+b+2*z}:{vacc+b+2*z+1}], v[{vr+b+2*z}:{vr+b+2*z+1}]")
            ob = vo + 4*(2*t+q)
            for z in range(4):
                k(f"v_cvt_pk_bf16_f32 v{ob+z}, v{vacc+b+2*z}, v{vacc+b+2*z+1}")
            if f2 >= 4: k(f"ds_write_b128 v{vx+2*t+q}, v[{ob}:{ob+3}]")
            else: k(f"buffer_store_dwordx4 v[{ob}:{ob+3}], v{vst}, s[12:15], s22 offen offset:{64*t+32*q}{sc}")
    if f2 >= 4:
        k("s_waitcnt lgkmcnt(0)")
        for j in range(4): k(f"ds_read_b128 v[{vo+16+4*j}:{vo+19+4*j}], v{vx+4} offset:{1024*j}")
        for j in range(4):
            k(f"s_add_u32 s23, s22, {(j&1)*8*8192 + (j>>1)*4096}")
            k(f"s_waitcnt lgkmcnt({3-j})")
            k(f"buffer_store_dwordx4 v[{vo+16+4*j}:{vo+19+4*j}], v{vx+5}, s[12:15], s23 offen sc1")
    if f2:
        k(f"s_lshl_b32 s40, s{scol}, 2")
        k(f"s_add_u32 s40, s40, s{sw}")
        k("s_lshl_b32 s40, s40, 5")
        k(f"s_add_u32 s40, s40, s{srow}")
        k("s_lshl_b32 s40, s40, 7")
        k(f"s_add_u32 s40, s40, {WS_FL3}")
        if f2 >= 5:
            hv = k.newlab("have")
            k("s_waitcnt vmcnt(0)")
            k(f"v_readfirstlane_b32 s46, v{vt0}")
            k("s_cmp_lg_u32 s46, 0")
            k(f"s_cbranch_scc1 {hv}")
            get_nonce(k, vt0)
            k.lab(hv)
            put_flag(k, vt0, 40)
        k(f"s_branch {K2E}")
    else: k("s_endpgm")
    k.vgpr = A.n
    k.lab(PROD)
    B = Alloc(vt1 + 1)
    vdma = B(2); vsa = B(2); vs2 = B(8, 2); vsb = B(16, 4); vun = B(4, 2); vsum = B(4, 2); vq = B(2); vpfa = B(); vpfd = B()
    if wpf:
        k("s_load_dwordx4 s[44:47], s[0:1], 32")
        k("s_load_dwordx2 s[48:49], s[0:1], 48")
    k(f"v_lshrrev_b32 v{vt0}, 3, v{vlane}")
    k(f"v_mul_u32_u24 v{vt0}, 1280, v{vt0}")
    k(f"v_lshrrev_b32 v{vt1}, 4, v{vlane}")
    k(f"v_xor_b32 v{vt1}, v{vt1}, v{vlane}")
    k(f"v_and_b32 v{vt1}, 7, v{vt1}")
    k(f"v_lshl_add_u32 v{vdma}, v{vt1}, 4, v{vt0}")
    k(f"v_xor_b32 v{vdma+1}, 64, v{vdma}")
    k(f"v_add_u32 v{vdma+1}, {8*1280}, v{vdma+1}")
    k(f"s_lshl_b32 s22, s{srow}, 2")
    k(f"s_add_u32 s22, s22, s{sw}")
    k(f"s_mul_i32 s{sso}, s22, {16*1280}")
    k(f"s_lshl_b32 s{sm0}, s{sw}, 11")
    k("s_waitcnt lgkmcnt(0)")
    k.srd(8, 4, 2621440)
    k.srd(12, 6, WS_END)
    order = [0,5,1,6,2,7,3,8,4,9]
    for c in order:
        for i in range(2):
            k(f"s_add_u32 m0, s{sm0}, {c*8192 + i*1024}")
            k(f"s_add_u32 s22, s{sso}, {c*128}")
            k(f"buffer_load_dwordx4 v{vdma+i}, s[8:11], s22 offen lds")
    def wtouch():
        for m in range(3): k.srd(64 + 4*m, 44 + 2*m, 1966080)
        k(f"s_sub_u32 s23, s2, {NSD}")
        k("s_lshl_b32 s23, s23, 2")
        k(f"s_add_u32 s23, s23, s{sw}")
        for m, sub in ((0, 0), (1, 240), (2, 480), (2, -160)):
            k(f"s_sub_u32 s22, s23, {sub}" if sub >= 0 else f"s_add_u32 s22, s23, {-sub}")
            k("s_lshl_b32 s22, s22, 13")
            k(f"v_lshlrev_b32 v{vpfa}, 7, v{vlane}")
            k(f"v_add_u32 v{vpfa}, s22, v{vpfa}")
            k(f"buffer_load_dword v{vpfd}, v{vpfa}, s[{64+4*m}:{67+4*m}], 0 offen")
    if wpf == 1: wtouch()
    if 'clk' not in var: k.stamp(0)
    for i in range(8): k(f"v_mov_b32 v{vs2+i}, 0")
    k(f"v_lshlrev_b32 v{vsa}, 4, v{vlane}")
    k(f"v_add_u32 v{vsa}, s{sm0}, v{vsa}")
    k(f"v_add_u32 v{vsa+1}, {5*8192}, v{vsa}")
    k("s_mov_b32 s21, 0xffff0000")
    def statrd(r):
        p, j = r // 4, r % 4
        b = vsb + 4*(r % 4)
        k(f"ds_read_b128 v[{b}:{b+3}], v{vsa+(j>>1)} offset:{p*8192 + (j&1)*1024}")
    def statproc(r):
        i = r & 1; b = vsb + 4*(r % 4)
        for q in range(4):
            u = vun + 2*(q & 1)
            k(f"v_lshlrev_b32 v{u}, 16, v{b+q}")
            k(f"v_and_b32 v{u+1}, s21, v{b+q}")
            k(f"v_add_f32 v{vs2+4*i}, v{vs2+4*i}, v{u}")
            k(f"v_fmac_f32 v{vs2+4*i+2}, v{u}, v{u}")
            k(f"v_add_f32 v{vs2+4*i+1}, v{vs2+4*i+1}, v{u+1}")
            k(f"v_fmac_f32 v{vs2+4*i+3}, v{u+1}, v{u+1}")
    r0 = 0
    for p in range(5):
        k(f"s_waitcnt vmcnt({16-4*p + (4 if wpf and p >= wpf - 1 else 0)})")
        k("s_barrier")
        if wpf >= 2 and p == wpf - 2: wtouch()
        if p == 0 and 'clk' not in var: k.stamp(1)
        rs = list(range(r0, r0 + SPL[p])); r0 += SPL[p]
        assert rs[-1] < 4*(p+1)
        todo = rs[:]
        first = todo[:4]
        for r in first: statrd(r)
        rest = todo[4:]
        for n, r in enumerate(first):
            k(f"s_waitcnt lgkmcnt({len(first)-1-n if not rest or n == 0 else min(len(first)-1-n + 1, 15)})" if False else f"s_waitcnt lgkmcnt({len(first)-1-n + (1 if rest and n >= 1 else 0)})")
            statproc(r)
            if n == 0 and rest: statrd(rest[0])
        for r in rest:
            k("s_waitcnt lgkmcnt(0)")
            statproc(r)
    assert r0 == 20
    for i in range(2):
        k(f"v_add_f32 v{vsum+2*i}, v{vs2+4*i}, v{vs2+4*i+1}")
        k(f"v_add_f32 v{vsum+2*i+1}, v{vs2+4*i+2}, v{vs2+4*i+3}")
    for dpp in ["quad_perm:[1,0,3,2]", "quad_perm:[2,3,0,1]", "row_half_mirror"]:
        k("s_nop 0")
        for q in range(4):
            k(f"v_add_f32_dpp v{vsum+q}, v{vsum+q}, v{vsum+q} {dpp} row_mask:0xf bank_mask:0xf")
    k(f"v_and_b32 v{vt1}, 1, v{vlane}")
    k(f"v_cmp_eq_u32 vcc, 1, v{vt1}")
    k(f"v_lshrrev_b32 v{vq}, 3, v{vlane}")
    k(f"v_lshl_add_u32 v{vq}, v{vt1}, 3, v{vq}")
    k(f"v_cndmask_b32 v{vsum}, v{vsum}, v{vsum+2}, vcc")
    k(f"v_cndmask_b32 v{vsum+1}, v{vsum+1}, v{vsum+3}, vcc")
    k(f"v_mul_f32 v{vsum}, {fh(1/640)}, v{vsum}")
    k(f"v_mul_f32 v{vsum+2}, v{vsum}, v{vsum}")
    k(f"v_mul_f32 v{vsum+1}, {fh(1/640)}, v{vsum+1}")
    k(f"v_sub_f32 v{vsum+1}, v{vsum+1}, v{vsum+2}")
    k(f"v_max_f32 v{vsum+1}, 0, v{vsum+1}")
    k(f"v_add_f32 v{vsum+1}, {fh(1e-5)}, v{vsum+1}")
    k(f"v_rsq_f32 v{vsum+1}, v{vsum+1}")
    k(f"s_lshl_b32 s22, s{sw}, 4")
    k(f"v_add_u32 v{vq}, s22, v{vq}")
    k(f"v_lshlrev_b32 v{vq}, 2, v{vq}")
    k(f"v_add_u32 v{vq+1}, {RS}, v{vq}")
    k(f"ds_write_b32 v{vq+1}, v{vsum+1}")
    skip = k.newlab()
    k(f"s_cmp_lg_u32 s{scol}, 0")
    k(f"s_cbranch_scc1 {skip}")
    k(f"s_lshl_b32 s22, s{srow}, 8")
    k(f"s_add_u32 s22, s22, {WS_MS}")
    k(f"buffer_store_dword v{vsum}, v{vq}, s[12:15], s22 offen")
    k.lab(skip)
    k("s_waitcnt lgkmcnt(0)")
    k("s_barrier")
    k.stamp(3)
    if f2:
        k.lab(K2E)
        k.stamp = _stamp
        k("v_lshrrev_b32 v1, 6, v0")
        k("s_nop 0")
        k("v_readfirstlane_b32 s44, v1")
        k.srd(36, 42, 256)
        k.srd(12, 6, WS_END)
        k.stamp(0)
        k("s_lshr_b32 s22, s44, 2")
        k(f"s_sub_u32 s27, s2, {NSD}")
        k("s_lshl_b32 s27, s27, 1")
        k("s_add_u32 s27, s27, s22")
        k("s_lshl_b32 s45, s22, 14")
        k(f"s_add_u32 s45, s45, {LB2}")
        def own_flag(t0):
            get_nonce(k, t0)
            nf = k.newlab("nofl")
            k("s_cmp_ge_u32 s44, 4")
            k(f"s_cbranch_scc1 {nf}")
            put_flag(k, t0, 40)
            k.lab(nf)
        if f2 >= 5:
            cs = k.newlab("cons")
            k("s_cmp_lt_u32 s44, 4")
            k(f"s_cbranch_scc1 {cs}")
            get_nonce(k, 1)
            k.lab(cs)
        elif f2 >= 2: own_flag(1)
        def hook(k, r):
            vl, t0, t1, t2, sw2 = r["vl"], r["t0"], r["t1"], r["t2"], r["sw"]
            if f2 == 1: own_flag(t0)
            k.stamp(1)
            k("s_lshr_b32 s28, s27, 4")
            k("s_lshl_b32 s28, s28, 5")
            k(f"s_and_b32 s29, s{sw2}, 1")
            k("s_lshl_b32 s29, s29, 4")
            k("s_add_u32 s28, s28, s29")
            k("s_lshr_b32 s29, s27, 5")
            k("s_lshl_b32 s29, s29, 3")
            k(f"s_lshl_b32 s30, s{sw2}, 1")
            k("s_add_u32 s29, s29, s30")
            k("s_lshl_b32 s29, s29, 2")
            k(f"s_add_u32 s29, s29, {640 - 16}")
            k(f"v_add_u32 v{t0}, s28, v{vl}")
            k(f"v_add_u32 v{t1}, s29, v{vl}")
            k(f"v_cmp_gt_u32 vcc, 16, v{vl}")
            k(f"v_cndmask_b32 v{t0}, v{t1}, v{t0}, vcc")
            k(f"v_mov_b32 v{t1}, s28")
            k(f"v_cmp_gt_u32 vcc, 24, v{vl}")
            k(f"v_cndmask_b32 v{t0}, v{t1}, v{t0}, vcc")
            k(f"v_lshlrev_b32 v{t0}, 7, v{t0}")
            k(f"s_mov_b32 s31, {WS_FL3}")
            lp = k.newlab("poll"); dn = k.newlab("got")
            k("s_mov_b32 s47, 20000")
            k.lab(lp)
            k(f"buffer_load_dword v{t1}, v{t0}, s[12:15], s31 offen sc1")
            k("s_sub_u32 s47, s47, 1")
            k("s_cmp_eq_u32 s47, 0")
            k(f"s_cbranch_scc1 {dn}")
            k("s_waitcnt vmcnt(0)")
            k(f"v_cmp_ne_u32 vcc, s46, v{t1}")
            k("s_cmp_lg_u64 vcc, 0")
            k(f"s_cbranch_scc1 {lp}")
            k.lab(dn)
            k("s_waitcnt vmcnt(0)")
        from k2 import make_k2
        make_k2(kin=k, hook=hook, slb=45)
        k.stamp = lambda n: None
    else: k("s_endpgm")
    k.lab(SIDE)
    k.stamp = _stamp
    k("v_lshrrev_b32 v1, 6, v0")
    k("s_nop 0")
    k("v_readfirstlane_b32 s24, v1")
    k("s_cmp_ge_u32 s24, 4")
    k(f"s_cbranch_scc1 {label + ('_pw' if f2 >= 3 else '_prep' if prep else '_clr')}")
    if prep:
        k("s_cmp_ge_u32 s2, 80")
        k(f"s_cbranch_scc1 {label}_clr")
    k("s_load_dwordx2 s[32:33], s[0:1], 8")
    k("s_load_dwordx2 s[16:17], s[0:1], 16")
    k("s_mul_i32 s21, s2, 205")
    k("s_lshr_b32 s21, s21, 11")
    k("s_mul_i32 s22, s21, 10")
    k("s_sub_u32 s22, s2, s22")
    k("s_lshr_b32 s23, s21, 1")
    k("s_lshl_b32 s23, s23, 4")
    k("s_and_b32 s25, s21, 1")
    k("s_lshl_b32 s25, s25, 10")
    k("s_add_u32 s23, s23, s25")
    k("s_lshl_b32 s25, s24, 8")
    k("s_add_u32 s23, s23, s25")
    k("v_bfe_u32 v2, v0, 2, 4")
    k("v_add_u32 v1, s23, v2")
    k("v_mul_u32_u24 v1, 642, v1")
    k("v_and_b32 v3, 3, v0")
    k("v_lshl_add_u32 v1, v3, 4, v1")
    k("s_lshl_b32 s25, s22, 6")
    k("s_add_u32 s25, s25, 2")
    k("v_lshlrev_b32 v3, 16, v3")
    k("v_lshl_add_u32 v2, v2, 4, v3")
    k("s_waitcnt lgkmcnt(0)")
    k.srd(8, 32, 1314816); k.srd(28, 16, 1314816); k.srd(12, 6, WS_END)
    for i in range(4):
        k(f"buffer_load_dwordx4 v[{4+4*i}:{7+4*i}], v1, s[8:11], s25 offen")
        k(f"buffer_load_dwordx4 v[{20+4*i}:{23+4*i}], v1, s[28:31], s25 offen")
        if i < 3: k(f"s_add_u32 s25, s25, {64*642}")
    k.stamp(0)
    k("s_mov_b32 s26, 0x05040100\ns_mov_b32 s27, 0x07060302")
    k("s_lshl_b32 s23, s22, 18")
    k("s_lshl_b32 s25, s21, 10")
    k("s_add_u32 s23, s23, s25")
    k("s_lshl_b32 s25, s24, 8")
    k("s_add_u32 s23, s23, s25")
    k(f"s_add_u32 s23, s23, {WS_WT}")
    k("s_waitcnt vmcnt(0)"); k.stamp(1)
    for z in range(8):
        d, hh = z // 2, z % 2
        o = 36 + 4*z
        for i in range(4):
            k(f"v_perm_b32 v{o+i}, v{20+4*i+d}, v{4+4*i+d}, s{26+hh}")
        k(f"buffer_store_dwordx4 v[{o}:{o+3}], v2, s[12:15], s23 offen{sc}")
        if z < 7: k("s_add_u32 s23, s23, 8192")
    k.stamp(3)
    if f2:
        k.srd(36, 42, 256)
        k("s_lshl_b32 s40, s22, 3")
        k("s_add_u32 s40, s40, s21")
        k("s_lshl_b32 s40, s40, 2")
        k("s_add_u32 s40, s40, s24")
        k("s_lshl_b32 s40, s40, 7")
        k(f"s_add_u32 s40, s40, {WS_FL3 + 640*128}")
        get_nonce(k, 1)
        put_flag(k, 1, 40)
        k.stamp(2)
    if f2 >= 3: k(f"s_branch {label}_pw")
    else: k("s_endpgm")
    k.lab(f"{label}_clr")
    k("s_load_dwordx2 s[6:7], s[0:1], 72")
    if prep:
        k("s_sub_u32 s21, s2, 80")
        k("s_lshl_b32 s21, s21, 2")
        k("s_add_u32 s21, s21, s24")
        k("s_lshl_b32 s21, s21, 12")
    else:
        if tlb: k("s_load_dwordx2 s[8:9], s[0:1], 56")
        k("s_cmp_ge_u32 s2, 64")
        k(f"s_cbranch_scc1 {label + '_tlb' if tlb else END}")
        k("s_lshl_b32 s21, s2, 2")
        k("s_add_u32 s21, s21, s24")
        k("s_sub_u32 s21, s21, 4")
        k("s_lshl_b32 s21, s21, 10")
    k(f"s_add_u32 s21, s21, {WS_FL}")
    k("v_and_b32 v1, 63, v0")
    k("v_lshlrev_b32 v1, 4, v1")
    for z in range(4): k(f"v_mov_b32 v{4+z}, 0")
    k("s_waitcnt lgkmcnt(0)")
    k.srd(12, 6, WS_END)
    if f2:
        nn = k.newlab("nonn")
        k(f"s_cmp_lg_u32 s21, {WS_FL}")
        k(f"s_cbranch_scc1 {nn}")
        k.srd(36, 42, 256)
        k(f"s_mov_b32 s22, {WS_NONCE}")
        k("buffer_load_dword v8, off, s[12:15], s22 sc1")
        k("s_waitcnt vmcnt(0)")
        k("v_add_u32 v8, 1, v8")
        k("v_or_b32 v8, 0x80000000, v8")
        k("s_mov_b64 exec, 1")
        k("buffer_store_dword v8, off, s[36:39], 0 sc1")
        k("buffer_store_dword v8, off, s[12:15], s22 sc1")
        k("s_mov_b64 exec, -1")
        k.lab(nn)
    for z in range(4 if prep else 1):
        k(f"buffer_store_dwordx4 v[4:7], v1, s[12:15], s21 offen offset:{1024*z}")
    if tlb and not prep:
        k.lab(f"{label}_tlb")
        k("s_waitcnt lgkmcnt(0)")
        k.srd(16, 6, WS_END)
        k.srd(28, 8, 2621440)
        k("s_lshr_b32 s21, s2, 3")
        k("s_lshl_b32 s21, s21, 2")
        k("s_add_u32 s21, s21, s24")
        k("s_sub_u32 s21, s21, 4")
        k("s_lshl_b32 s21, s21, 6")
        k("v_and_b32 v1, 63, v0")
        k("v_add_u32 v1, s21, v1")
        k(f"v_lshlrev_b32 v1, {tlb}, v1")
        k("buffer_load_dword v8, v1, s[16:19], 0 offen")
        k("buffer_load_dword v9, v1, s[28:31], 0 offen")
    if f2 >= 3:
        k.lab(f"{label}_pw")
        k("s_barrier")
        prep_job(k, label, 0, END, NW=8, wsub=0, NI=2)
    elif prep:
        k("s_endpgm")
        k.lab(f"{label}_prep")
        prep_job(k, label, 0, END, NW=4, wsub=4)
    k.lab(END)
    k("s_endpgm")
    return k
if __name__ == "__main__":
    build([make_k1()], "k1.s")
```

```python
from gl import *
WS_PT = 0x000000
WS_WT = 0x280000
WS_UT = 0x500000
WS_HC = 0x780000
WS_HF = 0xA00000
WS_MS = 0x1000000
WS_WA = 0x1100000
WS_WB = 0x1500000
WS_SQ = 0x1080000
WS_FL = 0x1700000
WS_FL2 = 0x1720000
WS_FL3 = 0x1740000
WS_NONCE = 0x175F000
WS_FL4 = 0x1760000
WS_FL5 = 0x1790000
WS_END = 0x17A0000
class Cap:
    def __init__(self): self.L = []
    def __call__(self, t):
        for ln in t.strip('\n').split('\n'): self.L.append(ln.strip())
class Alloc:
    def __init__(self, start=0): self.n = start
    def __call__(self, cnt=1, align=1):
        self.n = (self.n + align - 1) // align * align
        r = self.n; self.n += cnt
        return r
def gen_cos_seq(k, dst0, ndw, T, c2, rev0_expr_regs, step, seed_every):
    pass
def cos_block(k, dst0, ndw, vrev, vdl, c2, t, halve_last=False, nopk=False):
    P = [t, t+2, t+4]; sc = t+6
    k(f"v_add_f32 v{sc}, v{vrev}, v{vdl}")
    k(f"v_cos_f32 v{P[0]}, v{vrev}")
    k(f"v_cos_f32 v{P[0]+1}, v{sc}")
    k(f"v_add_f32 v{sc+1}, v{sc}, v{vdl}")
    k(f"v_add_f32 v{sc}, v{sc+1}, v{vdl}")
    k(f"v_cos_f32 v{P[1]}, v{sc+1}")
    k(f"v_cos_f32 v{P[1]+1}, v{sc}")
    k(f"v_cvt_pk_bf16_f32 v{dst0}, v{P[0]}, v{P[0]+1}")
    k(f"s_nop 0")
    k(f"v_cvt_pk_bf16_f32 v{dst0+1}, v{P[1]}, v{P[1]+1}")
    a_, b_, c_ = 0, 1, 2
    for i in range(2, ndw):
        if nopk:
            for z in range(2): k(f"v_fma_f32 v{P[c_]+z}, v{c2}, v{P[b_]+z}, -v{P[a_]+z}")
        else:
            k(f"v_pk_fma_f32 v[{P[c_]}:{P[c_]+1}], v[{c2}:{c2+1}], v[{P[b_]}:{P[b_]+1}], v[{P[a_]}:{P[a_]+1}] op_sel_hi:[0,1,1] neg_lo:[0,0,1] neg_hi:[0,0,1]")
        if halve_last and i == ndw-1:
            k(f"v_mul_f32 v{P[c_]+1}, 0.5, v{P[c_]+1}")
        k(f"v_cvt_pk_bf16_f32 v{dst0+i}, v{P[c_]}, v{P[c_]+1}")
        a_, b_, c_ = b_, c_, a_

def wg_rowcol5(k, srow, scol, sid=2):
    k(f"s_and_b32 s22, s{sid}, 7")
    k(f"s_lshr_b32 s23, s{sid}, 3")
    k(f"s_mul_i32 s24, s23, 52")
    k(f"s_lshr_b32 s24, s24, 8")
    k(f"s_mul_i32 s25, s24, 5")
    k(f"s_sub_u32 s{scol}, s23, s25")
    k(f"s_lshl_b32 s24, s24, 3")
    k(f"s_add_u32 s{srow}, s24, s22")

def prep_job(k, label, nbase, END, NW=4, wsub=0, NI=None, NEXT=None):
    W2 = f"{label}_w2"
    k("s_load_dwordx2 s[32:33], s[0:1], 32")
    k("s_load_dwordx2 s[34:35], s[0:1], 40")
    k("s_load_dwordx2 s[36:37], s[0:1], 48")
    k("s_load_dwordx2 s[38:39], s[0:1], 72")
    k("v_and_b32 v1, 63, v0")
    k("v_lshrrev_b32 v2, 6, v0")
    k(f"s_sub_u32 s16, s2, {nbase}")
    k("v_readfirstlane_b32 s17, v2")
    if wsub: k(f"s_sub_u32 s17, s17, {wsub}")
    NI = NI or 16 // NW
    nWG = 1440 // (NW*NI); nWA = nWG*2//3
    k(f"s_cmp_ge_u32 s16, {nWG}")
    k(f"s_cbranch_scc1 {END}")
    LG = {4: 2, 8: 3}[NW]; LI = {4: 2, 2: 1, 1: 0}[NI]
    k(f"s_lshl_b32 s18, s16, {LG}")
    k("s_add_u32 s18, s18, s17")
    k(f"s_lshl_b32 s19, s17, {12+LI}")
    k("v_bfe_u32 v3, v1, 2, 2")
    k("v_and_b32 v4, 3, v1")
    k("v_lshrrev_b32 v5, 4, v1")
    k("v_lshlrev_b32 v10, 4, v1")
    k(f"s_cmp_ge_u32 s16, {nWA}")
    k(f"s_cbranch_scc1 {W2}")
    k("s_mul_i32 s20, s18, 2731")
    k("s_lshr_b32 s20, s20, 16")
    k("s_mul_i32 s21, s20, 24")
    k("s_sub_u32 s21, s18, s21")
    k("v_lshrrev_b32 v6, 3, v1")
    k("v_mul_u32_u24 v6, 3072, v6")
    k("v_and_b32 v7, 7, v1")
    k("v_lshl_add_u32 v6, v7, 4, v6")
    k("s_mul_i32 s22, s20, %d" % (16*NI*3072))
    k("s_lshl_b32 s23, s21, 7")
    k("s_add_u32 s22, s22, s23")
    k("s_waitcnt lgkmcnt(0)")
    k.srd(8, 32, 1966080); k.srd(12, 34, 1966080); k.srd(40, 38, WS_END)
    for i in range(NI):
        for mtx in range(2):
            for hh in range(2):
                k(f"s_add_u32 m0, s19, {i*4096 + mtx*2048 + hh*1024}")
                k(f"s_add_u32 s24, s22, {(16*i + 8*hh)*3072}")
                k(f"buffer_load_dwordx4 v6, s[{8+4*mtx}:{11+4*mtx}], s24 offen lds")
    k.stamp(0)
    k("v_and_b32 v7, 1, v5")
    k("v_lshlrev_b32 v7, 11, v7")
    k("v_lshrrev_b32 v8, 1, v5")
    k("v_lshl_add_u32 v7, v8, 10, v7")
    k("v_lshl_add_u32 v7, v3, 7, v7")
    k("v_and_b32 v8, 1, v4")
    k("v_lshlrev_b32 v8, 1, v8")
    k("v_lshrrev_b32 v9, 1, v4")
    k("v_or_b32 v8, v8, v9")
    k("v_lshl_add_u32 v7, v8, 3, v7")
    k("v_add_u32 v7, s19, v7")
    for i in range(NI):
        if i == 0:
            k("s_waitcnt vmcnt(0)"); k.stamp(1)
        for mt in range(4):
            b = 12 + 4*mt + 16*(i & 1)
            for z in range(2):
                k(f"ds_read_b64_tr_b16 v[{b+2*z}:{b+2*z+1}], v7 offset:{i*4096 + z*512 + mt*32}")
        for mt in range(4):
            b = 12 + 4*mt + 16*(i & 1)
            k("s_lshl_b32 s24, s21, 2")
            k(f"s_add_u32 s24, s24, {mt}")
            k("s_mul_i32 s25, s24, 43")
            k("s_lshr_b32 s25, s25, 8")
            k("s_mul_i32 s26, s25, 6")
            k("s_sub_u32 s24, s24, s26")
            k("s_mul_i32 s25, s25, 40")
            k(f"s_lshl_b32 s26, s20, {LI}")
            k("s_add_u32 s25, s25, s26")
            k(f"s_add_u32 s25, s25, {i}")
            k("s_mul_i32 s25, s25, 6")
            k("s_add_u32 s25, s25, s24")
            k("s_lshl_b32 s25, s25, 10")
            k(f"s_add_u32 s25, s25, {WS_WA}")
            k(f"s_waitcnt lgkmcnt({6-2*mt})")
            k(f"buffer_store_dwordx4 v[{b}:{b+3}], v10, s[40:43], s25 offen{' sc1' if NEXT else ''}")
    k.stamp(3)
    k(f"s_branch {NEXT}" if NEXT else "s_endpgm")
    k.lab(W2)
    k(f"s_sub_u32 s18, s18, {nWA*NW}")
    k("s_mul_i32 s20, s18, 205")
    k("s_lshr_b32 s20, s20, 11")
    k("s_mul_i32 s21, s20, 10")
    k("s_sub_u32 s21, s18, s21")
    k("v_lshrrev_b32 v6, 3, v1")
    k("v_mul_u32_u24 v6, 1280, v6")
    k("v_and_b32 v7, 7, v1")
    k("v_lshl_add_u32 v6, v7, 4, v6")
    k("s_mul_i32 s22, s20, %d" % (32*NI*1280))
    k("s_lshl_b32 s23, s21, 7")
    k("s_add_u32 s22, s22, s23")
    k("s_waitcnt lgkmcnt(0)")
    k.srd(8, 36, 1966080); k.srd(40, 38, WS_END)
    for i in range(NI):
        for q in range(4):
            k(f"s_add_u32 m0, s19, {i*4096 + q*1024}")
            k(f"s_add_u32 s24, s22, {(32*i + 8*q)*1280}")
            k(f"buffer_load_dwordx4 v6, s[8:11], s24 offen lds")
    k("v_lshlrev_b32 v7, 10, v5")
    k("v_lshl_add_u32 v7, v3, 7, v7")
    k("v_lshl_add_u32 v7, v4, 3, v7")
    k("v_add_u32 v7, s19, v7")
    k("s_waitcnt vmcnt(0)")
    k(f"s_mul_i32 s24, s20, {40*NI}")
    k("s_lshl_b32 s25, s21, 2")
    k("s_add_u32 s24, s24, s25")
    k("s_lshl_b32 s24, s24, 10")
    k(f"s_add_u32 s24, s24, {WS_WB}")
    for i in range(NI):
        for mt in range(4):
            b = 12 + 4*mt + 16*(i & 1)
            for z in range(2):
                k(f"ds_read_b64_tr_b16 v[{b+2*z}:{b+2*z+1}], v7 offset:{i*4096 + z*512 + mt*32}")
        for mt in range(4):
            b = 12 + 4*mt + 16*(i & 1)
            k(f"s_add_u32 s25, s24, {(i*40 + mt)*1024}")
            k(f"s_waitcnt lgkmcnt({6-2*mt})")
            k(f"buffer_store_dwordx4 v[{b}:{b+3}], v10, s[40:43], s25 offen{' sc1' if NEXT else ''}")
    k(f"s_branch {NEXT}" if NEXT else "s_endpgm")


class VM:
    def __init__(self, k): self.k = k; self.ops = []
    def issue(self, txt, tag):
        self.k(txt); self.ops.append(tag)
    def cnt(self, tag):
        idx = [i for i, t in enumerate(self.ops) if t == tag]
        assert idx, tag
        return len(self.ops) - 1 - idx[-1]
    def wait(self, tag):
        n = self.cnt(tag); assert n <= 63, (tag, n)
        self.k(f"s_waitcnt vmcnt({n})")

def interleave(k, main, fill, per=None, start=0):
    n = len(main); m = len(fill)
    if per is None:
        per = [0]*n
        for j in range(m): per[start + (j*(n-start))//m] += 1
    j = 0
    for i, t in enumerate(main):
        k(t)
        for _ in range(per[i]):
            if j < m:
                f = fill[j]; j += 1
                if callable(f): f()
                else: k(f)
    while j < m:
        f = fill[j]; j += 1
        if callable(f): f()
        else: k(f)

def get_nonce(k, vx, SPIN=20000):
    lp = k.newlab("nlp"); dn = k.newlab("ndn")
    k(f"s_mov_b32 s47, {SPIN}")
    k.lab(lp)
    k(f"buffer_load_dword v{vx}, off, s[36:39], 0 sc1")
    k("s_waitcnt vmcnt(0)")
    k(f"v_readfirstlane_b32 s46, v{vx}")
    k("s_sub_u32 s47, s47, 1")
    k("s_cmp_eq_u32 s47, 0")
    k(f"s_cbranch_scc1 {dn}")
    k("s_cmp_eq_u32 s46, 0")
    k(f"s_cbranch_scc1 {lp}")
    k.lab(dn)
def put_flag(k, vx, sline):
    k(f"v_mov_b32 v{vx}, s46")
    k("s_mov_b64 exec, 1")
    k(f"buffer_store_dword v{vx}, off, s[12:15], s{sline} sc1")
    k("s_mov_b64 exec, -1")

def poll_lines(k, vaddrs, vdst, srd, soff, sn, SPIN=20000):
    lp = k.newlab("poll"); dn = k.newlab("got")
    k(f"s_mov_b32 s57, {SPIN}")
    k.lab(lp)
    for a, d in zip(vaddrs, vdst): k(f"buffer_load_dword v{d}, v{a}, s[{srd}:{srd+3}], s{soff} offen sc1")
    k("s_sub_u32 s57, s57, 1")
    k("s_cmp_eq_u32 s57, 0")
    k(f"s_cbranch_scc1 {dn}")
    k("s_waitcnt vmcnt(0)")
    k(f"v_cmp_ne_u32 vcc, s{sn}, v{vdst[0]}")
    for d in vdst[1:]:
        k("s_mov_b64 s[76:77], vcc")
        k(f"v_cmp_ne_u32 vcc, s{sn}, v{d}")
        k("s_or_b64 vcc, vcc, s[76:77]")
    k("s_cmp_lg_u64 vcc, 0")
    k(f"s_cbranch_scc1 {lp}")
    k.lab(dn)
    k("s_waitcnt vmcnt(0)")
```

```python
from common import *
def make_k1(label="k1_kernel", var="", pf=1, nxt=None, SPL=(3,4,4,4,5), prep=0, wpf=0, tlb=0, f2=0, gfirst=0, k45kw=None):
    NSD = 96 if prep else 80
    LB2 = 81920+2048+1024
    k = Kern(label, grid=160+NSD, block=512, lds=LB2 + (32768 if f2 else 0), vgpr=248)
    K2E = f"{label}_k2e"; K345E = f"{label}_k345e"
    sc = " sc1" if f2 else ""
    _stamp = k.stamp
    if f2: assert prep; k.stamp = lambda n: None
    END = f"{label}_end"; SIDE = f"{label}_side"; PROD = f"{label}_prod"
    k(f"s_cmp_ge_u32 s2, {160+NSD}")
    k(f"s_cbranch_scc1 {END}")
    if gfirst:
        k(f"s_add_u32 s2, s2, {NSD}")
        k("s_and_b32 s2, s2, 255")
    k("s_load_dwordx2 s[4:5], s[0:1], 0")
    k("s_load_dwordx2 s[6:7], s[0:1], 72")
    if f2: k("s_load_dwordx2 s[42:43], s[0:1], 64")
    if pf: k.prefetch(nxt=nxt, shift=(7 if f2 >= 6 else 6) if f2 else None, regs=(254, 255) if f2 >= 6 else None)
    k(f"s_cmp_lt_u32 s2, {NSD}")
    k(f"s_cbranch_scc1 {SIDE}")
    RS = 81920
    A = Alloc(1)
    vlane = A(); vt0 = A(); vt1 = A()
    vard = A(8)
    vst = A()
    vrev = A(); vdl = A(); vstep = A(); vc2 = A(2, 2); vtmp = A(8, 2)
    vfa = A(24, 4)
    vacc = A(32, 4)
    vF = A(160, 4)
    assert A.n <= 254, A.n
    sw, srow, scol, sso, sm0 = 16, 17, 18, 19, 20
    k(f"v_and_b32 v{vlane}, 63, v0")
    k(f"v_lshrrev_b32 v{vt0}, 6, v0")
    k(f"s_and_b32 s22, s2, 7")
    k(f"s_lshr_b32 s23, s2, 3")
    k(f"s_sub_u32 s23, s23, {NSD//8}")
    k(f"v_readfirstlane_b32 s21, v{vt0}")
    k(f"s_mul_i32 s24, s23, 52")
    k(f"s_lshr_b32 s24, s24, 8")
    k(f"s_mul_i32 s25, s24, 5")
    k(f"s_sub_u32 s{scol}, s23, s25")
    k(f"s_lshl_b32 s24, s24, 3")
    k(f"s_add_u32 s{srow}, s24, s22")
    k(f"s_and_b32 s{sw}, s21, 3")
    k("s_cmp_ge_u32 s21, 4")
    k(f"s_cbranch_scc1 {PROD}")
    k(f"s_lshl_b32 s22, s{scol}, 2")
    k(f"s_add_u32 s22, s22, s{sw}")
    k(f"s_lshl_b32 s22, s22, 4")
    k(f"s_add_u32 s22, s22, 1")
    k(f"v_and_b32 v{vt0}, 15, v{vlane}")
    k(f"v_add_u32 v{vt0}, s22, v{vt0}")
    k(f"v_cvt_f32_u32 v{vtmp}, v{vt0}")
    k(f"v_bfe_u32 v{vt1}, v{vlane}, 4, 1")
    k(f"v_lshl_add_u32 v{vst}, v{vt0}, 1, v{vt1}")
    k(f"v_lshlrev_b32 v{vst}, 12, v{vst}")
    k(f"v_subrev_u32 v{vst}, {2*4096}, v{vst}")
    k(f"v_cvt_f32_u32 v{vtmp+1}, v{vt1}")
    k(f"v_lshrrev_b32 v{vt1}, 5, v{vlane}")
    k(f"v_lshl_add_u32 v{vst}, v{vt1}, 4, v{vst}")
    k(f"v_cvt_f32_u32 v{vtmp+2}, v{vt1}")
    k(f"v_mul_f32 v{vdl}, {fh(1/640)}, v{vtmp}")
    k(f"v_mul_f32 v{vrev}, v{vtmp+2}, v{vtmp}")
    k(f"v_mul_f32 v{vrev}, 0.5, v{vrev}")
    k(f"v_mul_f32 v{vtmp+1}, {fh(0.25)}, v{vtmp+1}")
    k(f"v_add_f32 v{vrev}, v{vrev}, v{vtmp+1}")
    k(f"v_fract_f32 v{vrev}, v{vrev}")
    k(f"v_mul_f32 v{vstep}, {fh(1/16)}, v{vtmp}")
    k(f"v_fract_f32 v{vstep}, v{vstep}")
    k(f"v_add_f32 v{vtmp}, v{vdl}, v{vdl}")
    k(f"v_cos_f32 v{vc2}, v{vtmp}")
    k("s_nop 0")
    k(f"v_add_f32 v{vc2}, v{vc2}, v{vc2}")
    for b in range(8):
        cos_block(k, vF + 20*b, 20, vrev, vdl, vc2, vtmp)
        if b < 7:
            k(f"v_add_f32 v{vrev}, v{vrev}, v{vstep}")
            k(f"v_fract_f32 v{vrev}, v{vrev}")
    k(f"v_and_b32 v{vt0}, 19, v{vlane}")
    k(f"v_bfe_u32 v{vt1}, v{vlane}, 2, 1")
    k(f"v_lshl_or_b32 v{vt0}, v{vt1}, 3, v{vt0}")
    k(f"v_bfe_u32 v{vt1}, v{vlane}, 3, 1")
    k(f"v_lshl_or_b32 v{vt0}, v{vt1}, 2, v{vt0}")
    k(f"v_bfe_u32 v{vt1}, v{vt0}, 1, 3")
    k(f"v_lshlrev_b32 v{vt1}, 4, v{vt1}")
    k(f"v_lshl_or_b32 v{vt1}, v{vt0}, 7, v{vt1}")
    k(f"v_lshrrev_b32 v{vtmp}, 5, v{vlane}")
    k(f"v_mul_u32_u24 v{vtmp}, {5*8192}, v{vtmp}")
    k(f"v_add_u32 v{vard}, v{vt1}, v{vtmp}")
    for u in range(1, 8):
        k(f"v_xor_b32 v{vard+u}, {u<<4}, v{vard}")
    k("s_waitcnt lgkmcnt(0)")
    k.srd(12, 6, WS_END)
    if 'clk' not in var: k.stamp(0)
    def rd(kk):
        p, u = kk // 8, kk % 8
        sl = kk % 3
        for t in range(2):
            k(f"ds_read_b128 v[{vfa+sl*8+t*4}:{vfa+sl*8+t*4+3}], v{vard+u} offset:{p*8192 + t*4096}")
    k("s_barrier")
    if 'clk' in var: k.stamp(10)
    k.stamp(2)
    rd(0); rd(1)
    if f2 >= 5: k.srd(36, 42, 256)
    for kk in range(40):
        if f2 >= 5 and kk == 28: k(f"buffer_load_dword v{vt0}, off, s[36:39], 0 sc1")
        nk = kk + 2
        if nk < 40:
            if nk % 8 == 0: k("s_barrier")
            rd(nk)
            k(f"s_waitcnt lgkmcnt(4)")
        elif nk == 40: k(f"s_waitcnt lgkmcnt(2)")
        else: k("s_waitcnt lgkmcnt(0)")
        sl = kk % 3
        for t in range(2):
            fa = vfa + sl*8 + t*4
            cs = f"v[{vacc+16*t}:{vacc+16*t+15}]" if kk else "0"
            k(f"v_mfma_f32_32x32x16_bf16 v[{vacc+16*t}:{vacc+16*t+15}], v[{fa}:{fa+3}], v[{vF+4*kk}:{vF+4*kk+3}], {cs}")
    k.stamp(3)
    if 'clk' in var: k.stamp(11)
    k(f"v_lshrrev_b32 v{vt1}, 5, v{vlane}")
    k(f"v_lshlrev_b32 v{vt1}, 5, v{vt1}")
    k(f"v_add_u32 v{vt1}, {RS}, v{vt1}")
    k(f"s_lshl_b32 s22, s{srow}, 7")
    k(f"s_add_u32 s22, s22, {WS_PT}")
    k("s_barrier")
    vr = vF
    for t in range(2):
        for q in range(2):
            for z in range(2):
                b = vr + 16*t + 8*q + 4*z
                k(f"ds_read_b128 v[{b}:{b+3}], v{vt1} offset:{128*t + 64*q + 16*z}")
    vo = vF + 32
    vx = vF + 80
    if f2 >= 4:
        k(f"v_and_b32 v{vx}, 31, v{vlane}")
        k(f"v_lshrrev_b32 v{vx+1}, 5, v{vlane}")
        k(f"v_and_b32 v{vx+2}, 7, v{vlane}")
        k(f"v_xor_b32 v{vx+1}, v{vx+1}, v{vx+2}")
        k(f"v_lshlrev_b32 v{vx+1}, 4, v{vx+1}")
        k(f"v_lshl_add_u32 v{vx}, v{vx}, 7, v{vx+1}")
        k(f"s_lshl_b32 s23, s{sw}, 12")
        k(f"v_add_u32 v{vx}, s23, v{vx}")
        k(f"v_lshrrev_b32 v{vx+5}, 3, v{vlane}")
        k(f"v_xor_b32 v{vx+4}, v{vx+5}, v{vx+2}")
        k(f"v_lshlrev_b32 v{vx+4}, 4, v{vx+4}")
        k(f"v_lshl_add_u32 v{vx+4}, v{vx+5}, 7, v{vx+4}")
        k(f"v_add_u32 v{vx+4}, s23, v{vx+4}")
        for z in range(1, 4): k(f"v_xor_b32 v{vx+z}, {32*z}, v{vx}")
        k(f"s_lshl_b32 s23, s{scol}, 2")
        k(f"s_add_u32 s23, s23, s{sw}")
        k("s_lshl_b32 s23, s23, 4")
        k(f"v_add_u32 v{vx+5}, s23, v{vx+5}")
        k(f"v_lshlrev_b32 v{vx+5}, 13, v{vx+5}")
        k(f"v_and_b32 v{vx+6}, 7, v{vlane}")
        k(f"v_lshl_add_u32 v{vx+5}, v{vx+6}, 4, v{vx+5}")
    for t in range(2):
        for q in range(2):
            b = 16*t + 8*q
            k(f"s_waitcnt lgkmcnt({6 - 2*(2*t+q)})")
            for z in range(4):
                k(f"v_pk_mul_f32 v[{vacc+b+2*z}:{vacc+b+2*z+1}], v[{vacc+b+2*z}:{vacc+b+2*z+1}], v[{vr+b+2*z}:{vr+b+2*z+1}]")
            ob = vo + 4*(2*t+q)
            for z in range(4):
                k(f"v_cvt_pk_bf16_f32 v{ob+z}, v{vacc+b+2*z}, v{vacc+b+2*z+1}")
            if f2 >= 4: k(f"ds_write_b128 v{vx+2*t+q}, v[{ob}:{ob+3}]")
            else: k(f"buffer_store_dwordx4 v[{ob}:{ob+3}], v{vst}, s[12:15], s22 offen offset:{64*t+32*q}{sc}")
    if f2 >= 4:
        k("s_waitcnt lgkmcnt(0)")
        for j in range(4): k(f"ds_read_b128 v[{vo+16+4*j}:{vo+19+4*j}], v{vx+4} offset:{1024*j}")
        for j in range(4):
            k(f"s_add_u32 s23, s22, {(j&1)*8*8192 + (j>>1)*4096}")
            k(f"s_waitcnt lgkmcnt({3-j})")
            k(f"buffer_store_dwordx4 v[{vo+16+4*j}:{vo+19+4*j}], v{vx+5}, s[12:15], s23 offen sc1")
    if f2:
        k(f"s_lshl_b32 s40, s{scol}, 2")
        k(f"s_add_u32 s40, s40, s{sw}")
        k("s_lshl_b32 s40, s40, 5")
        k(f"s_add_u32 s40, s40, s{srow}")
        k("s_lshl_b32 s40, s40, 7")
        k(f"s_add_u32 s40, s40, {WS_FL3}")
        if f2 >= 5:
            hv = k.newlab("have")
            k("s_waitcnt vmcnt(0)")
            k(f"v_readfirstlane_b32 s46, v{vt0}")
            k("s_cmp_lg_u32 s46, 0")
            k(f"s_cbranch_scc1 {hv}")
            get_nonce(k, vt0)
            k.lab(hv)
            put_flag(k, vt0, 40)
        k(f"s_branch {K2E}")
    else: k("s_endpgm")
    k.vgpr = A.n
    k.lab(PROD)
    B = Alloc(vt1 + 1)
    vdma = B(2); vsa = B(2); vs2 = B(8, 2); vsb = B(16, 4); vun = B(4, 2); vsum = B(4, 2); vq = B(2); vpfa = B(); vpfd = B()
    if wpf:
        k("s_load_dwordx4 s[44:47], s[0:1], 32")
        k("s_load_dwordx2 s[48:49], s[0:1], 48")
    k(f"v_lshrrev_b32 v{vt0}, 3, v{vlane}")
    k(f"v_mul_u32_u24 v{vt0}, 1280, v{vt0}")
    k(f"v_lshrrev_b32 v{vt1}, 4, v{vlane}")
    k(f"v_xor_b32 v{vt1}, v{vt1}, v{vlane}")
    k(f"v_and_b32 v{vt1}, 7, v{vt1}")
    k(f"v_lshl_add_u32 v{vdma}, v{vt1}, 4, v{vt0}")
    k(f"v_xor_b32 v{vdma+1}, 64, v{vdma}")
    k(f"v_add_u32 v{vdma+1}, {8*1280}, v{vdma+1}")
    k(f"s_lshl_b32 s22, s{srow}, 2")
    k(f"s_add_u32 s22, s22, s{sw}")
    k(f"s_mul_i32 s{sso}, s22, {16*1280}")
    k(f"s_lshl_b32 s{sm0}, s{sw}, 11")
    k("s_waitcnt lgkmcnt(0)")
    k.srd(8, 4, 2621440)
    k.srd(12, 6, WS_END)
    order = [0,5,1,6,2,7,3,8,4,9]
    for c in order:
        for i in range(2):
            k(f"s_add_u32 m0, s{sm0}, {c*8192 + i*1024}")
            k(f"s_add_u32 s22, s{sso}, {c*128}")
            k(f"buffer_load_dwordx4 v{vdma+i}, s[8:11], s22 offen lds")
    def wtouch():
        for m in range(3): k.srd(64 + 4*m, 44 + 2*m, 1966080)
        k(f"s_sub_u32 s23, s2, {NSD}")
        k("s_lshl_b32 s23, s23, 2")
        k(f"s_add_u32 s23, s23, s{sw}")
        for m, sub in ((0, 0), (1, 240), (2, 480), (2, -160)):
            k(f"s_sub_u32 s22, s23, {sub}" if sub >= 0 else f"s_add_u32 s22, s23, {-sub}")
            k("s_lshl_b32 s22, s22, 13")
            k(f"v_lshlrev_b32 v{vpfa}, 7, v{vlane}")
            k(f"v_add_u32 v{vpfa}, s22, v{vpfa}")
            k(f"buffer_load_dword v{vpfd}, v{vpfa}, s[{64+4*m}:{67+4*m}], 0 offen")
    if wpf == 1: wtouch()
    if 'clk' not in var: k.stamp(0)
    for i in range(8): k(f"v_mov_b32 v{vs2+i}, 0")
    k(f"v_lshlrev_b32 v{vsa}, 4, v{vlane}")
    k(f"v_add_u32 v{vsa}, s{sm0}, v{vsa}")
    k(f"v_add_u32 v{vsa+1}, {5*8192}, v{vsa}")
    k("s_mov_b32 s21, 0xffff0000")
    def statrd(r):
        p, j = r // 4, r % 4
        b = vsb + 4*(r % 4)
        k(f"ds_read_b128 v[{b}:{b+3}], v{vsa+(j>>1)} offset:{p*8192 + (j&1)*1024}")
    def statproc(r):
        i = r & 1; b = vsb + 4*(r % 4)
        for q in range(4):
            u = vun + 2*(q & 1)
            k(f"v_lshlrev_b32 v{u}, 16, v{b+q}")
            k(f"v_and_b32 v{u+1}, s21, v{b+q}")
            k(f"v_add_f32 v{vs2+4*i}, v{vs2+4*i}, v{u}")
            k(f"v_fmac_f32 v{vs2+4*i+2}, v{u}, v{u}")
            k(f"v_add_f32 v{vs2+4*i+1}, v{vs2+4*i+1}, v{u+1}")
            k(f"v_fmac_f32 v{vs2+4*i+3}, v{u+1}, v{u+1}")
    r0 = 0
    for p in range(5):
        k(f"s_waitcnt vmcnt({16-4*p + (4 if wpf and p >= wpf - 1 else 0)})")
        k("s_barrier")
        if wpf >= 2 and p == wpf - 2: wtouch()
        if p == 0 and 'clk' not in var: k.stamp(1)
        rs = list(range(r0, r0 + SPL[p])); r0 += SPL[p]
        assert rs[-1] < 4*(p+1)
        todo = rs[:]
        first = todo[:4]
        for r in first: statrd(r)
        rest = todo[4:]
        for n, r in enumerate(first):
            k(f"s_waitcnt lgkmcnt({len(first)-1-n if not rest or n == 0 else min(len(first)-1-n + 1, 15)})" if False else f"s_waitcnt lgkmcnt({len(first)-1-n + (1 if rest and n >= 1 else 0)})")
            statproc(r)
            if n == 0 and rest: statrd(rest[0])
        for r in rest:
            k("s_waitcnt lgkmcnt(0)")
            statproc(r)
    assert r0 == 20
    for i in range(2):
        k(f"v_add_f32 v{vsum+2*i}, v{vs2+4*i}, v{vs2+4*i+1}")
        k(f"v_add_f32 v{vsum+2*i+1}, v{vs2+4*i+2}, v{vs2+4*i+3}")
    for dpp in ["quad_perm:[1,0,3,2]", "quad_perm:[2,3,0,1]", "row_half_mirror"]:
        k("s_nop 0")
        for q in range(4):
            k(f"v_add_f32_dpp v{vsum+q}, v{vsum+q}, v{vsum+q} {dpp} row_mask:0xf bank_mask:0xf")
    k(f"v_and_b32 v{vt1}, 1, v{vlane}")
    k(f"v_cmp_eq_u32 vcc, 1, v{vt1}")
    k(f"v_lshrrev_b32 v{vq}, 3, v{vlane}")
    k(f"v_lshl_add_u32 v{vq}, v{vt1}, 3, v{vq}")
    k(f"v_cndmask_b32 v{vsum}, v{vsum}, v{vsum+2}, vcc")
    k(f"v_cndmask_b32 v{vsum+1}, v{vsum+1}, v{vsum+3}, vcc")
    k(f"v_mul_f32 v{vsum}, {fh(1/640)}, v{vsum}")
    k(f"v_mul_f32 v{vsum+2}, v{vsum}, v{vsum}")
    k(f"v_mul_f32 v{vsum+1}, {fh(1/640)}, v{vsum+1}")
    k(f"v_sub_f32 v{vsum+1}, v{vsum+1}, v{vsum+2}")
    k(f"v_max_f32 v{vsum+1}, 0, v{vsum+1}")
    k(f"v_add_f32 v{vsum+1}, {fh(1e-5)}, v{vsum+1}")
    k(f"v_rsq_f32 v{vsum+1}, v{vsum+1}")
    k(f"s_lshl_b32 s22, s{sw}, 4")
    k(f"v_add_u32 v{vq}, s22, v{vq}")
    k(f"v_lshlrev_b32 v{vq}, 2, v{vq}")
    k(f"v_add_u32 v{vq+1}, {RS}, v{vq}")
    k(f"ds_write_b32 v{vq+1}, v{vsum+1}")
    skip = k.newlab()
    k(f"s_cmp_lg_u32 s{scol}, 0")
    k(f"s_cbranch_scc1 {skip}")
    k(f"s_lshl_b32 s22, s{srow}, 8")
    k(f"s_add_u32 s22, s22, {WS_MS}")
    k(f"buffer_store_dword v{vsum}, v{vq}, s[12:15], s22 offen{' sc1' if f2 >= 6 else ''}")
    k.lab(skip)
    if f2 >= 6: k("s_waitcnt vmcnt(0)")
    k("s_waitcnt lgkmcnt(0)")
    k("s_barrier")
    k.stamp(3)
    if f2:
        k.lab(K2E)
        if f2 < 6: k.stamp = _stamp
        k("v_lshrrev_b32 v1, 6, v0")
        k("s_nop 0")
        k("v_readfirstlane_b32 s44, v1")
        k.srd(36, 42, 256)
        k.srd(12, 6, WS_END)
        k.stamp(0)
        k("s_lshr_b32 s22, s44, 2")
        k(f"s_sub_u32 s27, s2, {NSD}")
        k("s_lshl_b32 s27, s27, 1")
        k("s_add_u32 s27, s27, s22")
        k("s_lshl_b32 s45, s22, 14")
        k(f"s_add_u32 s45, s45, {LB2}")
        def own_flag(t0):
            get_nonce(k, t0)
            nf = k.newlab("nofl")
            k("s_cmp_ge_u32 s44, 4")
            k(f"s_cbranch_scc1 {nf}")
            put_flag(k, t0, 40)
            k.lab(nf)
        if f2 >= 5:
            cs = k.newlab("cons")
            k("s_cmp_lt_u32 s44, 4")
            k(f"s_cbranch_scc1 {cs}")
            get_nonce(k, 1)
            k.lab(cs)
        elif f2 >= 2: own_flag(1)
        def hook(k, r):
            vl, t0, t1, t2, sw2 = r["vl"], r["t0"], r["t1"], r["t2"], r["sw"]
            if f2 == 1: own_flag(t0)
            k.stamp(1)
            k("s_lshr_b32 s28, s27, 4")
            k("s_lshl_b32 s28, s28, 5")
            k(f"s_and_b32 s29, s{sw2}, 1")
            k("s_lshl_b32 s29, s29, 4")
            k("s_add_u32 s28, s28, s29")
            k("s_lshr_b32 s29, s27, 5")
            k("s_lshl_b32 s29, s29, 3")
            k(f"s_lshl_b32 s30, s{sw2}, 1")
            k("s_add_u32 s29, s29, s30")
            k("s_lshl_b32 s29, s29, 2")
            k(f"s_add_u32 s29, s29, {640 - 16}")
            k(f"v_add_u32 v{t0}, s28, v{vl}")
            k(f"v_add_u32 v{t1}, s29, v{vl}")
            k(f"v_cmp_gt_u32 vcc, 16, v{vl}")
            k(f"v_cndmask_b32 v{t0}, v{t1}, v{t0}, vcc")
            k(f"v_mov_b32 v{t1}, s28")
            k(f"v_cmp_gt_u32 vcc, 24, v{vl}")
            k(f"v_cndmask_b32 v{t0}, v{t1}, v{t0}, vcc")
            k(f"v_lshlrev_b32 v{t0}, 7, v{t0}")
            k(f"s_mov_b32 s31, {WS_FL3}")
            lp = k.newlab("poll"); dn = k.newlab("got")
            k("s_mov_b32 s47, 20000")
            k.lab(lp)
            k(f"buffer_load_dword v{t1}, v{t0}, s[12:15], s31 offen sc1")
            k("s_sub_u32 s47, s47, 1")
            k("s_cmp_eq_u32 s47, 0")
            k(f"s_cbranch_scc1 {dn}")
            k("s_waitcnt vmcnt(0)")
            k(f"v_cmp_ne_u32 vcc, s46, v{t1}")
            k("s_cmp_lg_u64 vcc, 0")
            k(f"s_cbranch_scc1 {lp}")
            k.lab(dn)
            k("s_waitcnt vmcnt(0)")
        from k2 import make_k2
        def tail(k, r):
            k(f"s_mul_i32 s40, s{r['sw']}, 320")
            k("s_add_u32 s40, s40, s27")
            k("s_lshl_b32 s40, s40, 7")
            k(f"s_add_u32 s40, s40, {WS_FL4}")
            k("s_waitcnt vmcnt(0)")
            put_flag(k, r["t0"], 40)
            k("s_mov_b32 s78, s46")
            k("s_barrier")
            k(f"s_branch {K345E}")
        make_k2(kin=k, hook=hook, slb=45, tail=tail if f2 >= 6 else None)
        k.stamp = lambda n: None
    else: k("s_endpgm")
    k.lab(SIDE)
    if f2 < 6: k.stamp = _stamp
    k("v_lshrrev_b32 v1, 6, v0")
    k("s_nop 0")
    k("v_readfirstlane_b32 s24, v1")
    k("s_cmp_ge_u32 s24, 4")
    k(f"s_cbranch_scc1 {label + ('_pw' if f2 >= 3 else '_prep' if prep else '_clr')}")
    if prep:
        k("s_cmp_ge_u32 s2, 80")
        k(f"s_cbranch_scc1 {label}_clr")
    k("s_load_dwordx2 s[32:33], s[0:1], 8")
    k("s_load_dwordx2 s[16:17], s[0:1], 16")
    k("s_mul_i32 s21, s2, 205")
    k("s_lshr_b32 s21, s21, 11")
    k("s_mul_i32 s22, s21, 10")
    k("s_sub_u32 s22, s2, s22")
    k("s_lshr_b32 s23, s21, 1")
    k("s_lshl_b32 s23, s23, 4")
    k("s_and_b32 s25, s21, 1")
    k("s_lshl_b32 s25, s25, 10")
    k("s_add_u32 s23, s23, s25")
    k("s_lshl_b32 s25, s24, 8")
    k("s_add_u32 s23, s23, s25")
    k("v_bfe_u32 v2, v0, 2, 4")
    k("v_add_u32 v1, s23, v2")
    k("v_mul_u32_u24 v1, 642, v1")
    k("v_and_b32 v3, 3, v0")
    k("v_lshl_add_u32 v1, v3, 4, v1")
    k("s_lshl_b32 s25, s22, 6")
    k("s_add_u32 s25, s25, 2")
    k("v_lshlrev_b32 v3, 16, v3")
    k("v_lshl_add_u32 v2, v2, 4, v3")
    k("s_waitcnt lgkmcnt(0)")
    k.srd(8, 32, 1314816); k.srd(28, 16, 1314816); k.srd(12, 6, WS_END)
    for i in range(4):
        k(f"buffer_load_dwordx4 v[{4+4*i}:{7+4*i}], v1, s[8:11], s25 offen")
        k(f"buffer_load_dwordx4 v[{20+4*i}:{23+4*i}], v1, s[28:31], s25 offen")
        if i < 3: k(f"s_add_u32 s25, s25, {64*642}")
    k.stamp(0)
    k("s_mov_b32 s26, 0x05040100\ns_mov_b32 s27, 0x07060302")
    k("s_lshl_b32 s23, s22, 18")
    k("s_lshl_b32 s25, s21, 10")
    k("s_add_u32 s23, s23, s25")
    k("s_lshl_b32 s25, s24, 8")
    k("s_add_u32 s23, s23, s25")
    k(f"s_add_u32 s23, s23, {WS_WT}")
    k("s_waitcnt vmcnt(0)"); k.stamp(1)
    for z in range(8):
        d, hh = z // 2, z % 2
        o = 36 + 4*z
        for i in range(4):
            k(f"v_perm_b32 v{o+i}, v{20+4*i+d}, v{4+4*i+d}, s{26+hh}")
        k(f"buffer_store_dwordx4 v[{o}:{o+3}], v2, s[12:15], s23 offen{sc}")
        if z < 7: k("s_add_u32 s23, s23, 8192")
    k.stamp(3)
    if f2:
        k.srd(36, 42, 256)
        k("s_lshl_b32 s40, s22, 3")
        k("s_add_u32 s40, s40, s21")
        k("s_lshl_b32 s40, s40, 2")
        k("s_add_u32 s40, s40, s24")
        k("s_lshl_b32 s40, s40, 7")
        k(f"s_add_u32 s40, s40, {WS_FL3 + 640*128}")
        get_nonce(k, 1)
        put_flag(k, 1, 40)
        k.stamp(2)
    if f2 >= 3: k(f"s_branch {label}_pw")
    else: k("s_endpgm")
    k.lab(f"{label}_clr")
    k("s_load_dwordx2 s[6:7], s[0:1], 72")
    if prep:
        k("s_sub_u32 s21, s2, 80")
        k("s_lshl_b32 s21, s21, 2")
        k("s_add_u32 s21, s21, s24")
        k("s_lshl_b32 s21, s21, 12")
    else:
        if tlb: k("s_load_dwordx2 s[8:9], s[0:1], 56")
        k("s_cmp_ge_u32 s2, 64")
        k(f"s_cbranch_scc1 {label + '_tlb' if tlb else END}")
        k("s_lshl_b32 s21, s2, 2")
        k("s_add_u32 s21, s21, s24")
        k("s_sub_u32 s21, s21, 4")
        k("s_lshl_b32 s21, s21, 10")
    k(f"s_add_u32 s21, s21, {WS_FL}")
    k("v_and_b32 v1, 63, v0")
    k("v_lshlrev_b32 v1, 4, v1")
    for z in range(4): k(f"v_mov_b32 v{4+z}, 0")
    k("s_waitcnt lgkmcnt(0)")
    k.srd(12, 6, WS_END)
    if f2:
        nn = k.newlab("nonn")
        k(f"s_cmp_lg_u32 s21, {WS_FL}")
        k(f"s_cbranch_scc1 {nn}")
        k.srd(36, 42, 256)
        k(f"s_mov_b32 s22, {WS_NONCE}")
        k("buffer_load_dword v8, off, s[12:15], s22 sc1")
        k("s_waitcnt vmcnt(0)")
        k("v_add_u32 v8, 1, v8")
        k("v_or_b32 v8, 0x80000000, v8")
        k("s_mov_b64 exec, 1")
        k("buffer_store_dword v8, off, s[36:39], 0 sc1")
        k("buffer_store_dword v8, off, s[12:15], s22 sc1")
        k("s_mov_b64 exec, -1")
        k.lab(nn)
    for z in range(0 if f2 >= 6 else 4 if prep else 1):
        k(f"buffer_store_dwordx4 v[4:7], v1, s[12:15], s21 offen offset:{1024*z}")
    if tlb and not prep:
        k.lab(f"{label}_tlb")
        k("s_waitcnt lgkmcnt(0)")
        k.srd(16, 6, WS_END)
        k.srd(28, 8, 2621440)
        k("s_lshr_b32 s21, s2, 3")
        k("s_lshl_b32 s21, s21, 2")
        k("s_add_u32 s21, s21, s24")
        k("s_sub_u32 s21, s21, 4")
        k("s_lshl_b32 s21, s21, 6")
        k("v_and_b32 v1, 63, v0")
        k("v_add_u32 v1, s21, v1")
        k(f"v_lshlrev_b32 v1, {tlb}, v1")
        k("buffer_load_dword v8, v1, s[16:19], 0 offen")
        k("buffer_load_dword v9, v1, s[28:31], 0 offen")
    if f2 >= 3:
        k.lab(f"{label}_pw")
        if f2 >= 6:
            k("s_waitcnt lgkmcnt(0)")
            k.srd(36, 42, 256)
            get_nonce(k, 1)
            k("s_mov_b32 s78, s46")
        k("s_barrier")
        PD = f"{label}_pd"
        prep_job(k, label, 0, PD if f2 >= 6 else END, NW=8, wsub=0, NI=2, NEXT=PD if f2 >= 6 else None)
        if f2 >= 6:
            k.lab(PD)
            k("s_waitcnt vmcnt(0) lgkmcnt(0)")
            k("s_barrier")
            k("v_lshrrev_b32 v1, 6, v0")
            k("s_nop 0")
            k("v_readfirstlane_b32 s24, v1")
            k("s_cmp_ge_u32 s2, 90")
            k(f"s_cbranch_scc1 {K345E}")
            k("s_cmp_lg_u32 s24, 0")
            k(f"s_cbranch_scc1 {K345E}")
            k("s_load_dwordx2 s[6:7], s[0:1], 72")
            k("s_lshl_b32 s40, s2, 7")
            k(f"s_add_u32 s40, s40, {WS_FL5}")
            k("s_waitcnt lgkmcnt(0)")
            k.srd(12, 6, WS_END)
            put_flag(k, 1, 40)
            k.lab(K345E)
            k(f"s_sub_u32 s2, s2, {NSD}")
            k("s_and_b32 s2, s2, 255")
            k.stamp = _stamp
            from k45 import make_k45
            make_k45(label="k345", f3=1, kin=k, nonce=78, **(k45kw or {}))
            k.lds = 143360; k.vgpr = 256
    elif prep:
        k("s_endpgm")
        k.lab(f"{label}_prep")
        prep_job(k, label, 0, END, NW=4, wsub=4)
    k.lab(END)
    k("s_endpgm")
    return k
if __name__ == "__main__":
    build([make_k1()], "k1.s")
```

```python
from common import *
def make_k2(label="k2_kernel", pf=1, nxt=None, side=0, kin=None, hook=None, slb=45, tail=None):
    NI = 4 // side if side else 0; NSD = 90*side
    END = f"{label}_end"
    if kin is None:
        k = Kern(label, grid=320+NSD, block=256, lds=max(16384, 16384*NI), vgpr=200)
        k(f"s_cmp_ge_u32 s2, {320+NSD}")
        k(f"s_cbranch_scc1 {END}")
        k("s_load_dwordx2 s[6:7], s[0:1], 72")
        if pf: k.prefetch(nxt=nxt)
    else: k = kin
    if side:
        k(f"s_cmp_lt_u32 s2, {NSD}")
        k(f"s_cbranch_scc1 {label}_side")
    if kin is None: k(f"s_sub_u32 s27, s2, {NSD}")
    A = Alloc(1)
    vl = A(); vg = A(); v16 = A(); t0 = A(); t1 = A(); t2 = A()
    vA = A(2); vWr = A(2); vB = A(2); vSt = A()
    tf = A(8, 2)
    tg = A(8, 2)
    C64 = A(8, 4); S64 = A(8, 4); N64 = A(8, 4)
    C32 = A(8, 4); S32 = A(8, 4); N32 = A(8, 4)
    T1c = A(8, 2); T1s = A(8, 2); T2c = A(8, 2); T2s = A(8, 2)
    W = A(8, 4)
    FA = A(32, 4)
    AC = A(16, 4)
    AD = A(16, 4)
    Br = A(4, 4); Bi = A(4, 4)
    if kin is None: k.vgpr = A.n
    sw = 16
    k(f"v_and_b32 v{vl}, 63, v0")
    k(f"v_lshrrev_b32 v{t0}, 6, v0")
    if kin is not None: k(f"v_and_b32 v{t0}, 3, v{t0}")
    k(f"v_lshrrev_b32 v{vg}, 4, v{vl}")
    k(f"v_readfirstlane_b32 s{sw}, v{t0}")
    k(f"v_and_b32 v{v16}, 15, v{vl}")
    k(f"v_lshrrev_b32 v{t1}, 5, v{vl}")
    k(f"v_lshlrev_b32 v{t1}, 1, v{t1}")
    k(f"v_xor_b32 v{t1}, v{t1}, v{vl}")
    k(f"v_lshlrev_b32 v{t1}, 4, v{t1}")
    k(f"v_lshlrev_b32 v{t2}, 4, v{vl}")
    k(f"s_lshl_b32 s17, s{sw}, 11")
    k(f"s_lshl_b32 s18, s27, 13")
    k(f"s_add_u32 s19, s18, s17")
    k(f"s_add_u32 s20, s19, {WS_PT}")
    k(f"s_add_u32 s21, s19, {WS_WT}")
    def loads(va, vb):
        k(f"buffer_load_dwordx4 v{va}, s[8:11], s20 offen lds")
        k(f"buffer_load_dwordx4 v{va}, s[8:11], s20 offen offset:1024 lds")
        k(f"buffer_load_dwordx4 v[{W}:{W+3}], v{vb}, s[8:11], s21 offen")
        k(f"buffer_load_dwordx4 v[{W+4}:{W+7}], v{vb}, s[8:11], s21 offen offset:1024")
    if kin is None:
        k(f"s_mov_b32 m0, s17")
        k("s_waitcnt lgkmcnt(0)")
        k.srd(8, 6, WS_END)
        loads(t1, t2)
    else:
        vd0 = AD; vd1 = AD + 1
        k(f"s_add_u32 s17, s17, s{slb}")
        k(f"s_mov_b32 m0, s17")
        k.srd(8, 6, WS_END)
        k(f"v_mov_b32 v{vd0}, v{t1}")
        k(f"v_mov_b32 v{vd1}, v{t2}")
    if kin is None: k.stamp(0)
    k(f"s_lshl_b32 s22, s{sw}, 4")
    k(f"v_add_u32 v{t0}, s22, v{v16}")
    k(f"v_cvt_f32_u32 v{tg}, v{t0}")
    k(f"v_cvt_f32_u32 v{tg+1}, v{vg}")
    k(f"v_cvt_f32_u32 v{tg+2}, v{v16}")
    k(f"v_lshlrev_b32 v{t0}, 31, v{v16}")
    k(f"v_lshrrev_b32 v{t1}, 16, v{t0}")
    k(f"v_or_b32 v{t0}, v{t0}, v{t1}")
    vsm = t0
    k(f"v_mul_f32 v{tg+3}, {fh(1/64)}, v{tg}")
    k(f"v_mul_f32 v{tf}, v{tg}, v{tg+1}")
    k(f"v_mul_f32 v{tf}, {fh(1/8)}, v{tf}")
    for j in range(1, 8): k(f"v_add_f32 v{tf+j}, v{tf+j-1}, v{tg+3}")
    for j in range(8): k(f"v_cos_f32 v{FA+j}, v{tf+j}")
    for j in range(8): k(f"v_sin_f32 v{FA+8+j}, v{tf+j}")
    for z in range(4): k(f"v_cvt_pk_bf16_f32 v{C64+z}, v{FA+2*z}, v{FA+2*z+1}")
    for z in range(4): k(f"v_cvt_pk_bf16_f32 v{S64+z}, v{FA+8+2*z}, v{FA+8+2*z+1}")
    k(f"s_mov_b32 s23, 0x80008000")
    for z in range(4):
        k(f"v_xor_b32 v{C64+4+z}, v{vsm}, v{C64+z}")
        k(f"v_xor_b32 v{S64+4+z}, v{vsm}, v{S64+z}")
    for z in range(8): k(f"v_xor_b32 v{N64+z}, s23, v{S64+z}")
    k(f"v_mul_f32 v{tg+3}, {fh(1/32)}, v{tg+2}")
    k(f"v_mul_f32 v{tf}, v{tg+2}, v{tg+1}")
    k(f"v_mul_f32 v{tf}, {fh(1/8)}, v{tf}")
    for j in range(1, 4): k(f"v_add_f32 v{tf+j}, v{tf+j-1}, v{tg+3}")
    for j in range(4): k(f"v_cos_f32 v{FA+j}, v{tf+j}")
    for j in range(4): k(f"v_sin_f32 v{FA+4+j}, v{tf+j}")
    k("s_nop 0")
    for z in range(2): k(f"v_cvt_pk_bf16_f32 v{C32+z}, v{FA+2*z}, v{FA+2*z+1}")
    for z in range(2): k(f"v_cvt_pk_bf16_f32 v{S32+z}, v{FA+4+2*z}, v{FA+4+2*z+1}")
    for z in range(2):
        k(f"v_xor_b32 v{C32+2+z}, v{vsm}, v{C32+z}")
        k(f"v_xor_b32 v{S32+2+z}, v{vsm}, v{S32+z}")
    k(f"s_brev_b32 s24, 1")
    for z in range(4):
        k(f"v_xor_b32 v{C32+4+z}, s24, v{C32+z}")
        k(f"v_xor_b32 v{S32+4+z}, s24, v{S32+z}")
    for z in range(8): k(f"v_xor_b32 v{N32+z}, s23, v{S32+z}")
    k(f"v_mul_f32 v{tg+3}, {fh(1/2048)}, v{tg}")
    k(f"v_mul_f32 v{tf}, v{tg+3}, v{tg+1}")
    k(f"v_mul_f32 v{tf}, 4.0, v{tf}")
    for j in range(1, 4): k(f"v_add_f32 v{tf+j}, v{tf+j-1}, v{tg+3}")
    k(f"v_mul_f32 v{tg+4}, {fh(16.0)}, v{tg+3}")
    for j in range(4): k(f"v_add_f32 v{tf+4+j}, v{tf+j}, v{tg+4}")
    for j in range(8): k(f"v_cos_f32 v{T1c+j}, v{tf+j}")
    for j in range(8): k(f"v_sin_f32 v{T1s+j}, v{tf+j}")
    k(f"v_fma_f32 v{tg+5}, v{tg+1}, 4.0, v{tg}")
    k(f"v_sub_f32 v{tg+5}, v{tg+5}, v{tg+2}")
    k(f"v_mul_f32 v{tg+5}, {fh(1/2048)}, v{tg+5}")
    k(f"v_mul_f32 v{tg+3}, {fh(1/2048)}, v{tg+2}")
    k(f"v_mul_f32 v{tf}, v{tg+5}, v{tg+2}")
    for j in range(1, 4): k(f"v_add_f32 v{tf+j}, v{tf+j-1}, v{tg+3}")
    k(f"v_mul_f32 v{tg+4}, {fh(16.0)}, v{tg+5}")
    for j in range(4):
        k(f"v_add_f32 v{tf+4+j}, v{tf+j}, v{tg+4}")
        if j < 3: k(f"v_add_f32 v{tg+4}, {fh(16/2048)}, v{tg+4}")
    for j in range(8): k(f"v_cos_f32 v{T2c+j}, v{tf+j}")
    for j in range(8): k(f"v_sin_f32 v{T2s+j}, v{tf+j}")
    k(f"v_lshrrev_b32 v{t1}, 2, v{v16}")
    k(f"v_lshlrev_b32 v{t1}, 6, v{t1}")
    k(f"v_lshl_add_u32 v{t1}, v{vg}, 9, v{t1}")
    k(f"v_bfe_u32 v{t2}, v{v16}, 1, 1")
    k(f"v_lshlrev_b32 v{tf}, 1, v{vg}")
    k(f"v_and_b32 v{tf}, 2, v{tf}")
    k(f"v_xor_b32 v{t2}, v{t2}, v{tf}")
    k(f"v_lshl_add_u32 v{t1}, v{t2}, 4, v{t1}")
    k(f"v_and_b32 v{t2}, 1, v{v16}")
    k(f"v_lshl_add_u32 v{vA}, v{t2}, 3, v{t1}")
    if kin is not None: k(f"v_add_u32 v{vA}, s{slb}, v{vA}")
    k(f"v_xor_b32 v{vA+1}, 32, v{vA}")
    k(f"v_bfe_u32 v{t1}, v{v16}, 1, 1")
    k(f"v_lshrrev_b32 v{t2}, 3, v{v16}")
    k(f"v_lshl_or_b32 v{t1}, v{t2}, 1, v{t1}")
    k(f"v_lshrrev_b32 v{t2}, 1, v{vg}")
    k(f"s_lshl_b32 s22, s{sw}, 1")
    k(f"v_add_u32 v{t2}, s22, v{t2}")
    k(f"v_xor_b32 v{t1}, v{t1}, v{t2}")
    k(f"v_lshlrev_b32 v{t1}, 4, v{t1}")
    k(f"v_lshl_add_u32 v{t1}, v{v16}, 7, v{t1}")
    k(f"v_and_b32 v{t2}, 1, v{vg}")
    k(f"v_lshl_add_u32 v{t1}, v{t2}, 3, v{t1}")
    k(f"v_add_u32 v{vWr}, 8192, v{t1}")
    k(f"v_xor_b32 v{t1}, 64, v{t1}")
    k(f"v_add_u32 v{vWr+1}, {8192+2048}, v{t1}")
    if kin is not None:
        k(f"v_add_u32 v{vWr}, s{slb}, v{vWr}")
        k(f"v_add_u32 v{vWr+1}, s{slb}, v{vWr+1}")
    k(f"v_lshrrev_b32 v{t2}, 2, v{v16}")
    k(f"v_bfe_u32 v{t1}, v{v16}, 1, 1")
    k(f"v_lshl_or_b32 v{t1}, v{t2}, 1, v{t1}")
    k(f"v_xor_b32 v{t1}, v{t1}, v{vg}")
    k(f"v_lshlrev_b32 v{t1}, 4, v{t1}")
    k(f"v_lshl_add_u32 v{t1}, v{t2}, 10, v{t1}")
    k(f"v_and_b32 v{t2}, 3, v{v16}")
    k(f"v_lshl_add_u32 v{t1}, v{t2}, 7, v{t1}")
    k(f"v_add_u32 v{vB}, 8192, v{t1}")
    if kin is not None: k(f"v_add_u32 v{vB}, s{slb}, v{vB}")
    k(f"v_xor_b32 v{vB+1}, 64, v{vB}")
    k(f"v_lshlrev_b32 v{t1}, 6, v{v16}")
    k(f"v_lshl_add_u32 v{vSt}, v{vg}, 4, v{t1}")
    k(f"s_lshl_b32 s22, s{sw}, 10")
    k(f"s_add_u32 s22, s22, s18")
    k(f"s_add_u32 s25, s22, {WS_UT}")
    for i in range(16): k(f"v_mov_b32 v{AC+i}, 0")
    if kin is not None:
        hook(k, dict(vl=vl, t0=t1, t1=t2, t2=tf, sw=sw))
        loads(vd0, vd1)
    for i in range(16): k(f"v_mov_b32 v{AD+i}, 0")
    if kin is None: k.stamp(1)
    k("s_waitcnt vmcnt(2)")
    k("s_barrier")
    k.stamp(2 if kin is None else 2)
    def fa(p, mt, ks): return FA + 16*p + 8*mt + 4*ks
    for ks in range(2):
        for p in range(2):
            for mt in range(2):
                for z in range(2):
                    b = fa(p, mt, ks) + 2*z
                    k(f"ds_read_b64_tr_b16 v[{b}:{b+1}], v{vA+mt} offset:{p*4096 + ks*2048 + z*256}")
    def mf(d, a_, b_): k(f"v_mfma_f32_16x16x32_bf16 v[{d}:{d+3}], v[{a_}:{a_+3}], v[{b_}:{b_+3}], v[{d}:{d+3}]")
    def acc(base, t, c): return base + 8*t + 4*c
    for ks in range(2):
        k(f"s_waitcnt lgkmcnt({12 if ks == 0 else 4})")
        for mt in range(2):
            mf(acc(AC,mt,0), fa(0,mt,ks), C64+4*ks)
            mf(acc(AC,mt,1), fa(0,mt,ks), N64+4*ks)
        k(f"s_waitcnt lgkmcnt({8 if ks == 0 else 0})")
        for mt in range(2):
            mf(acc(AC,mt,0), fa(1,mt,ks), S64+4*ks)
            mf(acc(AC,mt,1), fa(1,mt,ks), C64+4*ks)
    k("s_nop 7")
    def cmul(base, c, s_, sign, outr, outi):
        for t in range(2):
            r, im = acc(base,t,0), acc(base,t,1)
            for z in range(2):
                rr, ii = r+2*z, im+2*z; cc, ss = c+4*t+2*z, s_+4*t+2*z
                a0 = tf + 4*z
                k(f"v_pk_mul_f32 v[{a0}:{a0+1}], v[{rr}:{rr+1}], v[{cc}:{cc+1}]")
                k(f"v_pk_mul_f32 v[{a0+2}:{a0+3}], v[{ii}:{ii+1}], v[{cc}:{cc+1}]")
            for z in range(2):
                rr, ii = r+2*z, im+2*z; cc, ss = c+4*t+2*z, s_+4*t+2*z
                a0 = tf + 4*z
                n1 = "" if sign > 0 else " neg_lo:[0,1,0] neg_hi:[0,1,0]"
                n2 = " neg_lo:[0,1,0] neg_hi:[0,1,0]" if sign > 0 else ""
                k(f"v_pk_fma_f32 v[{a0}:{a0+1}], v[{ii}:{ii+1}], v[{ss}:{ss+1}], v[{a0}:{a0+1}]{n1}")
                k(f"v_pk_fma_f32 v[{a0+2}:{a0+3}], v[{rr}:{rr+1}], v[{ss}:{ss+1}], v[{a0+2}:{a0+3}]{n2}")
            for z in range(2):
                a0 = tf + 4*z
                k(f"v_cvt_pk_bf16_f32 v{outr+2*t+z}, v{a0}, v{a0+1}")
                k(f"v_cvt_pk_bf16_f32 v{outi+2*t+z}, v{a0+2}, v{a0+3}")
    cmul(AC, T1c, T1s, +1, Br, Bi)
    k("s_nop 1")
    for t in range(2):
        mf(acc(AD,t,0), C32+4*t, Br); mf(acc(AD,t,1), C32+4*t, Bi)
    for t in range(2):
        mf(acc(AD,t,0), S32+4*t, Bi); mf(acc(AD,t,1), N32+4*t, Br)
    k("s_waitcnt vmcnt(0)")
    for j in range(8):
        k(f"v_lshlrev_b32 v{FA+j}, 16, v{W+j}")
        k(f"v_and_b32 v{FA+8+j}, 0xffff0000, v{W+j}")
    for i in range(16): k(f"v_mov_b32 v{AC+i}, 0")
    k("s_nop 1")
    cmul(AD, FA, FA+8, -1, Br, Bi)
    k("s_nop 1")
    for t in range(2):
        mf(acc(AC,t,0), Br, C32+4*t); mf(acc(AC,t,1), Bi, C32+4*t)
    for t in range(2):
        mf(acc(AC,t,0), Bi, N32+4*t); mf(acc(AC,t,1), Br, S32+4*t)
    for i in range(16): k(f"v_mov_b32 v{AD+i}, 0")
    k("s_nop 1")
    Or = FA; Oi = FA + 4
    cmul(AC, T2c, T2s, -1, Or, Oi)
    for t in range(2):
        k(f"ds_write_b64 v{vWr+t}, v[{Or+2*t}:{Or+2*t+1}]")
        k(f"ds_write_b64 v{vWr+t}, v[{Oi+2*t}:{Oi+2*t+1}] offset:4096")
    k.stamp(3)
    k("s_waitcnt lgkmcnt(0)")
    k("s_barrier")
    def fb(p, t, ks): return FA + 16*p + 8*t + 4*ks
    for ks in range(2):
        for p in range(2):
            for t in range(2):
                b = fb(p, t, ks)
                k(f"ds_read_b128 v[{b}:{b+3}], v{vB+ks} offset:{p*4096 + t*512}")
    for ks in range(2):
        k(f"s_waitcnt lgkmcnt({6 if ks == 0 else 2})")
        for t in range(2):
            mf(acc(AD,t,0), fb(0,t,ks), C64+4*ks)
            mf(acc(AD,t,1), fb(0,t,ks), S64+4*ks)
        k(f"s_waitcnt lgkmcnt({4 if ks == 0 else 0})")
        for t in range(2):
            mf(acc(AD,t,0), fb(1,t,ks), N64+4*ks)
            mf(acc(AD,t,1), fb(1,t,ks), C64+4*ks)
    k("s_nop 7")
    for c in range(2):
        o = Br if c == 0 else Bi
        for t in range(2):
            for z in range(2):
                k(f"v_cvt_pk_bf16_f32 v{o+2*t+z}, v{acc(AD,t,c)+2*z}, v{acc(AD,t,c)+2*z+1}")
        k(f"s_add_u32 s26, s25, {4096*c}")
        k(f"buffer_store_dwordx4 v[{o}:{o+3}], v{vSt}, s[8:11], s26 offen{' sc1' if tail else ''}")
    if kin is not None:
        if tail: tail(k, dict(t0=t1, sw=sw))
        else: k("s_endpgm")
        return k
    if side:
        k("s_endpgm")
        k.lab(f"{label}_side")
        prep_job(k, label, 0, END, NW=4, NI=NI)
    k.lab(END)
    k("s_endpgm")
    return k
if __name__ == "__main__":
    from k1 import make_k1
    build([make_k1(), make_k2()], "k12.s")
```

```python
from common import *
def make_k3(label="k3_kernel", var="", pf=1, nxt=None, NSH=0, SHP=3, side=1, kin=None, NEXT=None, st={}, nonce=None, pb=None):
    XO = 81920
    fused = kin is not None
    NSD = 90 if side else 0
    SC = " sc1" if fused else ""
    if fused:
        k = kin; label = label + "_p3"
        _stamp = k.stamp
        def stamp(i):
            if i in st: _stamp(st[i])
    else:
        k = Kern(label, grid=160+NSD, block=512, lds=81920+16384, vgpr=248)
        stamp = k.stamp
    END = f"{label}_end"
    SIDE = f"{label}_side"; PROD = f"{label}_prod"
    if not fused:
        k(f"s_cmp_ge_u32 s2, {160+NSD}")
        k(f"s_cbranch_scc1 {END}")
        k("s_load_dwordx2 s[4:5], s[0:1], 0")
        k("s_load_dwordx2 s[6:7], s[0:1], 72")
        if pf: k.prefetch(nxt=nxt)
        if side:
            k("s_cmp_lt_u32 s2, 90")
            k(f"s_cbranch_scc1 {SIDE}")
    A = Alloc(1)
    vl = A(); t0 = A(); t1 = A(); t2 = A()
    vm = A(2); vB = A(4); vxr = A(); vst = A()
    vrev = A(); vdl = A(); vstep = A(); vc2 = A(2, 2); vtmp = A(8, 2)
    vfb = A(24, 4); vacc = A(32, 4); vG = A(160, 4)
    if not fused: k.vgpr = A.n
    assert A.n <= 254, A.n
    sw, srow, scol = 16, 17, 18
    k(f"v_and_b32 v{vl}, 63, v0")
    k(f"v_lshrrev_b32 v{t0}, 6, v0")
    k(f"s_sub_u32 s27, s2, {NSD}")
    wg_rowcol5(k, srow, scol, 27)
    k(f"v_readfirstlane_b32 s21, v{t0}")
    k(f"s_and_b32 s{sw}, s21, 3")
    k("s_cmp_ge_u32 s21, 4")
    k(f"s_cbranch_scc1 {PROD}")
    k(f"v_and_b32 v{t0}, 19, v{vl}")
    k(f"v_bfe_u32 v{t1}, v{vl}, 2, 1")
    k(f"v_lshl_or_b32 v{t0}, v{t1}, 3, v{t0}")
    k(f"v_bfe_u32 v{t1}, v{vl}, 3, 1")
    k(f"v_lshl_or_b32 v{t0}, v{t1}, 2, v{t0}")
    k(f"s_lshl_b32 s26, s{scol}, 2")
    k(f"s_add_u32 s26, s26, s{sw}")
    k(f"s_lshl_b32 s24, s26, 5")
    k(f"v_add_u32 v{t0}, s24, v{t0}")
    k(f"v_cvt_f32_u32 v{vtmp}, v{t0}")
    k(f"v_lshrrev_b32 v{t1}, 5, v{vl}")
    k(f"v_cvt_f32_u32 v{vtmp+1}, v{t1}")
    k(f"v_mul_f32 v{vdl}, {fh(1/640)}, v{vtmp}")
    k(f"v_mul_f32 v{vtmp+1}, {fh(0.25)}, v{vtmp+1}")
    k(f"v_add_f32 v{vrev}, v{vtmp+1}, v{vdl}")
    k(f"v_mul_f32 v{vstep}, {fh(1/16)}, v{vtmp}")
    k(f"v_fract_f32 v{vstep}, v{vstep}")
    k(f"v_add_f32 v{vtmp}, v{vdl}, v{vdl}")
    k(f"v_cos_f32 v{vc2}, v{vtmp}")
    k("s_nop 0")
    k(f"v_add_f32 v{vc2}, v{vc2}, v{vc2}")
    def gblock(b, nopk=False):
        c = Cap()
        cos_block(c, vG + 20*b, 20, vrev, vdl, vc2, vtmp, halve_last=(b == 7), nopk=nopk)
        if b < 7:
            c(f"v_add_f32 v{vrev}, v{vrev}, v{vstep}")
            c(f"v_fract_f32 v{vrev}, v{vrev}")
        return c.L
    def mloads():
        k(f"v_and_b32 v{vm+1}, 31, v{vl}")
        k(f"v_lshlrev_b32 v{vm+1}, 2, v{vm+1}")
        k(f"s_lshl_b32 s22, s{srow}, 8")
        k(f"s_add_u32 s22, s22, {WS_MS}")
        k(f"buffer_load_dword v{vm}, v{vm+1}, s[12:15], s22 offen")
        k(f"buffer_load_dword v{vm+1}, v{vm+1}, s[12:15], s22 offen offset:128")
    for b in range(8 - NSH):
        for t in gblock(b): k(t)
        if pb is not None and b == pb: k("s_barrier")
        if b == 2:
            k("s_waitcnt lgkmcnt(0)")
            k.srd(12, 6, WS_END)
            if nonce is None: mloads()
    c = k
    c(f"v_bfe_u32 v{t0}, v{vl}, 2, 2")
    c(f"v_lshrrev_b32 v{t1}, 5, v{vl}")
    c(f"v_lshlrev_b32 v{t1}, 3, v{t1}")
    c(f"v_bfe_u32 v{t2}, v{vl}, 4, 1")
    c(f"v_lshl_or_b32 v{t1}, v{t2}, 1, v{t1}")
    c(f"v_bfe_u32 v{t2}, v{vl}, 1, 1")
    c(f"v_or_b32 v{t1}, v{t1}, v{t2}")
    c(f"v_lshlrev_b32 v{t2}, 2, v{t0}")
    c(f"v_xor_b32 v{t1}, v{t1}, v{t2}")
    c(f"v_lshlrev_b32 v{t1}, 4, v{t1}")
    c(f"v_lshl_add_u32 v{t1}, v{t0}, 8, v{t1}")
    c(f"v_and_b32 v{t2}, 1, v{vl}")
    c(f"v_lshl_add_u32 v{vB}, v{t2}, 3, v{t1}")
    c(f"v_xor_b32 v{vB+1}, 64, v{vB}")
    c(f"v_add_u32 v{vB+2}, 40960, v{vB}")
    c(f"v_add_u32 v{vB+3}, 40960, v{vB+1}")
    c(f"v_lshrrev_b32 v{t1}, 5, v{vl}")
    c(f"s_lshl_b32 s24, s{sw}, 2")
    c(f"v_add_u32 v{t1}, s24, v{t1}")
    c(f"v_xor_b32 v{t1}, v{t1}, v{vl}")
    c(f"v_and_b32 v{t1}, 15, v{t1}")
    c(f"v_lshlrev_b32 v{t1}, 4, v{t1}")
    c(f"v_and_b32 v{t2}, 31, v{vl}")
    c(f"v_lshl_add_u32 v{t1}, v{t2}, 8, v{t1}")
    c(f"v_add_u32 v{vxr}, {XO}, v{t1}")
    c(f"v_lshlrev_b32 v{vst}, 4, v{vl}")
    c(f"s_mul_i32 s24, s{srow}, {80*1024}")
    c(f"s_lshl_b32 s25, s26, 11")
    c(f"s_add_u32 s24, s24, s25")
    c(f"s_add_u32 s24, s24, {WS_HC}")
    stamp(0)
    shadow = []
    for b in range(8 - NSH, 8): shadow += gblock(b, True)
    def rd(kk):
        sl = kk % 3
        hi = 2 if kk >= 20 else 0
        off = (kk % 20) * 2048
        for nt in range(2):
            for z in range(2):
                b = vfb + sl*8 + nt*4 + 2*z
                k(f"ds_read_b64_tr_b16 v[{b}:{b+1}], v{vB+hi+nt} offset:{off + z*1024}")
    k("s_barrier"); stamp(2); rd(0); rd(1)
    if nonce is not None: mloads()
    tot = len(shadow)
    for kk in range(40):
        nk = kk + 2
        if nk < 40:
            if nk % 8 == 0: k("s_barrier")
            rd(nk)
            k("s_waitcnt lgkmcnt(8)")
        elif nk == 40: k("s_waitcnt lgkmcnt(4)")
        else: k("s_waitcnt lgkmcnt(0)")
        sl = kk % 3
        if kk % 5 == 0 and kk // 5 >= 8 - NSH:
            done = tot - len(shadow)
            need = sum(len(gblock(b, True)) for b in range(8 - NSH, kk // 5 + 1))
            assert done >= need, (kk, done, need)
        for nt in range(2):
            fb = vfb + sl*8 + nt*4
            cs = f"v[{vacc+16*nt}:{vacc+16*nt+15}]" if kk else "0"
            k(f"v_mfma_f32_32x32x16_bf16 v[{vacc+16*nt}:{vacc+16*nt+15}], v[{vG+4*kk}:{vG+4*kk+3}], v[{fb}:{fb+3}], {cs}")
            for _ in range(SHP):
                if shadow: k(shadow.pop(0))
    assert not shadow
    stamp(3)
    k("s_waitcnt vmcnt(0)")
    k("s_barrier")
    vx = vG; vu = vG + 16; vo = vG + 48; vxr2 = vG + 64; vsc = vG + 66; vmm = vG + 68; vsq = vG + 72
    k(f"v_xor_b32 v{vxr2}, 32, v{vxr}")
    for nt in range(2):
        k(f"ds_read_b128 v[{vx+8*nt}:{vx+8*nt+3}], v{vxr} offset:{8192*nt}")
        k(f"ds_read_b128 v[{vx+8*nt+4}:{vx+8*nt+7}], v{vxr2} offset:{8192*nt}")
    k(f"v_mov_b32 v{vsc}, {fh(2/(2048*640))}")
    for nt in range(2):
        k(f"v_xor_b32 v{vmm+2*nt}, 0x80000000, v{vm+nt}")
    k("s_waitcnt lgkmcnt(0)")
    for nt in range(2):
        for q in range(2):
            xb = vx + 8*nt + 4*q; ub = vu + 8*(2*nt+q); ab = vacc + 16*nt + 8*q; ob = vo + 4*(2*nt+q)
            for z in range(4):
                k(f"v_lshlrev_b32 v{ub+2*z}, 16, v{xb+z}")
                k(f"v_and_b32 v{ub+2*z+1}, 0xffff0000, v{xb+z}")
            for z in range(4):
                k(f"v_pk_add_f32 v[{ub+2*z}:{ub+2*z+1}], v[{ub+2*z}:{ub+2*z+1}], v[{vmm+2*nt}:{vmm+2*nt+1}] op_sel_hi:[1,0]")
            for z in range(4):
                k(f"v_pk_fma_f32 v[{ub+2*z}:{ub+2*z+1}], v[{ab+2*z}:{ab+2*z+1}], v[{vsc}:{vsc+1}], v[{ub+2*z}:{ub+2*z+1}] op_sel_hi:[1,0,1]")
            for z in range(4):
                k(f"v_cvt_pk_bf16_f32 v{ob+z}, v{ub+2*z}, v{ub+2*z+1}")
            k(f"s_add_u32 s25, s24, {(nt*40 + q)*1024}")
            k(f"buffer_store_dwordx4 v[{ob}:{ob+3}], v{vst}, s[12:15], s25 offen{SC}")
            for z in range(4):
                if q == 0 and z == 0: k(f"v_pk_mul_f32 v[{vsq+2*nt}:{vsq+2*nt+1}], v[{ub}:{ub+1}], v[{ub}:{ub+1}]")
                else: k(f"v_pk_fma_f32 v[{vsq+2*nt}:{vsq+2*nt+1}], v[{ub+2*z}:{ub+2*z+1}], v[{ub+2*z}:{ub+2*z+1}], v[{vsq+2*nt}:{vsq+2*nt+1}]")
    k(f"v_add_f32 v{vsq}, v{vsq}, v{vsq+1}")
    k(f"v_add_f32 v{vsq+2}, v{vsq+2}, v{vsq+3}")
    k(f"s_mul_i32 s24, s{srow}, {20*256}")
    k(f"s_lshl_b32 s25, s26, 8")
    k(f"s_add_u32 s24, s24, s25")
    k(f"s_add_u32 s24, s24, {WS_SQ}")
    k(f"v_permlane32_swap_b32 v{vsq}, v{vsq+2}")
    k(f"v_lshlrev_b32 v{t1}, 2, v{vl}")
    k("s_nop 0")
    k(f"v_add_f32 v{vsq}, v{vsq}, v{vsq+2}")
    k(f"buffer_store_dword v{vsq}, v{t1}, s[12:15], s24 offen{SC}")
    if fused:
        k(f"s_mul_i32 s24, s{srow}, 20")
        k("s_add_u32 s24, s24, s26")
        k("s_lshl_b32 s24, s24, 7")
        k(f"s_add_u32 s24, s24, {WS_FL2}")
        k(f"v_mov_b32 v{t1}, {1 if nonce is None else 's%d' % nonce}")
        k("s_mov_b64 exec, 1")
        k("s_waitcnt vmcnt(0)")
        k(f"buffer_store_dword v{t1}, off, s[12:15], s24 sc1")
        k("s_mov_b64 exec, -1")
        stamp(4)
        k(f"s_branch {NEXT}")
    else: k("s_endpgm")
    k.lab(PROD)
    B = Alloc(t2 + 1)
    vdma = B(); vxd = B(4)
    k(f"v_lshrrev_b32 v{t0}, 4, v{vl}")
    k(f"v_lshlrev_b32 v{t1}, 2, v{t0}")
    k(f"v_xor_b32 v{t1}, v{t1}, v{vl}")
    k(f"v_and_b32 v{t1}, 15, v{t1}")
    k(f"v_lshrrev_b32 v{t2}, 3, v{t1}")
    k(f"v_and_b32 v{t1}, 7, v{t1}")
    k(f"v_lshlrev_b32 v{t1}, 4, v{t1}")
    k(f"v_lshl_add_u32 v{t1}, v{t2}, 12, v{t1}")
    k(f"v_lshl_add_u32 v{vdma}, v{t0}, 13, v{t1}")
    k(f"s_lshl_b32 s19, s{srow}, 7")
    k(f"s_lshl_b32 s20, s{sw}, 16")
    k(f"s_add_u32 s19, s19, s20")
    k(f"s_add_u32 s19, s19, {WS_UT}")
    k(f"s_lshl_b32 s20, s{sw}, 11")
    k("s_waitcnt lgkmcnt(0)")
    k.srd(12, 6, WS_END)
    k.srd(8, 4, 2621440)
    if nonce is not None:
        k(f"v_lshrrev_b32 v{t0}, 3, v{vl}")
        k(f"v_lshlrev_b32 v{t1}, 5, v{t0}")
        k(f"v_and_b32 v{t2}, 7, v{vl}")
        k(f"v_add_u32 v{t1}, v{t1}, v{t2}")
        k(f"v_and_b32 v{t0}, 1, v{t0}")
        k(f"v_lshl_add_u32 v{t0}, v{t0}, 5, v{t2}")
        k(f"v_add_u32 v{t0}, 256, v{t0}")
        k(f"s_lshr_b32 s22, s{srow}, 3")
        k("s_mul_i32 s22, s22, 320")
        k(f"s_lshl_b32 s23, s{sw}, 3")
        k("s_add_u32 s22, s22, s23")
        k("s_lshl_b32 s22, s22, 7")
        k(f"s_add_u32 s22, s22, {WS_FL4}")
        k(f"v_lshlrev_b32 v{t1}, 7, v{t1}")
        k(f"v_lshlrev_b32 v{t0}, 7, v{t0}")
        if pb is not None: k("s_barrier")
        poll_lines(k, [t1, t0], [vxd, vxd+1], 12, 22, nonce)
        k(f"v_lshrrev_b32 v{t0}, 4, v{vl}")
        stamp(0)
    for c in range(10):
        for i in range(2):
            k(f"s_add_u32 m0, s20, {c*8192 + i*1024}")
            k(f"s_add_u32 s22, s19, {c*8*32768 + i*32768}")
            k(f"buffer_load_dwordx4 v{vdma}, s[12:15], s22 offen lds")
    k(f"v_xor_b32 v{t1}, v{t0}, v{vl}")
    k(f"v_and_b32 v{t1}, 15, v{t1}")
    k(f"v_lshlrev_b32 v{t1}, 4, v{t1}")
    k(f"v_mul_u32_u24 v{t2}, 1280, v{t0}")
    for i in range(4):
        k(f"v_xor_b32 v{vxd+i}, {64*i}, v{t1}")
        k(f"v_add_u32 v{vxd+i}, v{vxd+i}, v{t2}")
    k(f"s_lshl_b32 s22, s{srow}, 2")
    k(f"s_add_u32 s22, s22, s{sw}")
    k(f"s_mul_i32 s21, s22, {16*1280}")
    k(f"s_lshl_b32 s23, s{scol}, 8")
    k(f"s_add_u32 s21, s21, s23")
    k(f"s_lshl_b32 s23, s{sw}, 12")
    for i in range(4):
        k(f"s_add_u32 m0, s23, {XO + i*1024}")
        k(f"s_add_u32 s22, s21, {4*i*1280}")
        k(f"buffer_load_dwordx4 v{vxd+i}, s[8:11], s22 offen lds")
    stamp(0)
    for p in range(5):
        k(f"s_waitcnt vmcnt({20-4*p})")
        k("s_barrier")
        if p == 0: stamp(1)
    k("s_waitcnt vmcnt(0)")
    k("s_barrier")
    stamp(3)
    if fused:
        k(f"s_branch {NEXT}")
        return k
    k("s_endpgm")
    if side:
        k.lab(SIDE)
        prep_job(k, label, 0, END, NW=8)
    k.lab(END)
    k("s_endpgm")
    return k
if __name__ == "__main__":
    from k1 import make_k1
    from k2 import make_k2
    build([make_k1(), make_k2(), make_k3()], "k123.s")
```

```python
from common import *
def make_k45(label="k45_kernel", NS=7, var="", P=4, rot=0, pf=1, nxt=None, TR0=1, TRN=2, CW0=26, SPIN=20000, f3=0, st=None, il=0, prio=0, l2p=0, kin=None, nonce=None, pb=None):
    ST = 20480
    k = kin or Kern(label, grid=256, block=512, lds=NS*ST, vgpr=256)
    NV = "1" if nonce is None else f"s{nonce}"
    END = f"{label}_end"
    k("s_cmp_ge_u32 s2, 256")
    k(f"s_cbranch_scc1 {END}")
    k("s_load_dwordx2 s[6:7], s[0:1], 72")
    k("s_load_dwordx2 s[58:59], s[0:1], 56")
    if f3: k("s_load_dwordx2 s[4:5], s[0:1], 0")
    if pf: k.prefetch(nxt=None, regs=(254, 255), shift=7)
    st = st if st is not None else {"a_end": 0, "h_flag": 1, "h_got": 2, "b_end": 3}
    _st = k.stamp
    def stamp(n):
        if n in st: _st(st[n])
    if f3:
        from k3 import make_k3
        P4 = f"{label}_p4"
        k("s_cmp_ge_u32 s2, 160")
        k(f"s_cbranch_scc1 {P4}")
        make_k3(label=label, side=0, kin=k, NEXT=P4, nonce=nonce, pb=pb, st={i: st[n] for i, n in ((0, "p3_c0"), (2, "p3_bar"), (3, "p3_end"), (4, "p3_flag")) if n in st})
        k.lab(P4)
    A = Alloc(1)
    vl = A(); t0 = A(); t1 = A()
    vdma = A(); vA = A(3); vB = A(3); vst = A()
    vr = A(8, 2); vt = A(20, 2)
    vacc = A(96, 4); fA = A(24, 4); fB = A(16, 4)
    assert A.n == 176 and vdma == 4 and t0 == 2, A.n
    vm = VM(k); vmh = [vm]
    sw, swm, swn, srow, sf = 16, 17, 18, 19, 20
    k(f"v_and_b32 v{vl}, 63, v0")
    k(f"v_lshrrev_b32 v{t0}, 6, v0")
    k("s_and_b32 s22, s2, 7")
    k("s_lshr_b32 s23, s2, 3")
    k(f"v_readfirstlane_b32 s21, v{t0}")
    k(f"s_and_b32 s{sw}, s21, 3")
    k("s_and_b32 s24, s22, 3")
    k("s_lshl_b32 s24, s24, 2")
    k("s_and_b32 s25, s23, 3")
    k(f"s_add_u32 s{sf}, s24, s25")
    k("s_lshr_b32 s24, s22, 2")
    k("s_lshl_b32 s24, s24, 3")
    k("s_lshr_b32 s25, s23, 2")
    k(f"s_add_u32 s{srow}, s24, s25")
    k(f"s_lshr_b32 s{swm}, s{sw}, 1")
    k(f"s_and_b32 s{swn}, s{sw}, 1")
    k(f"v_lshlrev_b32 v{vdma}, 4, v{vl}")
    sA, sB, mA, mB, sQ = 26, 27, 28, 29, 30
    k(f"s_mul_i32 s{sA}, s{sf}, {40*6144}")
    k(f"s_mul_i32 s22, s{sw}, 3072")
    k(f"s_add_u32 s{sA}, s{sA}, s22")
    k(f"s_add_u32 s{sA}, s{sA}, {WS_WA}")
    k(f"s_lshl_b32 s23, s{srow}, 2")
    k(f"s_add_u32 s23, s23, s{sw}")
    k(f"s_mul_i32 s{sB}, s23, 40960")
    k(f"s_add_u32 s{sB}, s{sB}, {WS_HC}")
    k(f"s_mov_b32 s{mA}, s22")
    k(f"s_lshl_b32 s{mB}, s{sw}, 11")
    k(f"s_add_u32 s{mB}, s{mB}, 12288")
    k(f"s_lshl_b32 s23, s{srow}, 1")
    k(f"s_add_u32 s23, s23, s{swn}")
    k(f"s_mul_i32 s{sQ}, s23, {20*256}")
    k(f"s_add_u32 s{sQ}, s{sQ}, {WS_SQ}")
    k(f"v_lshlrev_b32 v{t1}, 2, v{vl}")
    k("s_waitcnt lgkmcnt(0)")
    k.srd(8, 6, WS_END)
    k.srd(12, 58, 2621440)
    WB0 = 136; vld = vdma; vld4 = t0
    k("s_and_b32 s22, s2, 7")
    k("s_lshl_b32 s22, s22, 2")
    k("s_lshr_b32 s23, s2, 6")
    k("s_add_u32 s36, s22, s23")
    k("s_lshr_b32 s23, s2, 3")
    k("s_and_b32 s37, s23, 7")
    k("s_mul_i32 s38, s21, 240")
    k("s_mul_i32 s22, s37, 5")
    k("s_add_u32 s38, s38, s22")
    k("s_lshl_b32 s38, s38, 10")
    k(f"s_add_u32 s38, s38, {WS_WB}")
    def w2ld(n):
        i, mt = n // 5, n % 5
        b = WB0 + 20*i + 4*mt
        L = []
        if mt == 0: L.append(f"s_add_u32 s35, s38, {i*40960}")
        L.append(f"buffer_load_dwordx4 v[{b}:{b+3}], v{vld if mt < 4 else vld4}, s[8:11], s35 offen offset:{1024*(mt%4)}")
        return L
    if l2p and f3:
        SK = k.newlab("nol2p")
        k("s_cmp_lt_u32 s2, 160")
        k(f"s_cbranch_scc1 {SK}")
        k(f"v_add_u32 v8, 4096, v{vld}")
        k(f"v_add_u32 v9, 8192, v{vld}")
        def wa():
            k("s_lshr_b32 s22, s2, 3")
            k("s_sub_u32 s22, s22, 20")
            k("s_lshr_b32 s22, s22, 2")
            k("s_lshl_b32 s22, s22, 3")
            k("s_add_u32 s22, s22, s21")
            k("s_mul_i32 s22, s22, 10240")
            k(f"s_mul_i32 s23, s{sf}, {40*6144}")
            k("s_add_u32 s22, s22, s23")
            k(f"s_add_u32 s22, s22, {WS_WA}")
            for n in range(10):
                k(f"buffer_load_dwordx4 v[{40+4*n}:{43+4*n}], v{[vld, 8, 9][n//4]}, s[8:11], s22 offen offset:{1024*(n%4)}")
        def wb():
            for n in range(30):
                if (l2p & 8) and n >= 15: break
                for x in w2ld(n): k(x.replace(f", v{vld4}, s[8:11]", ", v8, s[8:11]"))
        if (l2p & 2) and not (l2p & 4): wa()
        if l2p & 1: wb()
        if (l2p & 2) and (l2p & 4): wa()
        k("s_waitcnt vmcnt(0)")
        k.lab(SK)
    def phaseB(hi):
        g = 21
        mts = [3, 4] if hi else [0, 1, 2]; Lt = len(mts)
        HA, HB, HC, ACC = 8, 24, 120, 40
        vhc, vo, vma = 5, 6, 7
        W = lambda i: WB0 + 20*i
        k(f"s_mul_i32 s22, s{g}, 6")
        for n in range(4):
            k(f"s_add_u32 s23, s{g}, {n}")
            k("s_and_b32 s23, s23, 3")
            k("s_lshl_b32 s24, s36, 2")
            k("s_add_u32 s23, s23, s24")
            k("s_mul_i32 s23, s23, 48")
            k("s_add_u32 s23, s23, s22")
            k("s_lshl_b32 s23, s23, 10")
            k(f"s_add_u32 s{40+n}, s23, {WS_HF}")
        k("s_lshl_b32 s23, s36, 5")
        k(f"s_lshl_b32 s24, s{g}, 2")
        k("s_add_u32 s23, s23, s24")
        k("s_lshl_b32 s23, s23, 7")
        k(f"s_add_u32 s39, s23, {WS_FL}")
        k(f"v_and_b32 v{t1}, 3, v{vl}")
        k(f"v_lshlrev_b32 v{t1}, 7, v{t1}")
        for n in range(4):
            for h in range(2):
                d = 44 + 2*n + h
                k(f"s_add_u32 s23, s{g}, {n}")
                k("s_and_b32 s23, s23, 3")
                k(f"s_sub_u32 s24, s{g}, s23")
                k(f"s_sub_u32 s24, s24, {4*h + 1}")
                k("s_and_b32 s24, s24, 7")
                k(f"s_mul_i32 s24, s24, {2048 if h else 3072}")
                k(f"s_mul_i32 s23, s23, {14336 if h else 21504}")
                k(f"s_add_u32 s{d}, s23, s24")
                if h: k(f"s_add_u32 s{d}, s{d}, {4*21504}")
        k(f"s_and_b32 s53, s{g}, 3")
        k(f"s_mul_i32 s52, s53, {14336 if hi else 21504}")
        if hi: k(f"s_add_u32 s52, s52, {4*21504}")
        k(f"v_lshrrev_b32 v{vo}, 4, v{vl}")
        k(f"v_and_b32 v{vma}, 15, v{vl}")
        k(f"v_lshrrev_b32 v8, 1, v{vo}")
        k(f"v_lshlrev_b32 v8, 9, v8")
        k(f"v_lshl_add_u32 v8, v{vma}, 4, v8")
        k(f"v_and_b32 v{vhc}, 1, v{vo}")
        k(f"v_lshl_add_u32 v{vhc}, v{vhc}, 3, v8")
        k(f"v_mul_u32_u24 v8, 1280, v{vma}")
        k(f"v_lshl_add_u32 v{vo}, v{vo}, 3, v8")
        k(f"v_lshlrev_b32 v{vma}, 2, v{vma}")
        k("s_lshl_b32 s22, s36, 1")
        k("s_lshr_b32 s23, s53, 1")
        k("s_add_u32 s22, s22, s23")
        k("s_mul_i32 s22, s22, 40")
        k("s_mul_i32 s23, s37, 5")
        k("s_add_u32 s22, s22, s23")
        k(f"s_add_u32 s22, s22, {mts[0]}")
        k("s_lshl_b32 s22, s22, 10")
        k("s_and_b32 s23, s53, 1")
        k("s_lshl_b32 s23, s23, 8")
        k("s_add_u32 s22, s22, s23")
        k(f"s_add_u32 s54, s22, {WS_HC}")
        k("s_lshl_b32 s22, s36, 2")
        k("s_add_u32 s22, s22, s53")
        k("s_lshl_b32 s23, s22, 6")
        k(f"s_add_u32 s55, s23, {WS_MS}")
        k(f"s_mul_i32 s56, s22, {16*1280}")
        k("s_mul_i32 s23, s37, 160")
        k("s_add_u32 s56, s56, s23")
        lp = k.newlab("poll"); dn = k.newlab("got")
        k(f"s_mov_b32 s57, {SPIN}")
        k.lab(lp)
        k(f"buffer_load_dword v8, v{t1}, s[8:11], s39 offen sc1")
        k("s_sub_u32 s57, s57, 1")
        k("s_cmp_eq_u32 s57, 0")
        k(f"s_cbranch_scc1 {dn}")
        k("s_waitcnt vmcnt(0)")
        k(f"v_cmp_ne_u32 vcc, {NV}, v8")
        k("s_cmp_lg_u64 vcc, 0")
        k(f"s_cbranch_scc1 {lp}")
        k.lab(dn)
        k("s_waitcnt vmcnt(0)")
        stamp("h_got")
        vb = VM(k)
        Hreg = [HA, HB, HC, HA, W(0), HB]
        def hld(i, n):
            b = Hreg[i] + 4*n
            vb.issue(f"buffer_load_dwordx4 v[{b}:{b+3}], v{vld if i < 4 else vld4}, s[8:11], s{40+n} offen offset:{1024*(i%4)}", ("h", i))
        for i in range(3):
            for n in range(4): hld(i, n)
        E = W(1)
        for i in range(6):
            vb.wait(("h", i))
            for n in range(4):
                for mt in range(5):
                    d = ACC + 4*(5*n + mt)
                    cs = f"v[{d}:{d+3}]" if i else "0"
                    k(f"v_mfma_f32_16x16x32_bf16 v[{d}:{d+3}], v[{W(i)+4*mt}:{W(i)+4*mt+3}], v[{Hreg[i]+4*n}:{Hreg[i]+4*n+3}], {cs}")
                if i == 0: hld(3, n)
                if i == 1: hld(4, n)
                if i == 1 and n == 3:
                    pass
                if i == 2 and n == 0:
                    for q in range(4): hld(5, q)
                if i == 2 and n == 1:
                    for t in range(Lt):
                        vb.issue(f"buffer_load_dwordx2 v[{E+2*t}:{E+2*t+1}], v{vhc}, s[8:11], s54 offen offset:{1024*t}", "e")
                    vb.issue(f"buffer_load_dword v{E+8}, v{vma}, s[8:11], s55 offen", "e")
        stamp("b_end")
        k("s_nop 4")
        va = HC
        for n in (1, 2, 3, 0):
            for h in range(2):
                if n == 0 and h == (1 if hi else 0): continue
                k(f"v_add_u32 v{va + 2*n + h}, s{44 + 2*n + h}, v{vld}")
                for t, mt in enumerate([3, 4] if h else [0, 1, 2]):
                    d = ACC + 4*(5*n + mt)
                    k(f"ds_write_b128 v{va + 2*n + h}, v[{d}:{d+3}] offset:{1024*t}")
        k(f"v_add_u32 v{va+8}, s52, v{vld}")
        k("s_waitcnt lgkmcnt(0)")
        k("s_barrier")
        R = 168
        assert R + 7*Lt*4 <= 256
        for sl in range(7):
            for t in range(Lt):
                b = R + 4*(sl*Lt + t)
                k(f"ds_read_b128 v[{b}:{b+3}], v{va+8} offset:{1024*(sl*Lt + t)}")
        u = 8
        vb.wait("e")
        for t in range(Lt):
            for z in range(2):
                k(f"v_lshlrev_b32 v{u+4*t+2*z}, 16, v{E+2*t+z}")
                k(f"v_and_b32 v{u+4*t+2*z+1}, 0xffff0000, v{E+2*t+z}")
        for z in range(2*Lt):
            k(f"v_pk_add_f32 v[{u+2*z}:{u+2*z+1}], v[{u+2*z}:{u+2*z+1}], v[{E+8}:{E+9}] op_sel_hi:[1,0]")
        own = ACC + 4*mts[0]
        for z in range(2*Lt):
            k(f"v_pk_add_f32 v[{u+2*z}:{u+2*z+1}], v[{u+2*z}:{u+2*z+1}], v[{own+2*z}:{own+2*z+1}]")
        n_rd = 7*Lt
        def wait_sl(sl): k(f"s_waitcnt lgkmcnt({min(15, n_rd - (sl+1)*Lt)})")
        wait_sl(1)
        for z in range(2*Lt):
            k(f"v_pk_add_f32 v[{R+2*z}:{R+2*z+1}], v[{R+2*z}:{R+2*z+1}], v[{R+4*Lt+2*z}:{R+4*Lt+2*z+1}]")
        for sl in range(2, 7):
            wait_sl(sl)
            tgt = u if sl % 2 == 0 else R
            for z in range(2*Lt):
                k(f"v_pk_add_f32 v[{tgt+2*z}:{tgt+2*z+1}], v[{tgt+2*z}:{tgt+2*z+1}], v[{R+4*Lt*sl+2*z}:{R+4*Lt*sl+2*z+1}]")
        for z in range(2*Lt):
            k(f"v_pk_add_f32 v[{u+2*z}:{u+2*z+1}], v[{u+2*z}:{u+2*z+1}], v[{R+2*z}:{R+2*z+1}]")
        o = 24
        for t in range(Lt):
            for z in range(2):
                k(f"v_cvt_pk_bf16_f32 v{o+2*t+z}, v{u+4*t+2*z}, v{u+4*t+2*z+1}")
            k(f"buffer_store_dwordx2 v[{o+2*t}:{o+2*t+1}], v{vo}, s[12:15], s56 offen offset:{32*mts[t]}")
        k("s_endpgm")
    scur = 34
    def dma_items(c):
        sl = c % NS
        def mk(i):
            def f():
                if "nodma" in var: return
                if i == 0:
                    k(f"s_add_u32 m0, s{mA}, {sl*ST}")
                    k(f"s_mul_i32 s22, s{scur}, 12288")
                    k(f"s_add_u32 s22, s22, s{sA}")
                if i == 3:
                    k(f"s_add_u32 m0, s{mB}, {sl*ST}")
                    k(f"s_lshl_b32 s22, s{scur}, 11")
                    k(f"s_add_u32 s22, s22, s{sB}")
                o = i if i < 3 else i - 3
                vmh[0].issue(f"buffer_load_dwordx4 v{vdma}, s[8:11], s22 offen offset:{1024*o} lds", ("c", c))
                if i == 4:
                    k(f"s_add_u32 s{scur}, s{scur}, 1")
                    k(f"s_cmp_eq_u32 s{scur}, 20")
                    k(f"s_cselect_b32 s{scur}, 0, s{scur}")
            return f
        return [mk(i) for i in range(5)]
    if rot:
        k("s_lshr_b32 s23, s2, 3")
        k("s_and_b32 s24, s23, 3")
        k("s_mul_i32 s24, s24, 5")
        k("s_lshr_b32 s23, s23, 2")
        k("s_mul_i32 s23, s23, 5")
        k("s_lshr_b32 s23, s23, 1")
        k(f"s_add_u32 s{scur}, s23, s24")
        k(f"s_cmp_ge_u32 s{scur}, 20")
        k(f"s_cselect_b32 s24, 20, 0")
        k(f"s_sub_u32 s{scur}, s{scur}, s24")
    else:
        k(f"s_mov_b32 s{scur}, 0")
    PROD = f"{label}_prod"
    k("s_cmp_ge_u32 s21, 4")
    k(f"s_cbranch_scc1 {PROD}")
    def sqloads():
        for j in range(20):
            vm.issue(f"buffer_load_dword v{vt+j}, v{t1}, s[8:11], s{sQ} offen offset:{256*j}" if j < 16 else
                     f"buffer_load_dword v{vt+j}, v{t1}, s[8:11], s31 offen offset:{256*(j-16)}", "sq")
            if j == 0: k(f"s_add_u32 s31, s{sQ}, 4096")
    if not f3: sqloads()
    setup = []
    setup += [f"s_mul_i32 s23, s{swm}, 3072", f"v_add_u32 v{vA}, s23, v{vdma}", f"s_lshl_b32 s23, s{swn}, 12", f"s_add_u32 s23, s23, 12288", f"v_add_u32 v{vB}, s23, v{vdma}"]
    for i in range(1, 3):
        setup += [f"v_add_u32 v{vA+i}, {i*3*ST}, v{vA}", f"v_add_u32 v{vB+i}, {i*3*ST}, v{vB}"]
    setup += [f"v_bfe_u32 v{t0}, v{vl}, 4, 1", f"v_mul_u32_u24 v{t0}, 49152, v{t0}", f"v_lshrrev_b32 v{vst}, 5, v{vl}",
              f"v_lshl_add_u32 v{t0}, v{vst}, 8, v{t0}", f"v_and_b32 v{vst}, 15, v{vl}", f"v_lshl_add_u32 v{vst}, v{vst}, 4, v{t0}"]
    for t in setup: k(t)
    k(f"v_add_u32 v{vld4}, 4096, v{vld}")
    def rd_items(kk):
        if "nord" in var: return []
        c, k2 = kk // 2, kk % 2
        sl = c % NS; st, so = sl // 3, (sl % 3) * ST
        b = kk & 1
        L = []
        L.append(f"ds_read_b128 v[{fA+12*b}:{fA+12*b+3}], v{vA+st} offset:{so + k2*6144}")
        for nt in range(2):
            L.append(f"ds_read_b128 v[{fB+8*b+4*nt}:{fB+8*b+4*nt+3}], v{vB+st} offset:{so + nt*2048 + k2*1024}")
        for i in range(1, 3):
            L.append(f"ds_read_b128 v[{fA+12*b+4*i}:{fA+12*b+4*i+3}], v{vA+st} offset:{so + k2*6144 + i*1024}")
        return L
    def wait_chunk(c):
        k("s_barrier")
    wait_chunk(0)
    stamp("a_c0")
    if f3: sqloads()
    if "clk" in var: k.stamp(10)
    for t in rd_items(0): k(t)
    pend = []
    nextc = NS
    rl0 = vr; rl1 = vr + 4
    cw = list(range(10, 30))
    extra = []
    for kk in range(40):
        c = kk // 2
        b = kk & 1
        k("s_waitcnt lgkmcnt(0)")
        if kk & 1 and kk + 1 < 40:
            wait_chunk(c + 1)
        mf = []
        for i in range(3):
            for nt in range(2):
                d = vacc + 16*(2*i + nt)
                cs = f"v[{d}:{d+15}]" if kk else "0"
                mf.append(f"v_mfma_f32_32x32x16_bf16 v[{d}:{d+15}], v[{fA+12*b+4*i}:{fA+12*b+4*i+3}], v[{fB+8*b+4*nt}:{fB+8*b+4*nt+3}], {cs}")
        if "nomfma" in var: mf = ["" for _ in mf]
        rds = rd_items(kk + 1) if kk + 1 < 40 else []
        ndma = 2 if (kk & 1) else 3
        dm = pend[:ndma]; pend = pend[ndma:]
        if kk == 6:
            def w(): vm.wait("sq")
            extra = [w] + [f"v_add_f32 v{vt+2*z}, v{vt+2*z}, v{vt+2*z+1}" for z in range(10)]
            extra += [f"v_add_f32 v{vt+4*z}, v{vt+4*z}, v{vt+4*z+2}" for z in range(5)]
            extra += [f"v_add_f32 v{vt}, v{vt}, v{vt+4}", f"v_add_f32 v{vt+8}, v{vt+8}, v{vt+12}", f"v_add_f32 v{vt}, v{vt}, v{vt+16}", f"v_add_f32 v{vt}, v{vt}, v{vt+8}",
                      f"v_mul_f32 v{vt}, {fh(1/640)}, v{vt}", f"v_add_f32 v{vt}, {fh(1e-5)}, v{vt}",
                      f"v_mov_b32 v{vt+1}, v{vt}", "s_nop 1", f"v_permlane32_swap_b32 v{vt}, v{vt+1}", "s_nop 1",
                      f"v_rsq_f32 v{vt+2}, v{vt}", f"v_rsq_f32 v{vt+3}, v{vt+1}", "s_nop 0",
                      f"v_mul_f32 v{rl0}, {fh(-1.4426950408889634)}, v{vt+2}", f"v_mul_f32 v{rl1}, {fh(-1.4426950408889634)}, v{vt+3}",
                      f"v_mov_b32 v{rl0+2}, v{vt}", f"v_mov_b32 v{rl1+2}, v{vt+1}"]
        slots = [[] for _ in range(6)]
        for j, t in enumerate(rds): slots[[0,0,1,1,2][j]].append(t)
        for j, t in enumerate(dm): slots[3 + j].append(t)
        if kk >= CW0:
            for j in (3, 5):
                if cw: slots[j] += w2ld(cw.pop(0))
        ne = 0
        for i in range(6):
            if mf[i]: k(mf[i])
            for t in slots[i]:
                if callable(t): t()
                else: k(t)
            for _ in range(3):
                if extra:
                    t = extra.pop(0)
                    if callable(t): t()
                    else: k(t)
    assert not pend and not extra
    cw_left = cw
    k("s_barrier")
    stamp("a_end")
    k(f"s_lshl_b32 s23, s{srow}, 2")
    k(f"s_lshl_b32 s24, s{swn}, 1")
    k(f"s_add_u32 s23, s23, s24")
    k(f"s_mul_i32 s23, s23, {96*1024}")
    k(f"s_add_u32 s23, s23, {WS_HF}")
    k(f"s_mul_i32 s24, s{sf}, 6")
    k(f"s_mul_i32 s25, s{swm}, 3")
    k(f"s_add_u32 s24, s24, s25")
    k(f"s_lshl_b32 s24, s24, 9")
    k(f"s_add_u32 s23, s23, s24")
    k("s_nop 3")
    tiles = [(i, nt) for i in range(3) for nt in range(2)]
    def stA(t):
        i, nt = tiles[t]; d = vacc + 16*(2*i + nt); rl = vr + 4*nt; e = vt + 8*(t & 1)
        L = [f"v_pk_mul_f32 v[{e+2*z}:{e+2*z+1}], v[{d+2*z}:{d+2*z+1}], v[{rl}:{rl+1}] op_sel_hi:[1,0]" for z in range(4)]
        L += [f"v_exp_f32 v{e+z}, v{e+z}" for z in range(8)]
        return L
    def stB(t):
        i, nt = tiles[t]; d = vacc + 16*(2*i + nt); r2 = vr + 4*nt + 2; e = vt + 8*(t & 1)
        L = [f"v_pk_fma_f32 v[{e+2*z}:{e+2*z+1}], v[{e+2*z}:{e+2*z+1}], v[{r2}:{r2+1}], v[{r2}:{r2+1}] op_sel_hi:[1,0,0]" for z in range(4)]
        L += [f"v_pk_mul_f32 v[{d+2*z}:{d+2*z+1}], v[{d+2*z}:{d+2*z+1}], v[{d+8+2*z}:{d+8+2*z+1}]" for z in range(4)]
        L += [f"v_rcp_f32 v{e+z}, v{e+z}" for z in range(8)]
        L += ["s_nop 0"]
        L += [f"v_pk_mul_f32 v[{d+2*z}:{d+2*z+1}], v[{d+2*z}:{d+2*z+1}], v[{e+2*z}:{e+2*z+1}]" for z in range(4)]
        L += [f"v_cvt_pk_bf16_f32 v{d+8+z}, v{d+2*z}, v{d+2*z+1}" for z in range(4)]
        L += [f"s_add_u32 s25, s23, {nt*96*1024 + i*512}", f"buffer_store_dwordx4 v[{d+8}:{d+11}], v{vst}, s[8:11], s25 offen sc1"]
        return L
    cw = list(range(10)) + cw_left
    per = (len(cw) + 11) // 12
    def cwl(n):
        for _ in range(n):
            if cw:
                for x in w2ld(cw.pop(0)): k(x)
    if not il:
        cwl(2 if not cw_left else per)
        for t in stA(0): k(t)
        for t in range(6):
            cwl(1 if not cw_left else per)
            if t + 1 < 6:
                for x in stA(t+1): k(x)
            else: k("s_nop 0")
            cwl(1 if not cw_left else per)
            for x in stB(t): k(x)
    else:
        cwl(2 if not cw_left else per)
        for t in stA(0): k(t)
        k("s_nop 0")
        for t in range(6):
            B = stB(t); An = stA(t+1) if t + 1 < 6 else None
            fma, mulp, rcp, fin, cvt, sto = B[0:4], B[4:8], B[8:16], B[17:21], B[21:25], B[25:]
            for x in fma: k(x)
            cwl(1 if not cw_left else per)
            for z in range(4):
                k(rcp[2*z]); k(An[z] if An else mulp[z]); k(rcp[2*z+1])
                if An: k(mulp[z])
            if not An: k("s_nop 0")
            cwl(1 if not cw_left else per)
            for z in range(4):
                if An: k(An[4+2*z])
                k(fin[z])
                if An: k(An[4+2*z+1])
                k(cvt[z])
            for x in sto: k(x)
    cwl(30)
    k(f"s_lshl_b32 s23, s{srow}, 1")
    k(f"s_add_u32 s23, s23, s{swn}")
    k("s_lshl_b32 s23, s23, 5")
    k(f"s_lshl_b32 s24, s{sf}, 1")
    k("s_add_u32 s23, s23, s24")
    k(f"s_add_u32 s23, s23, s{swm}")
    k("s_lshl_b32 s23, s23, 7")
    k(f"s_add_u32 s23, s23, {WS_FL}")
    k(f"v_mov_b32 v{t1}, {NV}")
    k("s_mov_b64 exec, 1")
    k("s_waitcnt vmcnt(0)")
    k(f"buffer_store_dword v{t1}, off, s[8:11], s23 sc1")
    k("s_mov_b64 exec, -1")
    stamp("h_flag")
    phaseB(False)
    k.lab(PROD)
    vm = VM(k); vmh[0] = vm
    nxt = 0
    if f3:
        if nonce is not None:
            k(f"v_lshlrev_b32 v8, 7, v{vl}")
            k(f"v_min_u32 v9, 25, v{vl}")
            k("v_add_u32 v9, 64, v9")
            k("v_lshlrev_b32 v9, 7, v9")
            k(f"s_mov_b32 s22, {WS_FL5}")
            poll_lines(k, [8, 9], [10, 11], 8, 22, nonce)
        its = [dma_items(c) for c in range(P)]
        k(f"s_mov_b32 s{scur}, 0")
        for c in range(P):
            k(f"s_mov_b32 s{scur}, {c}")
            for f in its[c][:3]: f()
        k(f"s_lshl_b32 s23, s{srow}, 1")
        k(f"s_lshr_b32 s24, s{sw}, 1")
        k("s_add_u32 s23, s23, s24")
        k(f"s_mul_i32 s23, s23, {20*128}")
        k(f"s_add_u32 s39, s23, {WS_FL2}")
        k(f"v_min_u32 v{t1}, 19, v{vl}")
        k(f"v_lshlrev_b32 v{t1}, 7, v{t1}")
        lp = k.newlab("poll"); dn = k.newlab("got")
        k(f"s_mov_b32 s57, {SPIN}")
        k.lab(lp)
        k(f"buffer_load_dword v8, v{t1}, s[8:11], s39 offen sc1")
        k("s_sub_u32 s57, s57, 1")
        k("s_cmp_eq_u32 s57, 0")
        k(f"s_cbranch_scc1 {dn}")
        k("s_waitcnt vmcnt(0)")
        k(f"v_cmp_ne_u32 vcc, {NV}, v8")
        k("s_cmp_lg_u64 vcc, 0")
        k(f"s_cbranch_scc1 {lp}")
        k.lab(dn)
        k("s_waitcnt vmcnt(0)")
        stamp("p_got")
        vm = VM(k); vmh[0] = vm
        for c in range(P):
            k(f"s_mov_b32 s{scur}, {c}")
            for f in its[c][3:]: f()
            nxt += 1
    else:
        for c in range(P):
            for f in dma_items(c): f()
            nxt += 1
    k(f"v_add_u32 v{vld4}, 4096, v{vld}")
    pw = list(range(30))
    for c in range(20):
        if "nodma" not in var: vm.wait(("c", c))
        k("s_barrier")
        n = 0
        while nxt < 20 and nxt <= c - 1 + NS and n < 2 and nxt <= c + NS - 1:
            for f in dma_items(nxt): f()
            nxt += 1; n += 1
            if nxt - c > NS - 1: break
        if c >= TR0:
            for _ in range(TRN):
                if pw:
                    j = pw.pop(0); L = w2ld(j)
                    for x in L[:-1]: k(x)
                    vm.issue(L[-1], ("w", j))
    assert nxt == 20
    k("s_barrier")
    stamp("a_end")
    while pw:
        j = pw.pop(0); L = w2ld(j)
        for x in L[:-1]: k(x)
        vm.issue(L[-1], ("w", j))
    phaseB(True)
    k.lab(END)
    k("s_endpgm")
    return k
```
